```python
import torch

def _softmax(x, axis=-1):
    return torch.softmax(x, dim=axis)
def _gelu(x):
    return torch.nn.functional.gelu(x, approximate="tanh")
def _silu(x):
    return torch.nn.functional.silu(x)
def _sigmoid(x):
    return torch.sigmoid(x)
def _layernorm(x, axis=-1, eps=1e-5):
    m = x.mean(dim=axis, keepdim=True)
    v = x.var(dim=axis, keepdim=True, unbiased=False)
    return (x - m) / torch.sqrt(v + eps)
def _scatter_add(tgt, idx, src, axis=0):
    return tgt.clone().index_add_(axis, idx, src)
def _segment_sum(src, seg, n):
    out = torch.zeros((n,) + src.shape[1:], dtype=src.dtype)
    return out.index_add_(0, seg, src)
def _pad(x, pw):
    flat = tuple(v for pair in reversed(pw) for v in pair)
    return torch.nn.functional.pad(x, flat)

kernel_name = 'interleave_layers__linear_attn_block__glu_gated_bilinear__prompt'

def setup_inputs():

    _w = (lambda a: (lambda t: t.to(torch.bfloat16) if t.is_floating_point() else t)(torch.as_tensor(a)))
    def _A_setup():
        B, S, D = 1, 2048, 1024
        return {
            "x": _w((lambda *s: torch.randn(*s, dtype=torch.bfloat16) * 0.05)(B, S, D)),
            "wqkv": _w((lambda *s: torch.randn(*s, dtype=torch.bfloat16) * 0.05)(D, 3 * D)),
            "wo": _w((lambda *s: torch.randn(*s, dtype=torch.bfloat16) * 0.05)(D, D)),
        }
    _A_in = _A_setup()

    def _B_setup():
        B, S, D, F = 1, 2048, 1024, 3584
        return {
            "x": _w((lambda *s: torch.randn(*s, dtype=torch.bfloat16) * 0.05)(B, S, D)),
            "w_gate": _w((lambda *s: torch.randn(*s, dtype=torch.bfloat16) * 0.8)(D, F) * (D ** -0.5)),
            "w_up": _w((lambda *s: torch.randn(*s, dtype=torch.bfloat16) * 0.8)(D, F) * (D ** -0.5)),
            "w_down": _w((lambda *s: torch.randn(*s, dtype=torch.bfloat16) * 0.8)(F, D) * (F ** -0.5)),
        }
    _B_in = _B_setup()

    return {
        "A_x": _A_in["x"],
        "A_wqkv": _A_in["wqkv"],
        "A_wo": _A_in["wo"],
        "B_x": _B_in["x"],
        "B_w_gate": _B_in["w_gate"],
        "B_w_up": _B_in["w_up"],
        "B_w_down": _B_in["w_down"],
    }

def reference(A_x, A_wqkv, A_wo, B_x, B_w_gate, B_w_up, B_w_down):
    def _A_ref(x, wqkv, wo):
        B, S, D = x.shape
        H = 32; Dh = D // H
        qkv = (lambda x, *d: x.permute(*d))((x @ wqkv).reshape(B, S, 3, H, Dh), 2, 0, 3, 1, 4)
        q, k, v = qkv[0], qkv[1], qkv[2]
        phi = lambda t: torch.where(t > 0, t + 1, torch.exp(t)) + 1e-6
        pq, pk = phi(q), phi(k)
        kv = torch.einsum("bhsd,bhse->bhde", pk, v)
        z = torch.einsum("bhsd->bhd", pk)
        num = torch.einsum("bhqd,bhde->bhqe", pq, kv)
        den = torch.einsum("bhqd,bhd->bhq", pq, z)[..., None] + 1e-6
        o = num / den
        return (lambda x, *d: x.permute(*d))(o, 0, 2, 1, 3).reshape(B, S, D) @ wo

    def _B_ref(x, w_gate, w_up, w_down):
        g = torch.einsum("bsd,df->bsf", x, w_gate)
        u = torch.einsum("bsd,df->bsf", x, w_up)
        h = g * u
        return torch.einsum("bsf,fd->bsd", h, w_down)

    x = A_x
    x = x + _A_ref(_layernorm(x, axis=-1), A_wqkv, A_wo)
    x = x + _B_ref(_layernorm(x, axis=-1), B_w_gate, B_w_up, B_w_down)
    x = x + _A_ref(_layernorm(x, axis=-1), A_wqkv, A_wo)
    x = x + _B_ref(_layernorm(x, axis=-1), B_w_gate, B_w_up, B_w_down)
    return x
```

```python
from g import *
from layout import *
def srd(a, s, lo, hi, nbytes):
    a(f"s_mov_b32 s{s}, {lo}"); a(f"s_mov_b32 s{s+1}, {hi}")
    a(f"s_mov_b32 s{s+2}, {nbytes}"); a(f"s_mov_b32 s{s+3}, 0x20000")
STAMP_OFF = 39 * MB
def stamp(a, n):
    a(f"s_memtime s[{64+4*n}:{65+4*n}]")
    a(f"s_memrealtime s[{66+4*n}:{67+4*n}]")
def stamp_store(a, n, vtmp, srd_, wave_s, nw_log2=2):
    a("s_waitcnt lgkmcnt(0)")
    a(f"s_lshl_b32 s60, s2, {nw_log2}"); a(f"s_add_u32 s60, s60, s{wave_s}"); a("s_lshl_b32 s60, s60, 7"); a(f"s_add_u32 s60, s60, {STAMP_OFF}")
    a(f"v_mov_b32 v{vtmp+4}, 0")
    for i in range(n):
        for k in range(4): a(f"v_mov_b32 v{vtmp+k}, s{64+4*i+k}")
        a(f"buffer_store_dwordx4 v[{vtmp}:{vtmp+3}], v{vtmp+4}, s[{srd_}:{srd_+3}], s60 offen offset:{16*i}")
        a("s_nop 1")
def xlane_sum4(a, r, tmp):
    a(f"v_mov_b32 v{tmp}, v{r}")
    a("s_nop 1")
    a(f"v_permlane32_swap_b32 v{r}, v{tmp}")
    a(f"v_add_f32 v{r}, v{r}, v{tmp}")
    a(f"v_mov_b32 v{tmp}, v{r}")
    a("s_nop 1")
    a(f"v_permlane16_swap_b32 v{r}, v{tmp}")
    a(f"v_add_f32 v{r}, v{r}, v{tmp}")

def barstamp_store(a, base, n, vtmp, srd_):
    a("s_add_u32 s60, s60, 0x40000")
    for i in range(n):
        a(f"v_mov_b32 v{vtmp}, s{base+2*i}")
        a(f"buffer_store_dword v{vtmp}, v{vtmp+4}, s[{srd_}:{srd_+3}], s60 offen offset:{4*i}")
        a("s_nop 1")

def spread(c, k, m0, instrs, per=2, step=1, **kw):
    m = m0; first = True
    for i in range(0, len(instrs), per):
        kk, mm = k, m
        while mm >= c.M: mm -= c.M; kk += 1
        assert kk < 0 or k >= 0
        c.extra(kk, mm, instrs[i:i+per], **(kw if first else {}))
        first = False
        m += step
    return m

class Rec(A):
    def __call__(self, s): self.l.append(s)

def bf16_round(a, r):
    a(f"v_cvt_pk_bf16_f32 v{r}, v{r}, v{r}")
    a(f"v_and_b32 v{r}, 0xffff0000, v{r}")

def row_stats(a, bs, bq, want_mean=True, want_rstd=True):
    a(f"v_add_f32 v{bs}, v{bs}, v{bs+1}"); a(f"v_add_f32 v{bs+2}, v{bs+2}, v{bs+3}"); a(f"v_add_f32 v{bs}, v{bs}, v{bs+2}")
    xlane_sum4(a, bs, bs + 1)
    a(f"v_mul_f32 v{bs}, 0xba800000, v{bs}")
    if want_rstd:
        a(f"v_add_f32 v{bq}, v{bq}, v{bq+1}"); a(f"v_add_f32 v{bq+2}, v{bq+2}, v{bq+3}"); a(f"v_add_f32 v{bq}, v{bq}, v{bq+2}")
        xlane_sum4(a, bq, bq + 1)
        a(f"v_mul_f32 v{bq}, 0x3a800000, v{bq}")
        a(f"v_fma_f32 v{bq}, -v{bs}, v{bs}, v{bq}")
        a(f"v_max_f32 v{bq}, 0, v{bq}")
        bf16_round(a, bq)
        a(f"v_add_f32 v{bq}, 0x3727c5ac, v{bq}")
        bf16_round(a, bq)
        a(f"v_sqrt_f32 v{bq}, v{bq}")
        a("s_nop 0")
        bf16_round(a, bq)
        a(f"v_rcp_f32 v{bq}, v{bq}")
        a("s_nop 0")
    if want_mean:
        bf16_round(a, bs)

def interleave(lists):
    out = []
    n = max(len(l) for l in lists)
    for i in range(n):
        for l in lists:
            if i < len(l): out.append(l[i])
    return out

def resid_epilogue(a, accr, RT, xold, scale, tmp, vX, vRow, srd_ws, s_xnew, s_stat, vStat, final, srd_out=None, s_out=None, vOut=None, ones=None):
    vs = [tmp + 8 + 2 * t for t in range(RT)]
    for t in range(RT):
        a(f"v_mov_b32 v{vs[t]}, 0"); a(f"v_mov_b32 v{vs[t]+1}, 0")
        for b in range(2):
            xo = xold(t, b)
            for h in range(2):
                r = accr(2 * b + h, t)
                for p in range(2):
                    a(f"v_lshlrev_b32 v{tmp+4*h+2*p}, 16, v{xo+2*h+p}")
                    a(f"v_and_b32 v{tmp+4*h+2*p+1}, 0xffff0000, v{xo+2*h+p}")
                for e in range(4):
                    if scale is None: a(f"v_add_f32 v{r+e}, v{r+e}, v{tmp+4*h+e}")
                    else: a(f"v_fma_f32 v{r+e}, v{r+e}, v{scale(t)}, v{tmp+4*h+e}")
            for h in range(2):
                r = accr(2 * b + h, t)
                for p in range(2):
                    a(f"v_cvt_pk_bf16_f32 v{xo+2*h+p}, v{r+2*p}, v{r+2*p+1}")
            if not final:
                a(f"buffer_store_dwordx4 v[{xo}:{xo+3}], v{vX}, s[{srd_ws}:{srd_ws+3}], s{s_xnew(t)} offen offset:{b*1024}")
                for p in range(4):
                    a(f"v_dot2_f32_bf16 v{vs[t]}, v{xo+p}, v{ones}, v{vs[t]}")
                for p in range(4):
                    a(f"v_dot2_f32_bf16 v{vs[t]+1}, v{xo+p}, v{xo+p}, v{vs[t]+1}")
            else:
                a("s_nop 1")
                a(f"v_permlane16_swap_b32 v{xo}, v{xo+2}")
                a(f"v_permlane16_swap_b32 v{xo+1}, v{xo+3}")
                a(f"buffer_store_dwordx4 v[{xo}:{xo+3}], v{vOut}, s[{srd_out}:{srd_out+3}], s{s_out(t)} offen offset:{b*64}")
    if not final:
        a("s_nop 2")
        ls = []
        for t in range(RT):
            for k in range(2):
                r = Rec(); xlane_sum4(r, vs[t] + k, tmp + 2 * t + k); ls.append(r.l)
        for x in interleave(ls): a(x)
        assert RT == 2
        a(f"v_cmp_gt_u32 vcc, 16, v{vRow}")
        a("s_nop 1")
        a(f"v_cndmask_b32 v{tmp}, v{vs[0]+1}, v{vs[0]}, vcc")
        a(f"v_cndmask_b32 v{tmp+1}, v{vs[1]+1}, v{vs[1]}, vcc")
        a(f"v_cmp_gt_u32 vcc, 512, v{vX}")
        a("s_nop 1")
        a(f"v_cndmask_b32 v{tmp}, v{tmp+1}, v{tmp}, vcc")
        a(f"buffer_store_dword v{tmp}, v{vStat}, s[{srd_ws}:{srd_ws+3}], s{s_stat} offen")

class Seq:
    def __init__(self, a):
        self.a = a; self.vm = {}; self.ld = {}; self.nv = 0; self.nl = 0; self.dv = 0; self.dl = 0
    def wait(self, needvm=(), needlds=(), alllds=False):
        w = []
        if needvm:
            i = max(self.vm[t] for t in needvm) + 1
            if i > self.dv:
                n = min(self.nv - i, 63); w.append(f"vmcnt({n})"); self.dv = self.nv - n
        if needlds or alllds:
            i = self.nl if alllds else max(self.ld[t] for t in needlds) + 1
            if i > self.dl:
                n = min(self.nl - i, 15); w.append(f"lgkmcnt({n})"); self.dl = self.nl - n
        if w: self.a("s_waitcnt " + " ".join(w))
    def __call__(self, txt, vm=None, lds=None, needvm=(), needlds=()):
        self.wait(needvm, needlds)
        self.a(txt)
        if vm is not None: self.vm[vm] = self.nv; self.nv += 1
        if lds is not None: self.ld[lds] = self.nl; self.nl += 1

def merge(main, fill, start=0, per=None):
    out = []
    n = len(main) - start
    k = 0
    for i, m in enumerate(main):
        out.append(m)
        if i >= start:
            tgt = (len(fill) * (i - start + 1) + n - 1) // n if per is None else min(len(fill), per * (i - start + 1))
            while k < tgt: out.append(fill[k]); k += 1
    out.extend(fill[k:])
    return out
```

```python
from g import *

class Core:
    def __init__(self, a, name, RT, NT, KSTEPS, ND, stage_bytes, wstep, R, wread,
                 nontrans=(), UN=4, acc0=0, xa0=0, vX=None, vD=None,
                 bar_early=0, dma_span=0.9, xlead=None, gh=4, cap=2, npro=0, H=None, T=None, xstep=2048,
                 lgsafe=8, fine=2, accf=None, xf='a', wf='a', wa0=None, barstamp=None, rdmargin=9, skip='', init_acc=False):
        self.init_acc = init_acc
        self.skip = skip
        self.rdmargin = rdmargin
        self.a = a; self.name = name
        self.RT = RT; self.NT = NT; self.KSTEPS = KSTEPS; self.ND = ND
        self.stage_bytes = stage_bytes; self.wstep = wstep; self.xstep = xstep
        self.R = R; self.wread = wread
        self.nontrans = set(nontrans)
        self.UN = UN
        self.acc0 = acc0; self.xa0 = xa0
        self.xslot = 2 * RT * 4
        self.wa0 = xa0 + UN * self.xslot if wa0 is None else wa0
        self.vX = vX; self.vD = vD
        self.bar_early = bar_early; self.dma_span = dma_span
        self.xlead = xlead if xlead is not None else UN - 1
        self.wlead = UN - 1
        self.gh = gh; self.cap = cap
        self.H = H if H is not None else UN
        self.T = T if T is not None else UN
        assert (KSTEPS - self.H - self.T) % UN == 0 and KSTEPS >= self.H + self.T
        assert self.T >= UN - 1 or self.T == 0
        assert (UN * NT) % R == 0
        self.agpr_end = self.wa0 + 8 * R
        self.M = NT * RT * 2
        self.npro = npro
        self.lgsafe = lgsafe; self.fine = fine
        self.accf = accf; self.xf = xf; self.wf = wf; self.barstamp = barstamp
        self.sW = 4; self.sX = 8; self.sWoff = 24; self.sXoff = 25; self.sM0 = 26; self.sCnt = 27
        self.mb = max((NT - R) * RT * 2 + RT * 2 - 1 - bar_early, 0)
        self.extras = []

    def extra(self, k, m, txt, cost=None, vm=None, needvm=(), lds=None, needlds=()):
        if isinstance(txt, str): txt = [txt]
        self.extras.append(dict(k=k, m=m, txt=txt, cost=len(txt) if cost is None else cost, vm=vm, needvm=tuple(needvm), lds=lds, needlds=tuple(needlds)))

    def accr(self, j, t): return self.acc0 + (j * self.RT + t) * 4
    def acc(self, j, t):
        if self.accf:
            f, r = self.accf(j, t); return f"{f}[{r}:{r+3}]"
        r = self.accr(j, t); return f"v[{r}:{r+3}]"
    def xreg(self, i, s, t):
        r = self.xa0 + (i % self.UN) * self.xslot + (t * 2 + s) * 4
        return f"{self.xf}[{r}:{r+3}]"
    def wreg(self, f, s, q=None):
        r = self.wa0 + (f % self.R) * 8 + 4 * s
        if q is None: return f"{self.wf}[{r}:{r+3}]"
        return f"{self.wf}[{r+2*q}:{r+2*q+1}]"

    def txt_vm(self, tag):
        if tag[0] == "x":
            _, i, t, s = tag
            sr = self.sX + 4 * t
            txt = []
            if t == 0 and s == 0 and i > 0:
                txt.append(f"s_add_u32 s{self.sXoff}, s{self.sXoff}, {self.xstep}")
            txt.append(f"buffer_load_dwordx4 {self.xreg(i,s,t)}, v{self.vX}, s[{sr}:{sr+3}], s{self.sXoff} offen offset:{s*1024}")
            return txt
        _, i, d = tag
        txt = []
        if d % 4 == 0:
            txt.append(f"s_add_u32 m0, s{self.sM0}, {(i % self.UN) * self.stage_bytes + 4096 * (d // 4)}")
            if d == 0 and i > 0:
                txt.append(f"s_add_u32 s{self.sWoff}, s{self.sWoff}, {self.wstep}")
            else:
                txt.append("s_nop 0")
        txt.append(f"buffer_load_dwordx4 v{self.vD + d}, s[{self.sW}:{self.sW+3}], s{self.sWoff} offen offset:{(d%4)*1024} lds")
        return txt
    def txt_rd(self, tag):
        _, f, s, q = tag
        i = f // self.NT; j = f % self.NT
        va, off = self.wread(i % self.UN, s, j, q)
        return [f"ds_read_b64_tr_b16 {self.wreg(f,s,q)}, v{va} offset:{off}"]

    def mfma_seq(self):
        seq = []
        for j in range(self.NT):
            ts = list(range(self.RT))
            if j % 2: ts = ts[::-1]
            for n, t in enumerate(ts):
                ss = (0, 1) if n % 2 == 0 else (1, 0)
                for s in ss: seq.append((j, t, s))
        return seq
    def slot_of(self, j, t):
        return max(n for n, (jj, tt, s) in enumerate(self.mfma_seq()) if jj == j and tt == t)

    def steady_vm_slots(self):
        M, mb, ND, RT = self.M, self.mb, self.ND, self.RT
        res = []
        span = int(M * self.dma_span)
        for d in range(ND):
            res.append((mb + 1 + (d * span) // ND, ("w", self.wlead, d)))
        nx = 2 * RT
        for n in range(nx):
            res.append((((2 * n + 1) * M) // (2 * nx), ("x", self.xlead, n // 2, n % 2)))
        return res

    def build(self, nk):
        M, NT, RT, R = self.M, self.NT, self.RT, self.R
        tot = nk * M
        W = []; X = []
        for i in range(-self.UN - 1, nk):
            for p, tg in self.steady_vm_slots():
                tag = (tg[0], i + tg[1]) + tuple(tg[2:])
                if tag[1] < 0 or tag[1] >= nk: continue
                (W if tag[0] == "w" else X).append((i * M + p, tag))
        W.sort(key=lambda z: z[1][1:]); X.sort(key=lambda z: z[1][1:])
        pro = [t for S, t in W if t[1] == 0] + [t for S, t in X if t[1] == 0]
        W = [z for z in W if z[1][1] > 0]; X = [z for z in X if z[1][1] > 0]
        def dl(tag):
            return (tag[1] - 1) * M + self.mb if tag[0] == "w" else tag[1] * M
        for _ in range(self.npro):
            q = W if dl(W[0][1]) <= dl(X[0][1]) else X
            assert q[0][0] < 0
            pro.append(q.pop(0)[1])
        load = [0] * tot
        post = [[] for _ in range(tot)]
        for e in self.extras:
            k = e["k"] if e["k"] >= 0 else nk + e["k"]
            assert (0 <= e["k"] < self.H) or (-self.T <= e["k"] < 0), e
            post[k * M + e["m"]].append(("ex", e)); load[k * M + e["m"]] += e["cost"]
        var = lambda m: m < self.H * M or m >= (nk - self.T) * M
        last = -10**9
        for m in range(tot):
            if m - last < (self.gh if m < self.H * M else 1): continue
            cand = [q for q in (W, X) if q and q[0][0] <= m]
            if not cand: continue
            if (load[m] > 0 or (m + 1) % (2 * RT) == 0) and (m % M) != M - 1 and M > 16:
                continue
            q = min(cand, key=lambda q: dl(q[0][1]))
            S, tag = q.pop(0)
            assert m < dl(tag), ("vm op misses deadline", tag, m)
            post[m].append(("vm", tag)); load[m] += 2 + (len(self.txt_vm(tag)) - 1)
            last = m
            if not var(m): assert m - S <= 3, ("backlog not cleared in head", tag, S, m)
        assert not W and not X
        pro_rd = [("lds", ("r", f, s, q)) for f in range(R) for s in range(2) for q in range(2)]
        m_next = 0
        for f in range(nk * NT - R):
            e = f * 2 * RT + 2 * RT - 1
            m = max(e, m_next)
            kend = (e // M + 1) * M - 1
            lim = max(e, min(kend, e + (R - 1) * 2 * RT - self.rdmargin))
            m = min(m, lim)
            for s in range(2):
                for q in range(2):
                    while load[m] >= self.cap and m < lim: m += 1
                    post[m].append(("lds", ("r", f + R, s, q))); load[m] += 1
                    if m < lim and RT >= 2: m += 1
            m_next = m
        seq = self.mfma_seq()
        steps = []
        for i in range(nk):
            it = []
            seen = set()
            for n, (j, t, s) in enumerate(seq):
                if n == self.mb and i + 1 < nk: it.append(("bar", i))
                first = (i == 0 and (j, t) not in seen); seen.add((j, t))
                it.append(("mfma", i, j, t, s, first))
                it.extend(post[i * M + n])
            steps.append(it)
        pitems = [("vm", t) for t in pro] + [("hook",), ("bar", -1)] + pro_rd
        return pitems, steps

    def emit(self, hook=None):
        a = self.a
        UN, H, T = self.UN, self.H, self.T
        niter = (self.KSTEPS - H - T) // UN
        simit = min(niter, 3)
        nk = H + UN * simit + T
        pitems, steps = self.build(nk)
        def norm(item, base):
            if item[0] == "vm": t = item[1]; return ("vm", t[0], t[1] - base) + tuple(t[2:])
            if item[0] == "lds": t = item[1]; return ("lds", t[1] - base * self.NT) + tuple(t[2:])
            if item[0] == "bar": return ("bar",)
            return ("mfma",) + tuple(item[2:5])
        for i in range(H + UN, H + UN * simit):
            assert [norm(x, i) for x in steps[i]] == [norm(x, i - UN) for x in steps[i - UN]], ("not periodic", i)
        prog = [(("P", n), it) for n, it in enumerate(pitems)]
        for i in range(nk):
            for n, it in enumerate(steps[i]):
                if i < H: key = ("H", i, n)
                elif i < H + UN * simit: key = ("L", (i - H) % UN, n)
                else: key = ("T", i - (H + UN * simit), n)
                prog.append((key, it))
        vmq = {}; ldq = {}; nv = 0; nl = 0
        need = {}
        mn = lambda x, y: y if x is None else (x if y is None else min(x, y))
        for key, item in prog:
            vmN = lgN = None
            if item[0] == "vm": vmq[item[1]] = nv; nv += 1
            elif item[0] == "lds": ldq[item[1]] = nl; nl += 1
            elif item[0] == "ex":
                e = item[1]
                if e["needvm"]: vmN = nv - 1 - max(vmq[t] for t in e["needvm"])
                if e["needlds"]: lgN = nl - 1 - max(ldq[t] for t in e["needlds"])
                if e["vm"] is not None: vmq[e["vm"]] = nv; nv += 1
                if e["lds"] is not None: ldq[e["lds"]] = nl; nl += 1
            elif item[0] == "bar":
                i = item[1]
                vmN = nv - 1 - max(vmq[("w", i + 1, d)] for d in range(self.ND))
            elif item[0] == "mfma":
                _, i, j, t, s, first = item
                f = i * self.NT + j
                if i < self.fine: vmN = nv - 1 - max(vmq[("x", i, t, 0)], vmq[("x", i, t, 1)])
                else: vmN = nv - 1 - max(vmq[("x", i, tt, ss)] for tt in range(self.RT) for ss in range(2))
                lgN = nl - 1 - max(ldq[("r", f, ss, q)] for ss in range(2) for q in range(2))
            if vmN is not None or lgN is not None:
                o = need.get(key, (None, None))
                need[key] = (mn(o[0], vmN), mn(o[1], lgN))
        self.vmq = vmq; self.nv = nv
        st = dict(vm=10**9, lg=10**9)
        npro_vm = sum(1 for it in pitems if it[0] == "vm")
        def emit_items(items):
            for key, item in items:
                if key in need:
                    vmN, lgN = need[key]
                    w = []
                    if vmN is not None and vmN < st["vm"]:
                        vmN = min(vmN, 63)
                        w.append(f"vmcnt({vmN})"); st["vm"] = vmN
                    if lgN is not None and lgN < st["lg"]:
                        lgN = min(lgN, 15 if (key[0] == "H" and key[1] == 0) else self.lgsafe)
                        w.append(f"lgkmcnt({lgN})"); st["lg"] = lgN
                    if w: a("s_waitcnt " + " ".join(w))
                if item[0] == "vm":
                    if not (item[1][0] in self.skip and item[1][1] >= UN):
                        for tx in self.txt_vm(item[1]): a(tx)
                    st["vm"] += 1
                elif item[0] == "lds":
                    if not ('r' in self.skip and key[0] != 'P'):
                        for tx in self.txt_rd(item[1]): a(tx)
                    st["lg"] += 1
                elif item[0] == "ex":
                    for tx in item[1]["txt"]: a(tx)
                    if item[1]["vm"] is not None: st["vm"] += 1
                    if item[1]["lds"] is not None: st["lg"] += 1
                elif item[0] == "bar":
                    a("s_barrier")
                    if self.barstamp is not None:
                        n = {"P": 0, "H": 1, "L": None, "T": 1 + H}[key[0]]
                        if n is not None:
                            if key[0] != "P": n += key[1]
                            if n < 9: a(f"s_memtime s[{self.barstamp+2*n}:{self.barstamp+2*n+1}]")
                elif item[0] == "hook":
                    if hook: hook(npro_vm)
                    st["vm"] = st["lg"] = 10**9
                elif item[0] == "mfma":
                    _, i, j, t, s, first = item
                    f = i * self.NT + j
                    w = self.wreg(f, s); x = self.xreg(i, s, t)
                    A_, B_ = (x, w) if j in self.nontrans else (w, x)
                    c = "0" if (first and not self.init_acc) else self.acc(j, t)
                    a(f"v_mfma_f32_16x16x32_bf16 {self.acc(j,t)}, {A_}, {B_}, {c}")
        emit_items([p for p in prog if p[0][0] in ("P", "H")])
        if niter > 0:
            if niter > 1:
                a(f"s_mov_b32 s{self.sCnt}, {niter}")
                a.label(f"L_{self.name}")
                st["vm"] = st["lg"] = 10**9
            body = []
            for i in range(H, H + UN):
                for n, it in enumerate(steps[i]): body.append((("L", i - H, n), it))
            emit_items(body)
            if niter > 1:
                a(f"s_sub_u32 s{self.sCnt}, s{self.sCnt}, 1")
                a(f"s_cmp_lg_u32 s{self.sCnt}, 0")
                a(f"s_cbranch_scc1 L_{self.name}")
        emit_items([p for p in prog if p[0][0] == "T"])
    def wait_vm(self, tags):
        return self.nv - 1 - max(self.vmq[t] for t in tags)
```

```python
class A:
    def __init__(self):
        self.l = []
    def __call__(self, s):
        self.l.append("    " + s)
    def label(self, s):
        self.l.append(s + ":")
    def c(self, s):
        self.l.append("    ; " + s)
    def text(self):
        return "\n".join(self.l) + "\n"

def kernel_wrap(name, body, vgpr=256, agpr=0, sgpr=102, accum=None, wgy=False):
    if accum is None:
        accum = (vgpr + 3) // 4 * 4
    nfv = accum + agpr if agpr else vgpr
    s = f""".text
.globl {name}
.p2align 8
.type {name},@function
{name}:
{body}
END_{name}:
.section .rodata,"a"
.p2align 6
.amdhsa_kernel {name}
  .amdhsa_next_free_vgpr {nfv}
  .amdhsa_next_free_sgpr {sgpr}
  .amdhsa_accum_offset {accum}
  .amdhsa_group_segment_fixed_size 0
  .amdhsa_kernarg_size 80
  .amdhsa_user_sgpr_count 2
  .amdhsa_user_sgpr_kernarg_segment_ptr 1
  .amdhsa_system_sgpr_workgroup_id_x 1
{"  .amdhsa_system_sgpr_workgroup_id_y 1" if wgy else ""}
.end_amdhsa_kernel
"""
    return s

def file_wrap(launches, kernels):
    h = ""
    for (n, g, b, lds) in launches:
        h += f"; @launch kernel={n} grid=({g[0]},{g[1]},{g[2]}) block=({b[0]},{b[1]},{b[2]}) lds={lds}\n"
    h += '.amdgcn_target "amdgcn-amd-amdhsa--gfx950"\n'
    return h + "\n".join(kernels)
```

```python
from common import *

def gen_k0(name):
    a = A()
    NCS = 160; NX = 128
    a(f"s_cmp_ge_u32 s2, {NCS+NX}")
    a(f"s_cbranch_scc1 E_{name}")
    a("s_load_dwordx4 s[4:7], s[0:1], 0")
    a("s_load_dwordx4 s[8:11], s[0:1], 32")
    a("s_load_dwordx2 s[12:13], s[0:1], 72")
    a("v_and_b32 v1, 63, v0")
    a("v_lshrrev_b32 v2, 6, v0")
    a("s_nop 0")
    a("v_readfirstlane_b32 s14, v2")
    a(f"s_cmp_ge_u32 s2, {NCS}")
    a(f"s_cbranch_scc1 X_{name}")
    a("s_waitcnt lgkmcnt(0)")
    a("s_cmp_lt_u32 s2, 104")
    a("s_cselect_b32 s16, s8, s10"); a("s_cselect_b32 s17, s9, s11")
    a("s_cselect_b32 s20, 48, 104")
    a("s_cmp_lt_u32 s2, 48")
    a("s_cselect_b32 s16, s6, s16"); a("s_cselect_b32 s17, s7, s17")
    a("s_cselect_b32 s20, 0, s20")
    a("s_movk_i32 s21, 7168"); a("s_cselect_b32 s21, 6144, s21")
    a("s_lshl_b32 s18, s21, 10")
    a("s_mov_b32 s19, 0x20000")
    a("s_sub_u32 s20, s2, s20")
    a("s_lshl_b32 s20, s20, 7")
    a("v_lshrrev_b32 v3, 3, v0")
    a("v_mul_lo_u32 v3, v3, s21")
    a("v_and_b32 v4, 7, v0")
    a("v_lshl_add_u32 v3, v4, 4, v3")
    a("v_add_u32 v3, s20, v3")
    a("s_lshl_b32 s22, s21, 5")
    a("s_mov_b32 s23, 0")
    for i in range(32):
        a(f"buffer_load_dwordx4 v[{16+4*i}:{19+4*i}], v3, s[16:19], s23 offen")
        if i < 31: a("s_add_u32 s23, s23, s22")
    for e in range(8): a(f"v_mov_b32 v{8+e}, 0")
    a("v_mov_b32 v5, 0x3f80")
    a("v_mov_b32 v6, 0x3f800000")
    for i in range(32):
        a(f"s_waitcnt vmcnt({31-i})")
        for p in range(4):
            a(f"v_dot2_f32_bf16 v{8+2*p}, v{16+4*i+p}, v5, v{8+2*p}")
            a(f"v_dot2_f32_bf16 v{9+2*p}, v{16+4*i+p}, v6, v{9+2*p}")
    a("v_lshlrev_b32 v3, 5, v0")
    a("s_nop 2")
    a("ds_write_b128 v3, v[8:11]")
    a("ds_write_b128 v3, v[12:15] offset:16")
    a("s_waitcnt lgkmcnt(0)")
    a("s_barrier")
    a("v_lshlrev_b32 v3, 2, v1")
    a("s_lshl_b32 s23, s14, 11")
    a("v_add_u32 v3, s23, v3")
    for i in range(8): a(f"ds_read_b32 v{16+i}, v3 offset:{i*256}")
    a("s_waitcnt lgkmcnt(0)")
    for i in range(1, 8): a(f"v_add_f32 v16, v16, v{16+i}")
    a("v_lshlrev_b32 v3, 2, v0")
    a("ds_write_b32 v3, v16 offset:8192")
    a("s_waitcnt lgkmcnt(0)")
    a("s_barrier")
    a("s_cmp_lg_u32 s14, 0")
    a(f"s_cbranch_scc1 E_{name}")
    for i in range(4): a(f"ds_read_b32 v{16+i}, v3 offset:{8192+i*256}")
    srd(a, 24, "s12", "s13", WS_USED)
    a("s_lshl_b32 s23, s2, 8")
    a(f"s_add_u32 s23, s23, {CSF}")
    a("s_waitcnt lgkmcnt(0)")
    a("v_add_f32 v16, v16, v17"); a("v_add_f32 v18, v18, v19"); a("v_add_f32 v16, v16, v18")
    a("buffer_store_dword v16, v3, s[24:27], s23 offen")
    a("s_endpgm")
    a.label(f"X_{name}")
    a(f"s_sub_u32 s15, s2, {NCS}")
    a("v_and_b32 v3, 15, v1")
    a("v_lshrrev_b32 v4, 4, v1")
    a("v_lshlrev_b32 v5, 11, v3")
    a("v_and_b32 v6, 1, v4")
    a("v_lshl_add_u32 v5, v6, 5, v5")
    a("v_lshrrev_b32 v7, 1, v4")
    a("v_lshl_add_u32 v5, v7, 4, v5")
    a("s_lshl_b32 s20, s15, 15"); a("s_lshl_b32 s21, s14, 9"); a("s_add_u32 s20, s20, s21")
    a("s_waitcnt lgkmcnt(0)")
    srd(a, 16, "s4", "s5", 2048 * 2048)
    srd(a, 24, "s12", "s13", WS_USED)
    for b in range(8):
        a(f"buffer_load_dwordx4 v[{16+4*b}:{19+4*b}], v5, s[16:19], s20 offen offset:{b*64}")
    for e in range(4): a(f"v_mov_b32 v{8+e}, 0")
    a("v_lshlrev_b32 v12, 4, v0")
    a(f"s_mul_i32 s22, s15, 2112"); a(f"s_add_u32 s22, s22, {KV0}")
    a("v_cmp_gt_u32 vcc, 132, v0")
    a("s_and_saveexec_b64 s[28:29], vcc")
    a(f"s_cbranch_execz Z_{name}")
    a("buffer_store_dwordx4 v[8:11], v12, s[24:27], s22 offen")
    a.label(f"Z_{name}")
    a("s_mov_b64 exec, s[28:29]")
    a("v_lshlrev_b32 v12, 4, v1")
    a("v_mov_b32 v13, 0x3f803f80")
    a("s_lshl_b32 s21, s15, 15"); a("s_lshl_b32 s22, s14, 13"); a("s_add_u32 s21, s21, s22"); a(f"s_add_u32 s21, s21, {XF0}")
    a("s_add_u32 s22, s21, 4096")
    for e in range(8): a(f"v_mov_b32 v{48+e}, 0")
    a("s_waitcnt vmcnt(0)")
    for b in range(8):
        r = 16 + 4 * b
        a(f"v_permlane16_swap_b32 v{r}, v{r+2}")
        a(f"v_permlane16_swap_b32 v{r+1}, v{r+3}")
        a(f"buffer_store_dwordx4 v[{r}:{r+3}], v12, s[24:27], s{21 + b // 4} offen offset:{(b%4)*1024}")
        for p in range(4):
            a(f"v_dot2_f32_bf16 v{48+b//2}, v{r+p}, v13, v{48+b//2}")
            a(f"v_dot2_f32_bf16 v{52+b//2}, v{r+p}, v{r+p}, v{52+b//2}")
    a("s_nop 2")
    ls = []
    for e in range(8):
        r = Rec(); xlane_sum4(r, 48 + e, 56 + e); ls.append(r.l)
    for x in interleave(ls):
        if x.startswith("s_nop"): continue
        a(x)
    a("v_cmp_eq_u32 vcc, 0, v6")
    a("v_lshlrev_b32 v5, 6, v3")
    a("v_lshl_add_u32 v5, v6, 17, v5")
    for e in range(4): a(f"v_cndmask_b32 v{48+e}, v{52+e}, v{48+e}, vcc")
    a("s_lshl_b32 s21, s15, 10"); a("s_lshl_b32 s22, s14, 4"); a("s_add_u32 s21, s21, s22"); a(f"s_add_u32 s21, s21, {ST0}")
    a("buffer_store_dwordx4 v[48:51], v5, s[24:27], s21 offen")
    a.label(f"E_{name}")
    a("s_endpgm")
    return kernel_wrap(name, a.text(), vgpr=144, sgpr=32), 9216, NCS + NX

if __name__ == "__main__":
    k, lds, n = gen_k0("k0_kernel")
    open("k0_a.s", "w").write(file_wrap([("k0_kernel", (n,1,1), (256,1,1), lds)], [k]))
```

```python
from common import *
from core import Core
from k4 import plane_dma_lane, plane_read_bases

def pk_bc(d, s, b):
    if b % 2 == 0: return f"v_pk_mul_f32 v[{d}:{d+1}], v[{s}:{s+1}], v[{b}:{b+1}] op_sel_hi:[1,0]"
    return f"v_pk_mul_f32 v[{d}:{d+1}], v[{s}:{s+1}], v[{b-1}:{b}] op_sel:[0,1] op_sel_hi:[1,1]"

def gen_k1(name, xf_off, st_off, kv_off, R=4, st=False, **kw):
    a = A()
    RT = 2; NT = 12
    STAGE = 24576
    AUX = 4 * STAGE
    RED = AUX + 8192
    REDW = 8448
    LDS = RED + 4 * REDW
    vX = 96; vD = 97; vWr = 104
    L = 112; t0, t1, t2 = 113, 114, 115
    vSt = 116
    vN4 = 132
    vCs = 148
    vK = 156
    vV = 172
    vKV = 188
    tmp = 236
    vA = 252; vB = 253; vOne = 254
    def wread(stage, s, j, q):
        return vWr + (stage // 2) * 4 + j % 4, (stage % 2) * STAGE + (j // 4) * 8192 + (32 * s + 16 * q) * 128
    c = Core(a, name, RT, NT, 16, 6, STAGE, 64 * 6144, R, wread, nontrans=range(4, 12), vX=vX, vD=vD, init_acc=True,
             barstamp=(84 if st else None), **kw)
    a("s_cmp_ge_u32 s2, 256")
    a(f"s_cbranch_scc1 E_{name}")
    if st: stamp(a, 0)
    a("s_load_dwordx2 s[28:29], s[0:1], 8")
    a("s_load_dwordx2 s[32:33], s[0:1], 72")
    a(f"v_lshrrev_b32 v{t0}, 6, v0")
    a(f"v_and_b32 v{L}, 63, v0")
    a(f"v_readfirstlane_b32 s34, v{t0}")
    a(f"v_lshlrev_b32 v{vA}, 2, v0")
    a("s_and_b32 s35, s2, 7"); a("s_lshr_b32 s36, s2, 3")
    a("s_lshr_b32 s37, s35, 2"); a("s_lshl_b32 s37, s37, 3"); a("s_lshr_b32 s38, s36, 2"); a("s_add_u32 s37, s37, s38")
    a("s_and_b32 s38, s35, 3"); a("s_lshl_b32 s38, s38, 2"); a("s_and_b32 s39, s36, 3"); a("s_add_u32 s38, s38, s39")
    a(f"v_lshlrev_b32 v{vX}, 4, v{L}")
    plane_dma_lane(a, L, 6144, tmp, t0, t1, t2)
    a("s_mul_i32 s39, s34, 6")
    a("s_lshl_b32 s41, s38, 7")
    for d in range(6):
        a(f"s_add_u32 s40, s39, {d}")
        a("s_lshr_b32 s43, s40, 3"); a("s_lshl_b32 s43, s43, 11")
        a("s_and_b32 s40, s40, 7"); a(f"s_mul_i32 s40, s40, {8*6144}")
        a("s_add_u32 s40, s40, s43"); a("s_add_u32 s40, s40, s41")
        if d % 4: a(f"s_sub_u32 s40, s40, {1024*(d%4)}")
        a(f"v_add_u32 v{vD+d}, s40, v{tmp}")
    a(f"s_mul_i32 s{c.sM0}, s34, 6144")
    rbB = 32768
    a("s_lshl_b32 s42, s37, 3"); a("s_lshl_b32 s43, s34, 1"); a("s_add_u32 s42, s42, s43")
    a(f"s_lshl_b32 s43, s42, 15")
    a(f"s_mov_b32 s{c.sWoff}, 0"); a(f"s_mov_b32 s{c.sXoff}, 0")
    a(f"v_and_b32 v{t0}, 15, v{L}")
    a(f"v_lshrrev_b32 v{t1}, 4, v{L}")
    a(f"v_lshlrev_b32 v{tmp+1}, 6, v{t0}")
    a(f"v_lshl_add_u32 v{tmp+1}, v{t1}, 4, v{tmp+1}")
    a(f"v_lshlrev_b32 v{tmp+2}, 4, v{t0}")
    a(f"v_lshl_add_u32 v{tmp+2}, v{t1}, 12, v{tmp+2}")
    a("s_lshl_b32 s48, s42, 10"); a(f"s_add_u32 s48, s48, {st_off}"); a(f"s_add_u32 s49, s48, {SQOFF}")
    a("s_lshl_b32 s50, s38, 8"); a(f"s_add_u32 s50, s50, {CSF}")
    a("s_lshl_b32 s51, s34, 11"); a(f"s_add_u32 s51, s51, {AUX}")
    a("s_mov_b32 m0, s51")
    a("s_waitcnt lgkmcnt(0)")
    srd(a, 44, "s32", "s33", WS_USED)
    for t in range(RT):
        for k in range(2):
            a(f"buffer_load_dwordx4 v[{vSt+8*t+4*k}:{vSt+8*t+4*k+3}], v{tmp+1}, s[44:47], s{48+k} offen offset:{t*1024}")
    a(f"buffer_load_dwordx4 v{tmp+2}, s[44:47], s50 offen lds")
    srd(a, c.sW, "s28", "s29", 1024 * 6144)
    for t in range(RT):
        s = c.sX + 4 * t
        a(f"s_add_u32 s{s}, s32, s43"); a(f"s_addc_u32 s{s+1}, s33, 0")
        a(f"s_add_u32 s{s}, s{s}, {xf_off + t*rbB}"); a(f"s_addc_u32 s{s+1}, s{s+1}, 0")
        a(f"s_mov_b32 s{s+2}, {rbB}"); a(f"s_mov_b32 s{s+3}, 0x20000")
    def hook(nvm):
        a(f"v_lshl_add_u32 v{tmp+3}, v{t0}, 2, s51")
        a(f"v_lshl_add_u32 v{tmp+4}, v{t1}, 4, s51")
        plane_read_bases(a, L, vWr, t0, t1, t2)
        for aa in range(4): a(f"v_add_u32 v{vWr+4+aa}, {2*STAGE}, v{vWr+aa}")
        a(f"s_waitcnt vmcnt({nvm})")
        for j in range(4):
            r = c.accr(j, 0)
            a(f"ds_read_b128 v[{r}:{r+3}], v{tmp+4} offset:{j*64}")
        for j in range(4, 12):
            a(f"ds_read_b32 v{vCs+j-4}, v{tmp+3} offset:{j*64}")
        ls = []
        for t in range(RT):
            r = Rec(); row_stats(r, vSt + 8 * t, vSt + 8 * t + 4)
            r(f"ds_write_b32 v{tmp+3}, v{vSt+8*t} offset:{1024+t*128}")
            r(f"ds_write_b32 v{tmp+3}, v{vSt+8*t+4} offset:{1024+t*128+64}")
            r(f"ds_read_b128 v[{vN4+8*t}:{vN4+8*t+3}], v{tmp+4} offset:{1024+t*128}")
            r(f"ds_read_b128 v[{vN4+8*t+4}:{vN4+8*t+7}], v{tmp+4} offset:{1024+t*128+64}")
            ls.append(r.l)
        for x in interleave(ls): a(x)
        a("s_waitcnt lgkmcnt(8)")
        for j in range(4):
            for t in (1, 0):
                for h in range(2):
                    a(pk_bc(c.accr(j, t) + 2 * h, c.accr(j, 0) + 2 * h, vSt + 8 * t))
        a("s_waitcnt lgkmcnt(0)")
        for j in range(4, 12):
            for t in range(2):
                for h in range(2):
                    a(pk_bc(c.accr(j, t) + 2 * h, vN4 + 8 * t + 2 * h, vCs + j - 4))
        if st: stamp(a, 1); a("s_waitcnt lgkmcnt(0)")
    c.emit(hook)
    if st: stamp(a, 2)
    a("s_mov_b32 s52, 0x358637bd"); a("s_mov_b32 s53, 0x358637bd")
    a("s_mov_b32 s54, 0x3fb8aa3b")
    for t in range(RT):
        for e in range(4): a(f"v_mul_f32 v{vN4+8*t+e}, s54, v{vN4+8*t+4+e}")
        a(f"v_mul_f32 v{vSt+8*t}, s54, v{vSt+8*t+4}")
    a(f"v_mov_b32 v{vOne}, 1.0"); a(f"v_mov_b32 v{vOne+1}, 1.0")
    def phi4(r, dst, rs, rsl, bc, tb):
        o = []
        for h in range(2):
            if bc:
                o.append(pk_bc(tb + 2 * h, r + 2 * h, rsl))
            else:
                o.append(f"v_pk_mul_f32 v[{tb+2*h}:{tb+2*h+1}], v[{r+2*h}:{r+2*h+1}], v[{rsl+2*h}:{rsl+2*h+1}]")
        for e in range(4): o.append(f"v_exp_f32_e64 v{tb+e}, v{tb+e} clamp")
        for h in range(2):
            if bc:
                assert rs % 2 == 0
                o.append(f"v_pk_fma_f32 v[{r+2*h}:{r+2*h+1}], v[{r+2*h}:{r+2*h+1}], v[{rs}:{rs+1}], v[{vOne}:{vOne+1}] op_sel_hi:[1,0,1]")
            else:
                o.append(f"v_pk_fma_f32 v[{r+2*h}:{r+2*h+1}], v[{r+2*h}:{r+2*h+1}], v[{rs+2*h}:{rs+2*h+1}], v[{vOne}:{vOne+1}]")
        for e in range(4): o.append(f"v_max_f32 v{r+e}, v{r+e}, v{tb+e}")
        for h in range(2): o.append(f"v_pk_add_f32 v[{r+2*h}:{r+2*h+1}], v[{r+2*h}:{r+2*h+1}], s[52:53]")
        for h in range(2): o.append(f"v_cvt_pk_bf16_f32 v{dst+h}, v{r+2*h}, v{r+2*h+1}")
        return o
    for j in range(4, 8):
        for t in range(RT):
            for x in phi4(c.accr(j, t), vK + 4 * (j - 4) + 2 * t, vN4 + 8 * t + 4, vN4 + 8 * t, False, tmp + 4 * t): a(x)
    for j in range(8, 12):
        for t in range(RT):
            r = c.accr(j, t)
            for h in range(2):
                a(f"v_pk_mul_f32 v[{r+2*h}:{r+2*h+1}], v[{r+2*h}:{r+2*h+1}], v[{vN4+8*t+4+2*h}:{vN4+8*t+5+2*h}]")
            for h in range(2):
                a(f"v_cvt_pk_bf16_f32 v{vV+4*(j-8)+2*t+h}, v{r+2*h}, v{r+2*h+1}")
    for e in range(4): a(f"v_mov_b32 v{tmp+8+e}, 0x3f803f80")
    a(f"s_mul_i32 s55, s34, {REDW}"); a(f"s_add_u32 s55, s55, {RED}")
    a(f"v_add_u32 v{vB}, s55, v{vX}")
    a(f"v_lshrrev_b32 v{t1}, 4, v{L}")
    a(f"v_lshl_add_u32 v{t1}, v{t1}, 4, s55")
    for hl in range(2):
        for es in range(2):
            for ds in range(2):
                d = vKV + ((hl * 2 + es) * 2 + ds) * 4
                A_ = vK + 4 * (hl * 2 + ds); B_ = vV + 4 * (hl * 2 + es)
                a(f"v_mfma_f32_16x16x32_bf16 v[{d}:{d+3}], v[{A_}:{A_+3}], v[{B_}:{B_+3}], 0")
        for ds in range(2):
            d = vKV + 32 + (hl * 2 + ds) * 4
            A_ = vK + 4 * (hl * 2 + ds)
            a(f"v_mfma_f32_16x16x32_bf16 v[{d}:{d+3}], v[{A_}:{A_+3}], v[{tmp+8}:{tmp+11}], 0")
    a("s_nop 3")
    for n in range(8):
        a(f"ds_write_b128 v{vB}, v[{vKV+4*n}:{vKV+4*n+3}] offset:{n*1024}")
    for n in range(4):
        a(f"ds_write_b128 v{t1}, v[{vKV+32+4*n}:{vKV+32+4*n+3}] offset:{8192+n*64}")
    a(f"v_add_u32 v{vB}, {RED}, v{vA}")
    a("s_lshl_b32 s56, s38, 13"); a(f"s_add_u32 s56, s56, {kv_off}"); a("s_add_u32 s57, s56, 4096")
    a("s_lshl_b32 s58, s38, 8"); a(f"s_add_u32 s58, s58, {kv_off + KVZ}")
    a("s_waitcnt lgkmcnt(0)")
    a("s_barrier")
    for i in range(8):
        for w in range(2):
            a(f"ds_read2st64_b32 v[{vKV+4*i+2*w}:{vKV+4*i+2*w+1}], v{vB} offset0:{i*4+66*w} offset1:{i*4+66*w+33}")
    for w in range(2):
        a(f"ds_read2st64_b32 v[{vKV+32+2*w}:{vKV+33+2*w}], v{vB} offset0:{32+66*w} offset1:{32+66*w+33}")
    for i in range(8):
        r = vKV + 4 * i
        a(f"s_waitcnt lgkmcnt({min(15, 16 - 2*i)})")
        a(f"v_pk_add_f32 v[{r}:{r+1}], v[{r}:{r+1}], v[{r+2}:{r+3}]")
        a(f"v_add_f32 v{r}, v{r}, v{r+1}")
        a(f"buffer_atomic_add_f32 v{r}, v{vA}, s[44:47], s{56 + i // 4} offen offset:{(i%4)*1024}")
    a("s_cmp_lg_u32 s34, 0")
    a(f"s_cbranch_scc1 Q_{name}")
    r = vKV + 32
    a("s_waitcnt lgkmcnt(0)")
    a(f"v_pk_add_f32 v[{r}:{r+1}], v[{r}:{r+1}], v[{r+2}:{r+3}]")
    a(f"v_add_f32 v{r}, v{r}, v{r+1}")
    a(f"buffer_atomic_add_f32 v{r}, v{vA}, s[44:47], s58 offen")
    a.label(f"Q_{name}")
    a("s_lshl_b32 s56, s42, 15"); a("s_lshl_b32 s57, s38, 11"); a("s_add_u32 s56, s56, s57"); a(f"s_add_u32 s56, s56, {PQ}")
    a("s_add_u32 s57, s56, 32768")
    for t in range(RT):
        for hl in range(2):
            dst = vK + 4 * (t * 2 + hl)
            for h in range(2):
                for x in phi4(c.accr(2 * hl + h, t), dst + 2 * h, vSt + 8 * t + 4, vSt + 8 * t, True, tmp + 4 * h): a(x)
            a(f"buffer_store_dwordx4 v[{dst}:{dst+3}], v{vX}, s[44:47], s{56+t} offen offset:{hl*1024}")
    if st:
        stamp(a, 3); a("s_waitcnt vmcnt(0)"); stamp(a, 4)
        stamp_store(a, 5, tmp, 44, 34)
        barstamp_store(a, 84, 9, tmp, 44)
    a.label(f"E_{name}")
    a("s_endpgm")
    return kernel_wrap(name, a.text(), vgpr=256, agpr=c.agpr_end, sgpr=102), LDS

if __name__ == "__main__":
    def emit(fn, **kw):
        k, lds = gen_k1("k1_kernel", XF0, ST0, KV0, **kw)
        open(fn, "w").write(file_wrap([("k1_kernel", (256,1,1), (256,1,1), lds)], [k]))
    emit("k1_a_st.s", st=True, gh=3, npro=4, rdmargin=6)
```

```python
from common import *
from k4 import plane_dma_lane, plane_read_bases, tile_map_16x16, epi_setup

def gen_k2(name, xin_off, xout_off, stout_off, kv_off, st=False):
    a = A()
    RT = 2; NS = 16
    STAGE = 12288; KVO = 8192; ZO = 4 * STAGE
    LDS = ZO + 2048
    accr = lambda j, t: (j * RT + t) * 4
    vX = 32; vD = 33; ones = 35; vWr = 36; L = 40; t0, t1, t2 = 41, 42, 43
    vRow, vStat, vS, vOut = 44, 45, 46, 47
    vKVw = 48; vZr = 49; vZ0 = 50
    vO = 52
    vN = 84
    vG = 132
    vXo = 156
    tmp = 172
    NV = 184
    aPQ = 0
    aW = 64
    aKV = 128
    NA = 176
    a("s_cmp_ge_u32 s2, 256")
    a(f"s_cbranch_scc1 E_{name}")
    if st: stamp(a, 0)
    a("s_load_dwordx2 s[28:29], s[0:1], 16")
    a("s_load_dwordx2 s[32:33], s[0:1], 72")
    a(f"v_lshrrev_b32 v{t0}, 6, v0")
    a(f"v_and_b32 v{L}, 63, v0")
    a(f"v_readfirstlane_b32 s34, v{t0}")
    a(f"v_lshlrev_b32 v{vZ0}, 4, v0")
    tile_map_16x16(a)
    a(f"v_lshlrev_b32 v{vX}, 4, v{L}")
    plane_dma_lane(a, L, 2048, vD, t0, t1, t2)
    a("s_lshl_b32 s40, s34, 15"); a("s_lshl_b32 s41, s38, 7"); a("s_add_u32 s40, s40, s41")
    a(f"v_add_u32 v{vD}, s40, v{vD}")
    a(f"v_add_u32 v{vD+1}, {8*2048-1024}, v{vD}")
    a("s_lshl_b32 s26, s34, 11")
    a("s_lshl_b32 s42, s37, 3"); a("s_lshl_b32 s43, s34, 1"); a("s_add_u32 s42, s42, s43")
    a("s_lshl_b32 s20, s42, 15"); a(f"s_add_u32 s20, s20, {PQ}"); a("s_add_u32 s21, s20, 32768")
    a("s_lshl_b32 s22, s34, 11"); a(f"s_add_u32 s22, s22, {kv_off}")
    a(f"s_mov_b32 s23, {kv_off + KVZ}")
    a("s_mov_b32 s24, 0")
    a("s_waitcnt lgkmcnt(0)")
    srd(a, 44, "s32", "s33", WS_USED)
    srd(a, 4, "s28", "s29", 1024 * 2048)
    q = Seq(a)
    def ld_kv(m):
        r = vG + (m % 3) * 8
        o = []
        for ds in range(2):
            pre = [(f"s_add_u32 s22, s22, 8192", {})] if (ds == 0 and m > 0) else []
            o.append(pre + [(f"buffer_load_dwordx4 v[{r+4*ds}:{r+4*ds+3}], v{vX}, s[44:47], s22 offen offset:{ds*1024}", dict(vm=("kv", m, ds)))])
        return o
    def ld_pq(m):
        o = []
        for t in range(2):
            for h in range(2):
                r = aPQ + (m % 4) * 16 + (h * 2 + t) * 4
                pre = [(f"s_add_u32 s{20+t}, s{20+t}, 2048", {})] if (h == 0 and m > 0) else []
                o.append(pre + [(f"buffer_load_dwordx4 a[{r}:{r+3}], v{vX}, s[44:47], s{20+t} offen offset:{h*1024}", dict(vm=("pq", m, t, h)))])
        return o
    def ld_w(m):
        pre = [(f"s_add_u32 m0, s26, {(m%4)*STAGE}", {}), ((f"s_add_u32 s24, s24, {64*2048}" if m > 0 else "s_nop 0"), {})]
        return [pre + [(f"buffer_load_dwordx4 v{vD}, s[4:7], s24 offen lds", dict(vm=("w", m, 0)))],
                [(f"buffer_load_dwordx4 v{vD+1}, s[4:7], s24 offen offset:1024 lds", dict(vm=("w", m, 1)))]]
    def st_kv(m):
        r = vG + (m % 3) * 8
        o = []
        for p in range(4):
            o.append([(f"v_cvt_pk_bf16_f32 v{r+p}, v{r+2*p}, v{r+2*p+1}", dict(needvm=[("kv", m, 0), ("kv", m, 1)]))])
        o.append([(f"ds_write_b128 v{vKVw}, v[{r}:{r+3}] offset:{(m%4)*STAGE}", dict(lds=("kvw", m)))])
        return o
    def rd_kv(m):
        o = []
        for h in range(2):
            b = aKV + (m % 2) * 24 + h * 12
            for es in range(2):
                o.append([(f"ds_read_b128 a[{b+4*es}:{b+4*es+3}], v{vX} offset:{(m%4)*STAGE + KVO + (h*2+es)*1024}", dict(lds=("kvr", m, h, es)))])
            o.append([(f"ds_read_b128 a[{b+8}:{b+11}], v{vZr} offset:{(2*m+h)*64}", dict(lds=("kvr", m, h, 2)))])
        return o
    def rd_w(m):
        o = []
        for j in range(4):
            for s in range(2):
                for qq in range(2):
                    r = aW + (m % 2) * 32 + j * 8 + s * 4 + qq * 2
                    o.append([(f"ds_read_b64_tr_b16 a[{r}:{r+1}], v{vWr+j} offset:{(m%4)*STAGE + (32*s+16*qq)*128}", dict(lds=("wr", m, j, s, qq)))])
        return o
    def mf_a(m):
        o = []
        for h in range(2):
            for t in range(2):
                b = aKV + (m % 2) * 24 + h * 12
                p = aPQ + (m % 4) * 16 + (h * 2 + t) * 4
                for k in (2, 0, 1):
                    d = vN + (h * 2 + t) * 12 + 4 * k
                    o.append([(f"v_mfma_f32_16x16x32_bf16 v[{d}:{d+3}], a[{b+4*k}:{b+4*k+3}], a[{p}:{p+3}], 0",
                               dict(needvm=[("pq", m, t, h)], needlds=[("kvr", m, h, k)]))])
        return o
    def va_o(m):
        o = []
        for h in range(2):
            for t in range(2):
                n = vN + (h * 2 + t) * 12
                d = vO + (m % 2) * 16 + (h * 2 + t) * 4
                l = [f"v_add_f32 v{n+8}, 0x358637bd, v{n+8}", f"v_rcp_f32 v{n+8}, v{n+8}", "s_nop 0"]
                for p in range(4):
                    l.append(f"v_pk_mul_f32 v[{n+2*p}:{n+2*p+1}], v[{n+2*p}:{n+2*p+1}], v[{n+8}:{n+9}] op_sel_hi:[1,0]")
                for p in range(4):
                    l.append(f"v_cvt_pk_bf16_f32 v{d+p}, v{n+2*p}, v{n+2*p+1}")
                o += [[(x, {})] for x in l]
        return o
    def mf_m(m):
        o = []
        for j in range(4):
            for t in ((0, 1) if j % 2 == 0 else (1, 0)):
                for s in range(2):
                    w = aW + (m % 2) * 32 + j * 8 + s * 4
                    x = vO + (m % 2) * 16 + (s * 2 + t) * 4
                    r = accr(j, t)
                    cc = "0" if (m == 0 and s == 0) else f"v[{r}:{r+3}]"
                    o.append([(f"v_mfma_f32_16x16x32_bf16 v[{r}:{r+3}], a[{w}:{w+3}], v[{x}:{x+3}], {cc}",
                               dict(needlds=[("wr", m, j, s, 0), ("wr", m, j, s, 1)]))])
        return o
    def run(groups):
        for gset in groups:
            for txt, kw in gset: q(txt, **kw)
    ok = lambda m: 0 <= m < NS
    q(f"buffer_load_dwordx4 v[{tmp}:{tmp+3}], v{vZ0}, s[44:47], s23 offen", vm="z")
    run(ld_kv(0)); run(ld_kv(1))
    plane_read_bases(a, L, vWr, t0, t1, t2)
    a("s_lshl_b32 s40, s34, 10"); a(f"s_add_u32 s40, s40, {KVO}")
    a(f"v_add_u32 v{vKVw}, s40, v{vX}")
    a(f"v_lshrrev_b32 v{t1}, 4, v{L}")
    a(f"v_lshlrev_b32 v{vZr}, 4, v{t1}")
    a(f"v_add_u32 v{vZr}, {ZO}, v{vZr}")
    a(f"v_lshrrev_b32 v{t0}, 3, v0"); a(f"v_lshlrev_b32 v{t0}, 6, v{t0}")
    a(f"v_and_b32 v{t1}, 3, v0"); a(f"v_lshl_add_u32 v{t0}, v{t1}, 4, v{t0}")
    a(f"v_bfe_u32 v{t1}, v0, 2, 1"); a(f"v_lshl_add_u32 v{vZ0+1}, v{t1}, 3, v{t0}")
    for n in range(-3, NS):
        if n >= -2:
            need = [("w", n + 1, d) for d in range(2)] if ok(n + 1) else []
            q.wait(needvm=need, alllds=True)
            if n + 1 < NS: a("s_barrier")
        loads = []
        if ok(n + 3): loads += ld_pq(n + 3)[:2] + ld_w(n + 3)[:1]
        if ok(n + 5): loads += ld_kv(n + 5)[:1]
        if ok(n + 3): loads += ld_pq(n + 3)[2:] + ld_w(n + 3)[1:]
        if ok(n + 5): loads += ld_kv(n + 5)[1:]
        if n == NS - 4:
            for t in range(2):
                for b in range(2):
                    loads.append([(f"buffer_load_dwordx4 v[{vXo+8*t+4*b}:{vXo+8*t+4*b+3}], v{vX}, s[44:47], s{48+t} offen offset:{b*1024}", dict(vm=("xo", t, b)))])
        reads = (rd_kv(n + 2) if ok(n + 2) else []) + (rd_w(n + 1) if ok(n + 1) else [])
        stg = st_kv(n + 3) if ok(n + 3) else []
        A_ = mf_a(n + 1) if ok(n + 1) else []
        M_ = mf_m(n) if ok(n) else []
        V_ = va_o(n + 1) if ok(n + 1) else []
        if n == -3:
            run(loads)
            epi_setup(a, L, t0, t1, vRow, vStat, vS, vOut, ones, xin_off, xout_off, 0, stout_off, False)
            q(f"v_cvt_pk_bf16_f32 v{tmp}, v{tmp}, v{tmp+1}", needvm=["z"])
            q(f"v_cvt_pk_bf16_f32 v{tmp+1}, v{tmp+2}, v{tmp+3}")
            q(f"ds_write_b64 v{vZ0+1}, v[{tmp}:{tmp+1}] offset:{ZO}", lds="zw")
            run(stg)
            if st: stamp(a, 1); a("s_waitcnt lgkmcnt(0)")
            continue
        half = len(loads) // 2
        if A_:
            run(merge(A_, interleave([reads, loads[:half]]) if reads or loads else []))
        else:
            run(reads + loads[:half])
        if M_:
            run(merge(M_, V_ + loads[half:] + stg))
        else:
            if A_: a("s_nop 7")
            run(loads[half:] + V_ + stg)
        if V_ and not (loads[half:] or stg): a("s_nop 1")
    if st: stamp(a, 2)
    a("s_waitcnt vmcnt(0)")
    a("s_nop 7")
    resid_epilogue(a, accr, RT, lambda t, b: vXo + 8 * t + 4 * b, None, tmp, vX, vRow, 44,
                   lambda t: 50 + t, 52, vStat, False, ones=ones)
    if st:
        stamp(a, 3); a("s_waitcnt vmcnt(0)"); stamp(a, 4)
        stamp_store(a, 5, tmp, 44, 34)
    a.label(f"E_{name}")
    a("s_endpgm")
    return kernel_wrap(name, a.text(), vgpr=NV, agpr=NA, sgpr=102), LDS

if __name__ == "__main__":
    k, lds = gen_k2("k2_kernel", XF0, XF1, ST1, KV0, st=True)
    open("k2_a_st.s", "w").write(file_wrap([("k2_kernel", (256,1,1), (256,1,1), lds)], [k]))
```

```python
from common import *
from core import Core
from k1 import pk_bc

def gen_k3(name, xf_off, st_off, R=4, st=False, **kw):
    a = A()
    RT = 4; NT = 14
    STAGE = 28928; UPOFF = 14464
    AUX = 4 * STAGE
    LDS = AUX + 4096
    vX = 224; vD = 225; vWr = 232
    L = 234; t0, t1, t2 = 235, 236, 237
    vS = 238; vC = 239
    vSum = 240
    def wread(stage, s, j, q):
        return vWr + stage // 2, (stage % 2) * STAGE + (j % 2) * UPOFF + (32 * s + 16 * q) * 224 + 32 * (j // 2)
    c = Core(a, name, RT, NT, 16, 7, STAGE, 64 * 7168, R, wread, vX=vX, vD=vD, init_acc=True, barstamp=(84 if st else None), **kw)
    a("s_cmp_ge_u32 s2, 256")
    a(f"s_cbranch_scc1 E_{name}")
    if st: stamp(a, 0)
    a("s_load_dwordx4 s[28:31], s[0:1], 32")
    a("s_load_dwordx2 s[32:33], s[0:1], 72")
    a(f"v_lshrrev_b32 v{t0}, 6, v0")
    a(f"v_and_b32 v{L}, 63, v0")
    a(f"v_readfirstlane_b32 s34, v{t0}")
    a("s_and_b32 s35, s2, 7")
    a("s_lshr_b32 s36, s2, 3")
    a("s_lshr_b32 s37, s35, 2"); a("s_lshl_b32 s37, s37, 2"); a("s_lshr_b32 s38, s36, 3"); a("s_add_u32 s37, s37, s38")
    a("s_and_b32 s38, s35, 3"); a("s_lshl_b32 s38, s38, 3"); a("s_and_b32 s39, s36, 7"); a("s_add_u32 s38, s38, s39")
    a("s_and_b32 s53, s38, 1")
    a(f"s_lshl_b32 s42, s37, 4")
    a(f"s_lshl_b32 s43, s34, 2")
    a("s_add_u32 s42, s42, s43")
    a(f"v_and_b32 v{t0}, 15, v{L}")
    a(f"v_lshrrev_b32 v{t1}, 4, v{L}")
    a(f"v_lshlrev_b32 v{vS}, 6, v{t0}")
    a(f"v_lshl_add_u32 v{vS}, v{t1}, 4, v{vS}")
    a(f"v_lshrrev_b32 v{t0}, 3, v{L}")
    a(f"v_add_u32 v{t0}, s53, v{t0}")
    a(f"v_subrev_u32 v{t2}, 7, v{t0}")
    a(f"v_min_u32 v{t0}, v{t0}, v{t2}")
    a(f"v_lshlrev_b32 v{t0}, 6, v{t0}")
    a(f"v_and_b32 v{t2}, 3, v{L}")
    a(f"v_lshl_add_u32 v{t0}, v{t2}, 4, v{t0}")
    a(f"v_bfe_u32 v{t2}, v{L}, 2, 1")
    a(f"v_mul_u32_u24 v{t2}, 14336, v{t2}")
    a(f"v_add_u32 v{vC}, v{t0}, v{t2}")
    a(f"s_lshl_b32 s48, s42, 10")
    a(f"s_add_u32 s48, s48, {st_off}")
    a(f"s_mul_i32 s49, s38, 448")
    a(f"s_add_u32 s49, s49, {CSF + 3072*4}")
    a("s_lshl_b32 s62, s34, 10"); a(f"s_add_u32 s62, s62, {AUX}")
    a("s_mov_b32 m0, s62")
    a(f"v_lshlrev_b32 v{vX}, 4, v{L}")
    a("s_and_b32 s39, s34, 1")
    a("s_mul_i32 s40, s39, 229376")
    a("s_mul_i32 s41, s38, 224")
    a("s_add_u32 s40, s40, s41")
    a("s_movk_i32 s41, 7168")
    a("s_lshl_b32 s54, s53, 1")
    a("s_waitcnt lgkmcnt(0)")
    srd(a, 44, "s32", "s33", WS_USED)
    for t in range(RT):
        a(f"buffer_load_dwordx4 v[{vSum+4*t}:{vSum+4*t+3}], v{vS}, s[44:47], s48 offen offset:{t*1024}")
    a(f"buffer_load_dwordx4 v{vC}, s[44:47], s49 offen lds")
    a(f"v_lshl_add_u32 v{vC}, v{t1}, 4, s62")
    for d in range(7):
        a(f"v_add_u32 v{t0}, {64*d}, v{L}")
        a(f"v_mul_u32_u24 v{t1}, 4682, v{t0}")
        a(f"v_lshrrev_b32 v{t1}, 16, v{t1}")
        a(f"v_mul_u32_u24 v{t2}, 14, v{t1}")
        a(f"v_sub_u32 v{t0}, v{t0}, v{t2}")
        a(f"v_add_u32 v{t0}, s54, v{t0}")
        a(f"v_subrev_u32 v{t2}, 14, v{t0}")
        a(f"v_min_u32 v{t0}, v{t0}, v{t2}")
        a(f"v_lshlrev_b32 v{t0}, 4, v{t0}")
        a(f"v_mad_u32_u24 v{t0}, v{t1}, s41, v{t0}")
        a(f"v_add_u32 v{t0}, s40, v{t0}")
        a(f"v_subrev_u32 v{vD+d}, {1024*(d%4)}, v{t0}")
    a("s_lshr_b32 s41, s34, 1")
    a(f"s_mul_i32 s{c.sM0}, s39, 7168")
    a(f"s_mul_i32 s43, s41, {UPOFF}")
    a(f"s_add_u32 s{c.sM0}, s{c.sM0}, s43")
    rbB = 32768
    a(f"s_lshl_b32 s43, s42, 15")
    a(f"s_mov_b32 s{c.sWoff}, 0"); a(f"s_mov_b32 s{c.sXoff}, 0")
    a("s_cmp_eq_u32 s41, 0")
    a(f"s_cselect_b32 s{c.sW}, s28, s30"); a(f"s_cselect_b32 s{c.sW+1}, s29, s31")
    a(f"s_mov_b32 s{c.sW+2}, {1024*7168}"); a(f"s_mov_b32 s{c.sW+3}, 0x20000")
    for t in range(RT):
        s = c.sX + 4 * t
        a(f"s_add_u32 s{s}, s32, s43"); a(f"s_addc_u32 s{s+1}, s33, 0")
        a(f"s_add_u32 s{s}, s{s}, {xf_off + t*rbB}"); a(f"s_addc_u32 s{s+1}, s{s+1}, 0")
        a(f"s_mov_b32 s{s+2}, {rbB}"); a(f"s_mov_b32 s{s+3}, 0x20000")
    def hook(nvm):
        a(f"s_waitcnt vmcnt({nvm})")
        for j in range(NT):
            r = c.accr(j, 0)
            a(f"ds_read_b128 v[{r}:{r+3}], v{vC} offset:{j*64}")
        ls = []
        for t in range(RT):
            r = Rec(); row_stats(r, vSum + 4 * t, None, want_rstd=False); ls.append(r.l)
        for x in interleave(ls):
            if not x.startswith("s_nop"): a(x)
        a(f"v_and_b32 v{t0}, 3, v{L}")
        a(f"v_lshlrev_b32 v{t0}, 3, v{t0}")
        a(f"v_lshrrev_b32 v{t1}, 2, v{L}")
        a(f"v_mul_u32_u24 v{t1}, 224, v{t1}")
        a(f"v_add_u32 v{vWr}, v{t0}, v{t1}")
        a(f"v_add_u32 v{vWr+1}, {2*STAGE}, v{vWr}")
        a("s_waitcnt lgkmcnt(0)")
        for j in range(NT):
            for t in (3, 2, 1, 0):
                for h in range(2):
                    a(pk_bc(c.accr(j, t) + 2 * h, c.accr(j, 0) + 2 * h, vSum + 4 * t))
        a(f"s_mul_i32 s50, s42, {112*1024}")
        a(f"s_add_u32 s50, s50, {HF}")
        a(f"s_mul_i32 s55, s38, 7")
        a("s_add_u32 s51, s55, s53"); a("s_lshr_b32 s51, s51, 1"); a("s_lshl_b32 s51, s51, 10")
        a("s_add_u32 s51, s51, s50")
        a("s_lshr_b32 s52, s55, 1"); a("s_lshl_b32 s52, s52, 10"); a("s_add_u32 s52, s52, s50")
        a("s_cmp_eq_u32 s53, 0")
        a("s_cselect_b32 s55, 3072, 8")
        a("s_add_u32 s52, s52, s55")
        for t in range(1, RT):
            a(f"s_add_u32 s{54+2*t}, s51, {t*112*1024}"); a(f"s_add_u32 s{55+2*t}, s52, {t*112*1024}")
        if st: stamp(a, 1); a("s_waitcnt lgkmcnt(0)")
    sP = lambda t: 51 if t == 0 else 54 + 2 * t
    sS = lambda t: 52 if t == 0 else 55 + 2 * t
    def piece(p, t):
        r = Rec()
        js = (2 * p, 2 * p + 1) if p < 3 else (6,)
        dst = c.accr(2 * js[0], t)
        for jj in js:
            rg = c.accr(2 * jj, t); ru = c.accr(2 * jj + 1, t)
            for h in range(2):
                r(f"v_pk_mul_f32 v[{ru+2*h}:{ru+2*h+1}], v[{rg+2*h}:{rg+2*h+1}], v[{ru+2*h}:{ru+2*h+1}]")
        for n, jj in enumerate(js):
            ru = c.accr(2 * jj + 1, t)
            for h in range(2):
                r(f"v_cvt_pk_bf16_f32 v{dst+2*n+h}, v{ru+2*h}, v{ru+2*h+1}")
        if p < 3: s_ = f"buffer_store_dwordx4 v[{dst}:{dst+3}], v{vX}, s[44:47], s{sP(t)} offen offset:{p*1024}"
        else: s_ = f"buffer_store_dwordx2 v[{dst}:{dst+1}], v{vX}, s[44:47], s{sS(t)} offen"
        return r.l, s_
    after = []
    for p in range(3):
        m = (4 * p + 4) * 8 + 2
        per = 1 if p < 2 else 2
        for t in (3, 2, 1, 0):
            ins, s_ = piece(p, t)
            if per == 1: ins = [ins[0:2], ins[2:3], ins[3:4], ins[4:6], ins[6:7], ins[7:8]]
            else: ins = [ins[2*i:2*i+2] for i in range(4)]
            if m + len(ins) + 1 <= c.M:
                for grp in ins:
                    c.extra(-1, m, grp); m += 1
                c.extra(-1, m, s_, cost=2, vm=("st", p, t)); m += 1
            else:
                for grp in ins: after += grp
                after.append(s_)
    c.emit(hook)
    if st: stamp(a, 2)
    for x in after: a(x)
    if len(after) < 8: a("s_nop 7")
    for t in (3, 2, 1, 0):
        ins, s_ = piece(3, t)
        for x in ins: a(x)
        a(s_)
    if st:
        stamp(a, 3); a("s_waitcnt vmcnt(0)"); stamp(a, 4)
        stamp_store(a, 5, 240, 44, 34)
        barstamp_store(a, 84, 9, 240, 44)
    a.label(f"E_{name}")
    a("s_endpgm")
    return kernel_wrap(name, a.text(), vgpr=256, agpr=c.agpr_end, sgpr=102), LDS

if __name__ == "__main__":
    def emit(fn, **kw):
        k, lds = gen_k3("k3_kernel", xf_off=XF1, st_off=ST1, **kw)
        open(fn, "w").write(file_wrap([("k3_kernel", (256,1,1), (256,1,1), lds)], [k]))
    emit("k3_a_st.s", st=True)
```

```python
from common import *
from core import Core

def plane_dma_lane(a, L, pitch, dst, t0, t1, t2):
    a(f"v_lshrrev_b32 v{t0}, 3, v{L}")
    a(f"v_bfe_u32 v{t1}, v{L}, 4, 2")
    a(f"v_lshlrev_b32 v{t1}, 1, v{t1}")
    a(f"v_and_b32 v{t2}, 7, v{L}")
    a(f"v_xor_b32 v{t1}, v{t1}, v{t2}")
    a(f"v_lshlrev_b32 v{t1}, 4, v{t1}")
    a(f"v_mul_u32_u24 v{t0}, {pitch}, v{t0}")
    a(f"v_add_u32 v{dst}, v{t0}, v{t1}")

def plane_read_bases(a, L, vWr, t0, t1, t2):
    a(f"v_lshrrev_b32 v{t0}, 2, v{L}")
    a(f"v_lshlrev_b32 v{t0}, 7, v{t0}")
    a(f"v_and_b32 v{t1}, 3, v{L}")
    a(f"v_lshl_add_u32 v{t0}, v{t1}, 3, v{t0}")
    a(f"v_bfe_u32 v{t1}, v{L}, 3, 2")
    for aa in range(4):
        a(f"v_xor_b32 v{t2}, {aa}, v{t1}")
        a(f"v_lshl_add_u32 v{vWr+aa}, v{t2}, 5, v{t0}")

def tile_map_16x16(a):
    a("s_and_b32 s35, s2, 7"); a("s_lshr_b32 s36, s2, 3")
    a("s_lshr_b32 s37, s35, 1"); a("s_lshl_b32 s37, s37, 2"); a("s_lshr_b32 s38, s36, 3"); a("s_add_u32 s37, s37, s38")
    a("s_and_b32 s38, s35, 1"); a("s_lshl_b32 s38, s38, 3"); a("s_and_b32 s39, s36, 7"); a("s_add_u32 s38, s38, s39")

def epi_setup(a, L, t0, t1, vRow, vStat, vS, vOut, ones, xin_off, xout_off, stin_off, stout_off, final):
    a(f"v_and_b32 v{vRow}, 31, v{L}")
    a(f"v_and_b32 v{t0}, 15, v{L}")
    a(f"v_lshrrev_b32 v{t1}, 4, v{L}")
    a(f"v_lshlrev_b32 v{vS}, 6, v{t0}")
    a(f"v_lshl_add_u32 v{vS}, v{t1}, 4, v{vS}")
    a(f"v_lshrrev_b32 v{vStat}, 5, v{L}")
    a(f"v_lshl_add_u32 v{vStat}, v{vStat}, 4, v{t0}")
    a(f"v_lshlrev_b32 v{vStat}, 6, v{vStat}")
    a(f"v_and_b32 v{ones}, 1, v{t1}")
    a(f"v_lshl_add_u32 v{vStat}, v{ones}, 17, v{vStat}")
    if final:
        a(f"v_lshlrev_b32 v{vOut}, 11, v{t0}")
        a(f"v_lshl_add_u32 v{vOut}, v{ones}, 5, v{vOut}")
        a(f"v_lshrrev_b32 v{t1}, 1, v{t1}")
        a(f"v_lshl_add_u32 v{vOut}, v{t1}, 4, v{vOut}")
    a(f"v_mov_b32 v{ones}, 0x3f803f80")
    a("s_lshl_b32 s54, s42, 15")
    a("s_lshl_b32 s55, s38, 11")
    a("s_add_u32 s54, s54, s55")
    a(f"s_add_u32 s48, s54, {xin_off}"); a("s_add_u32 s49, s48, 32768")
    if final:
        a("s_lshl_b32 s50, s42, 15"); a("s_lshl_b32 s55, s38, 7"); a("s_add_u32 s50, s50, s55"); a("s_add_u32 s51, s50, 32768")
    else:
        a(f"s_add_u32 s50, s54, {xout_off}"); a("s_add_u32 s51, s50, 32768")
    a("s_lshl_b32 s54, s42, 10")
    a("s_lshl_b32 s55, s38, 2")
    a("s_add_u32 s52, s54, s55"); a(f"s_add_u32 s52, s52, {stout_off}")
    a(f"s_add_u32 s53, s54, {stin_off}")

def gen_k4(name, xin_off, xout_off, stin_off, stout_off, final, R=4, st=False, UN=4, **kw):
    a = A()
    RT = 2; NT = 4
    STAGE = 8192
    vX = 32; vD = 33; vWr = 36; L = 40; t0, t1, t2 = 41, 42, 43
    vRow, vStat, vS, vOut, ones = 44, 45, 46, 47, 35
    vSt = 48
    vXo = 64
    tmp = 80
    def wread(stage, s, j, q):
        return vWr + j, stage * STAGE + (32 * s + 16 * q) * 128
    c = Core(a, name, RT, NT, 56, 2, STAGE, 64 * 2048, R, wread, vX=vX, vD=vD, UN=UN, barstamp=(84 if st else None), **kw)
    a("s_cmp_ge_u32 s2, 256")
    a(f"s_cbranch_scc1 E_{name}")
    if st: stamp(a, 0)
    a("s_load_dwordx4 s[28:31], s[0:1], 48")
    a("s_load_dwordx2 s[32:33], s[0:1], 72")
    a(f"v_lshrrev_b32 v{t0}, 6, v0")
    a(f"v_and_b32 v{L}, 63, v0")
    a(f"v_readfirstlane_b32 s34, v{t0}")
    tile_map_16x16(a)
    a(f"v_lshlrev_b32 v{vX}, 4, v{L}")
    plane_dma_lane(a, L, 2048, vD, t0, t1, t2)
    a("s_lshl_b32 s40, s34, 15")
    a("s_lshl_b32 s41, s38, 7")
    a("s_add_u32 s40, s40, s41")
    a(f"v_add_u32 v{vD}, s40, v{vD}")
    a(f"v_add_u32 v{vD+1}, {8*2048-1024}, v{vD}")
    a(f"s_lshl_b32 s{c.sM0}, s34, 11")
    rbB = 3584 * 16 * 2
    a("s_lshl_b32 s42, s37, 3"); a("s_lshl_b32 s43, s34, 1"); a("s_add_u32 s42, s42, s43")
    a(f"s_mul_i32 s43, s42, {rbB}")
    a(f"s_mov_b32 s{c.sWoff}, 0"); a(f"s_mov_b32 s{c.sXoff}, 0")
    a("s_waitcnt lgkmcnt(0)")
    srd(a, c.sW, "s28", "s29", 3584 * 2048)
    for t in range(RT):
        s = c.sX + 4 * t
        a(f"s_add_u32 s{s}, s32, s43"); a(f"s_addc_u32 s{s+1}, s33, 0")
        a(f"s_add_u32 s{s}, s{s}, {HF + t*rbB}"); a(f"s_addc_u32 s{s+1}, s{s+1}, 0")
        a(f"s_mov_b32 s{s+2}, {rbB}"); a(f"s_mov_b32 s{s+3}, 0x20000")
    def hook(nvm):
        plane_read_bases(a, L, vWr, t0, t1, t2)
        srd(a, 44, "s32", "s33", WS_USED)
        if final: srd(a, 56, "s30", "s31", 2048 * 2048)
        epi_setup(a, L, t0, t1, vRow, vStat, vS, vOut, ones, xin_off, xout_off, stin_off, stout_off, final)
        a(f"s_add_u32 s55, s53, {SQOFF}")
        if st: stamp(a, 1); a("s_waitcnt lgkmcnt(0)")
    T = c.T
    n = 0
    for t in range(RT):
        for k in range(2):
            c.extra(-3 + n // 2, 3 + 8 * (n % 2), f"buffer_load_dwordx4 v[{vSt+8*t+4*k}:{vSt+8*t+4*k+3}], v{vS}, s[44:47], s{53 if k == 0 else 55} offen offset:{t*1024}", cost=2, vm=("stt", t, k)); n += 1
    n = 0
    for t in range(RT):
        for b in range(2):
            c.extra(-3 + n // 2, 6 + 8 * (n % 2), f"buffer_load_dwordx4 v[{vXo+8*t+4*b}:{vXo+8*t+4*b+3}], v{vX}, s[44:47], s{48+t} offen offset:{b*1024}", cost=2, vm=("xo", t, b)); n += 1
    c.emit(hook)
    if st: stamp(a, 2)
    a("s_waitcnt vmcnt(0)")
    ls = []
    for t in range(RT):
        r = Rec(); row_stats(r, vSt + 8 * t, vSt + 8 * t + 4, want_mean=False)
        r(f"v_mul_f32 v{vSt+8*t+4}, v{vSt+8*t+4}, v{vSt+8*t+4}")
        ls.append(r.l)
    for x in interleave(ls): a(x)
    resid_epilogue(a, c.accr, RT, lambda t, b: vXo + 8 * t + 4 * b, lambda t: vSt + 8 * t + 4, tmp, vX, vRow, 44,
                   lambda t: 50 + t, 52, vStat, final, srd_out=56, s_out=lambda t: 50 + t, vOut=vOut, ones=ones)
    if st:
        stamp(a, 3); a("s_waitcnt vmcnt(0)"); stamp(a, 4)
        stamp_store(a, 5, tmp, 44, 34)
        barstamp_store(a, 84, 9, tmp, 44)
    a.label(f"E_{name}")
    a("s_endpgm")
    return kernel_wrap(name, a.text(), vgpr=92, agpr=c.agpr_end, sgpr=102), UN * STAGE

if __name__ == "__main__":
    def emit(fn, **kw):
        k, lds = gen_k4("k4_kernel", XF1, XF2, ST1, ST2, **kw)
        open(fn, "w").write(file_wrap([("k4_kernel", (256,1,1), (256,1,1), lds)], [k]))
    emit("k4_a_st.s", final=False, st=True, gh=1, cap=3, R=2, rdmargin=2, npro=6)
    emit("k4_f.s", final=True, gh=1, cap=3, R=2, rdmargin=2, npro=6)
```

```python
MB = 1 << 20
XF0 = 0
XF1 = 4 * MB
XF2 = 8 * MB
XF3 = 12 * MB
PQ = 16 * MB
HF = 20 * MB
ST0 = 36 * MB
ST1 = ST0 + 256 * 1024
ST2 = ST1 + 256 * 1024
ST3 = ST2 + 256 * 1024
SQOFF = 128 * 1024
CSF = 37 * MB
KV0 = 38 * MB
KVZ = 128 * 1024
KVSZ = 132 * 1024
KV1 = KV0 + KVSZ
WS_USED = 40 * MB
```

```python
import sys
from common import *
from k0 import gen_k0
from k1 import gen_k1
from k2 import gen_k2
from k3 import gen_k3
from k4 import gen_k4
HDR = open("interleave_layers__linear_attn_block__glu_gated_bilinear__prompt.s.ref").read().split("; Override launch")[0]
def build(fn, st=False, k1kw={}, k3kw={}, k4kw={}):
    ks = []; ls = []
    k, lds, n = gen_k0("k0_kernel"); ks.append(k); ls.append(("k0_kernel", (n,1,1), (256,1,1), lds))
    X = [XF0, XF1, XF2, XF3]; S = [ST0, ST1, ST2, ST3]; KV = [KV0, KV1]
    K1 = dict(gh=3, npro=4, rdmargin=6); K1.update(k1kw)
    K3 = dict(); K3.update(k3kw)
    K4 = dict(gh=1, cap=3, R=2, rdmargin=2, npro=6); K4.update(k4kw)
    for l in range(2):
        k, lds = gen_k1(f"k1_{l}_kernel", X[2*l], S[2*l], KV[l], st=st, **K1); ks.append(k); ls.append((f"k1_{l}_kernel", (256,1,1), (256,1,1), lds))
        k, lds = gen_k2(f"k2_{l}_kernel", X[2*l], X[2*l+1], S[2*l+1], KV[l], st=st); ks.append(k); ls.append((f"k2_{l}_kernel", (256,1,1), (256,1,1), lds))
        k, lds = gen_k3(f"k3_{l}_kernel", X[2*l+1], S[2*l+1], st=st, **K3); ks.append(k); ls.append((f"k3_{l}_kernel", (256,1,1), (256,1,1), lds))
        k, lds = gen_k4(f"k4_{l}_kernel", X[2*l+1], XF2, S[2*l+1], ST2, final=(l == 1), st=st, **K4); ks.append(k); ls.append((f"k4_{l}_kernel", (256,1,1), (256,1,1), lds))
    open(fn, "w").write(HDR + file_wrap(ls, ks))
if __name__ == "__main__":
    build("full.s")
    build("full_st.s", st=True)
```

```python
from g import *
from layout import *
def srd(a, s, lo, hi, nbytes):
    a(f"s_mov_b32 s{s}, {lo}"); a(f"s_mov_b32 s{s+1}, {hi}")
    a(f"s_mov_b32 s{s+2}, {nbytes}"); a(f"s_mov_b32 s{s+3}, 0x20000")
def stamp(a, n):
    a(f"s_memtime s[{64+4*n}:{65+4*n}]")
    a(f"s_memrealtime s[{66+4*n}:{67+4*n}]")
def stamp_store(a, n, vtmp, srd_, wave_s, nw_log2=2):
    a("s_waitcnt lgkmcnt(0)")
    a(f"s_lshl_b32 s60, s2, {nw_log2}"); a(f"s_add_u32 s60, s60, s{wave_s}"); a("s_lshl_b32 s60, s60, 7"); a(f"s_add_u32 s60, s60, {STAMP_OFF}")
    a(f"v_mov_b32 v{vtmp+4}, 0")
    for i in range(n):
        for k in range(4): a(f"v_mov_b32 v{vtmp+k}, s{64+4*i+k}")
        a(f"buffer_store_dwordx4 v[{vtmp}:{vtmp+3}], v{vtmp+4}, s[{srd_}:{srd_+3}], s60 offen offset:{16*i}")
        a("s_nop 1")
def xlane_sum4(a, r, tmp):
    a(f"v_mov_b32 v{tmp}, v{r}")
    a("s_nop 1")
    a(f"v_permlane32_swap_b32 v{r}, v{tmp}")
    a(f"v_add_f32 v{r}, v{r}, v{tmp}")
    a(f"v_mov_b32 v{tmp}, v{r}")
    a("s_nop 1")
    a(f"v_permlane16_swap_b32 v{r}, v{tmp}")
    a(f"v_add_f32 v{r}, v{r}, v{tmp}")

def barstamp_store(a, base, n, vtmp, srd_):
    a("s_add_u32 s60, s60, 0x40000")
    for i in range(n):
        a(f"v_mov_b32 v{vtmp}, s{base+2*i}")
        a(f"buffer_store_dword v{vtmp}, v{vtmp+4}, s[{srd_}:{srd_+3}], s60 offen offset:{4*i}")
        a("s_nop 1")

def spread(c, k, m0, instrs, per=2, step=1, **kw):
    m = m0; first = True
    for i in range(0, len(instrs), per):
        kk, mm = k, m
        while mm >= c.M: mm -= c.M; kk += 1
        assert kk < 0 or k >= 0
        c.extra(kk, mm, instrs[i:i+per], **(kw if first else {}))
        first = False
        m += step
    return m

class Rec(A):
    def __call__(self, s): self.l.append(s)

def bf16_round(a, r):
    a(f"v_cvt_pk_bf16_f32 v{r}, v{r}, v{r}")
    a(f"v_and_b32 v{r}, 0xffff0000, v{r}")

def row_stats(a, bs, bq, want_mean=True, want_rstd=True):
    a(f"v_add_f32 v{bs}, v{bs}, v{bs+1}"); a(f"v_add_f32 v{bs+2}, v{bs+2}, v{bs+3}"); a(f"v_add_f32 v{bs}, v{bs}, v{bs+2}")
    xlane_sum4(a, bs, bs + 1)
    a(f"v_mul_f32 v{bs}, 0xba800000, v{bs}")
    if want_rstd:
        a(f"v_add_f32 v{bq}, v{bq}, v{bq+1}"); a(f"v_add_f32 v{bq+2}, v{bq+2}, v{bq+3}"); a(f"v_add_f32 v{bq}, v{bq}, v{bq+2}")
        xlane_sum4(a, bq, bq + 1)
        a(f"v_mul_f32 v{bq}, 0x3a800000, v{bq}")
        a(f"v_fma_f32 v{bq}, -v{bs}, v{bs}, v{bq}")
        a(f"v_max_f32 v{bq}, 0, v{bq}")
        bf16_round(a, bq)
        a(f"v_add_f32 v{bq}, 0x3727c5ac, v{bq}")
        bf16_round(a, bq)
        a(f"v_sqrt_f32 v{bq}, v{bq}")
        a("s_nop 0")
        bf16_round(a, bq)
        a(f"v_rcp_f32 v{bq}, v{bq}")
        a("s_nop 0")
    if want_mean:
        bf16_round(a, bs)

def interleave(lists):
    out = []
    n = max(len(l) for l in lists)
    for i in range(n):
        for l in lists:
            if i < len(l): out.append(l[i])
    return out

def resid_epilogue(a, accr, RT, xold, scale, tmp, vX, vRow, srd_ws, s_xnew, s_stat, vStat, final, srd_out=None, s_out=None, vOut=None, ones=None):
    vs = [tmp + 8 + 2 * t for t in range(RT)]
    for t in range(RT):
        a(f"v_mov_b32 v{vs[t]}, 0"); a(f"v_mov_b32 v{vs[t]+1}, 0")
        for b in range(2):
            xo = xold(t, b)
            for h in range(2):
                r = accr(2 * b + h, t)
                for p in range(2):
                    a(f"v_lshlrev_b32 v{tmp+4*h+2*p}, 16, v{xo+2*h+p}")
                    a(f"v_and_b32 v{tmp+4*h+2*p+1}, 0xffff0000, v{xo+2*h+p}")
                for e in range(4):
                    if scale is None: a(f"v_add_f32 v{r+e}, v{r+e}, v{tmp+4*h+e}")
                    else: a(f"v_fma_f32 v{r+e}, v{r+e}, v{scale(t)}, v{tmp+4*h+e}")
            for h in range(2):
                r = accr(2 * b + h, t)
                for p in range(2):
                    a(f"v_cvt_pk_bf16_f32 v{xo+2*h+p}, v{r+2*p}, v{r+2*p+1}")
            if not final:
                a(f"buffer_store_dwordx4 v[{xo}:{xo+3}], v{vX}, s[{srd_ws}:{srd_ws+3}], s{s_xnew(t)} offen offset:{b*1024}")
                for p in range(4):
                    a(f"v_dot2_f32_bf16 v{vs[t]}, v{xo+p}, v{ones}, v{vs[t]}")
                for p in range(4):
                    a(f"v_dot2_f32_bf16 v{vs[t]+1}, v{xo+p}, v{xo+p}, v{vs[t]+1}")
            else:
                a("s_nop 1")
                a(f"v_permlane16_swap_b32 v{xo}, v{xo+2}")
                a(f"v_permlane16_swap_b32 v{xo+1}, v{xo+3}")
                a(f"buffer_store_dwordx4 v[{xo}:{xo+3}], v{vOut}, s[{srd_out}:{srd_out+3}], s{s_out(t)} offen offset:{b*64}")
    if not final:
        a("s_nop 2")
        ls = []
        for t in range(RT):
            for k in range(2):
                r = Rec(); xlane_sum4(r, vs[t] + k, tmp + 2 * t + k); ls.append(r.l)
        for x in interleave(ls): a(x)
        a(f"v_cmp_gt_u32 vcc, 16, v{vRow}")
        a("s_nop 1")
        a(f"v_cndmask_b32 v{tmp}, v{vs[0]+1}, v{vs[0]}, vcc")
        if RT == 2:
            a(f"v_cndmask_b32 v{tmp+1}, v{vs[1]+1}, v{vs[1]}, vcc")
            a(f"v_cmp_gt_u32 vcc, 512, v{vX}")
            a("s_nop 1")
            a(f"v_cndmask_b32 v{tmp}, v{tmp+1}, v{tmp}, vcc")
        a(f"buffer_store_dword v{tmp}, v{vStat}, s[{srd_ws}:{srd_ws+3}], s{s_stat} offen")

class Seq:
    def __init__(self, a):
        self.a = a; self.vm = {}; self.ld = {}; self.nv = 0; self.nl = 0; self.dv = 0; self.dl = 0
    def wait(self, needvm=(), needlds=(), alllds=False):
        w = []
        if needvm:
            i = max(self.vm[t] for t in needvm) + 1
            if i > self.dv:
                n = min(self.nv - i, 63); w.append(f"vmcnt({n})"); self.dv = self.nv - n
        if needlds or alllds:
            i = self.nl if alllds else max(self.ld[t] for t in needlds) + 1
            if i > self.dl:
                n = min(self.nl - i, 15); w.append(f"lgkmcnt({n})"); self.dl = self.nl - n
        if w: self.a("s_waitcnt " + " ".join(w))
    def __call__(self, txt, vm=None, lds=None, needvm=(), needlds=()):
        self.wait(needvm, needlds)
        self.a(txt)
        if vm is not None: self.vm[vm] = self.nv; self.nv += 1
        if lds is not None: self.ld[lds] = self.nl; self.nl += 1

def merge(main, fill, start=0, per=None):
    out = []
    n = len(main) - start
    k = 0
    for i, m in enumerate(main):
        out.append(m)
        if i >= start:
            tgt = (len(fill) * (i - start + 1) + n - 1) // n if per is None else min(len(fill), per * (i - start + 1))
            while k < tgt: out.append(fill[k]); k += 1
    out.extend(fill[k:])
    return out
```

```python
from g import *

class Core:
    def __init__(self, a, name, RT, NT, KSTEPS, R, vWr,
                 nontrans=(), UN=4, acc0=0, xa0=0, vX=None, vD=None,
                 bar_early=0, dma_span=0.9, xlead=None, gh=4, cap=2, npro=0, H=None, T=None, xstep=2048,
                 lgsafe=8, fine=2, accf=None, xf='a', wf='a', wa0=None, barstamp=None, rdmargin=9, skip='', init_acc=False, nwaves=4, ktab=None, m0_from=None):
        self.m0_from = m0_from; self._nk = 10**9
        self.ktab = ktab
        self.sXo = 4; self.sWo = 6; self.sXi = 8; self.sWi = 9
        self.init_acc = init_acc
        self.skip = skip
        self.rdmargin = rdmargin
        self.a = a; self.name = name
        self.RT = RT; self.NT = NT; self.KSTEPS = KSTEPS; self.ND = ND = NT * 2 // nwaves
        self.stage_bytes = stage_bytes = NT * 2048; self.wstep = stage_bytes; self.xstep = xstep
        self.R = R; self.vWr = vWr; self.SPG = 65536 // stage_bytes; self.NG = (UN + self.SPG - 1) // self.SPG; self.NDG = (ND + 3) // 4
        self.nontrans = set(nontrans)
        self.UN = UN
        self.acc0 = acc0; self.xa0 = xa0
        self.xslot = 2 * RT * 4
        self.wa0 = xa0 + UN * self.xslot if wa0 is None else wa0
        self.vX = vX; self.vD = vD
        self.bar_early = bar_early; self.dma_span = dma_span
        self.xlead = xlead if xlead is not None else UN - 1
        self.wlead = UN - 1
        self.gh = gh; self.cap = cap
        self.H = H if H is not None else UN
        self.T = T if T is not None else UN
        assert (KSTEPS - self.H - self.T) % UN == 0 and KSTEPS >= self.H + self.T
        assert self.T >= UN - 1 or self.T == 0
        assert (UN * NT) % R == 0
        self.agpr_end = self.wa0 + 8 * R
        self.M = NT * RT * 2
        self.npro = npro
        self.lgsafe = lgsafe; self.fine = fine
        self.accf = accf; self.xf = xf; self.wf = wf; self.barstamp = barstamp
        self.sW = 44; self.sWoff = 24; self.sXoff = 25; self.sM0 = 26; self.sCnt = 27
        self.mb = max((NT - R) * RT * 2 + RT * 2 - 1 - bar_early, 0)
        self.extras = []

    def extra(self, k, m, txt, cost=None, vm=None, needvm=(), lds=None, needlds=()):
        if isinstance(txt, str): txt = [txt]
        self.extras.append(dict(k=k, m=m, txt=txt, cost=len(txt) if cost is None else cost, vm=vm, needvm=tuple(needvm), lds=lds, needlds=tuple(needlds)))

    def accr(self, j, t): return self.acc0 + (j * self.RT + t) * 4
    def acc(self, j, t):
        if self.accf:
            f, r = self.accf(j, t); return f"{f}[{r}:{r+3}]"
        r = self.accr(j, t); return f"v[{r}:{r+3}]"
    def xreg(self, i, s, t):
        r = self.xa0 + (i % self.UN) * self.xslot + (t * 2 + s) * 4
        return f"{self.xf}[{r}:{r+3}]"
    def wreg(self, f, s, q=None):
        r = self.wa0 + (f % self.R) * 8 + 4 * s
        if q is None: return f"{self.wf}[{r}:{r+3}]"
        return f"{self.wf}[{r+2*q}:{r+2*q+1}]"

    def txt_vm(self, tag):
        kt = self.ktab
        if tag[0] == "x":
            _, i, t, s = tag
            txt = []
            so = self.sXo + i % 2 if kt else self.sXoff
            if t == 0 and s == 0 and i > 0 and not kt:
                txt.append(f"s_add_u32 s{self.sXoff}, s{self.sXoff}, {self.xstep}")
            txt.append(f"buffer_load_dwordx4 {self.xreg(i,s,t)}, v{self.vX + t}, s[{self.sW}:{self.sW+3}], s{so} offen offset:{s*1024}")
            if t == 0 and s == 0 and kt:
                txt.append(f"s_add_u32 s{self.sXi}, s{self.sXi}, 1")
                txt.append(f"v_readlane_b32 s{self.sXo + (i+1) % 2}, v{kt[0]}, s{self.sXi}")
            return txt
        _, i, d = tag
        txt = []
        so = self.sWo + i % 2 if kt else self.sWoff
        if d % 4 == 0 or (self.m0_from is not None and i >= self._nk - self.m0_from):
            txt.append(f"s_add_u32 m0, s{self.sM0}, {(i % self.UN) * self.stage_bytes + 4096 * (d // 4)}")
            if d == 0 and kt:
                txt.append(f"s_add_u32 s{self.sWi}, s{self.sWi}, 1")
            elif d == 0 and i > 0:
                txt.append(f"s_add_u32 s{self.sWoff}, s{self.sWoff}, {self.wstep}")
            else:
                txt.append("s_nop 0")
        txt.append(f"buffer_load_dwordx4 v{self.vD + d // 4}, s[{self.sW}:{self.sW+3}], s{so} offen offset:{(d%4)*1024} lds")
        if d == 0 and kt:
            txt.append(f"v_readlane_b32 s{self.sWo + (i+1) % 2}, v{kt[1]}, s{self.sWi}")
            if self.ND < 4: txt.append("s_nop 1")
        return txt
    def txt_rd(self, tag):
        _, f, s = tag
        i = f // self.NT; j = f % self.NT
        stg = i % self.UN
        return [f"ds_read_b128 {self.wreg(f,s)}, v{self.vWr + stg // self.SPG} offset:{(stg % self.SPG) * self.stage_bytes + (j*2+s)*1024}"]

    def mfma_seq(self):
        seq = []
        for j in range(self.NT):
            ts = list(range(self.RT))
            if j % 2: ts = ts[::-1]
            for n, t in enumerate(ts):
                ss = (0, 1) if n % 2 == 0 else (1, 0)
                for s in ss: seq.append((j, t, s))
        return seq
    def slot_of(self, j, t):
        return max(n for n, (jj, tt, s) in enumerate(self.mfma_seq()) if jj == j and tt == t)

    def steady_vm_slots(self):
        M, mb, ND, RT = self.M, self.mb, self.ND, self.RT
        res = []
        span = int(M * self.dma_span)
        for d in range(ND):
            res.append((mb + 1 + (d * span) // ND, ("w", self.wlead, d)))
        nx = 2 * RT
        for n in range(nx):
            res.append((((2 * n + 1) * M) // (2 * nx), ("x", self.xlead, n // 2, n % 2)))
        return res

    def build(self, nk):
        M, NT, RT, R = self.M, self.NT, self.RT, self.R
        tot = nk * M
        self._nk = nk
        W = []; X = []
        for i in range(-self.UN - 1, nk):
            for p, tg in self.steady_vm_slots():
                tag = (tg[0], i + tg[1]) + tuple(tg[2:])
                if tag[1] < 0 or tag[1] >= nk: continue
                (W if tag[0] == "w" else X).append((i * M + p, tag))
        W.sort(key=lambda z: z[1][1:]); X.sort(key=lambda z: z[1][1:])
        pro = [t for S, t in W if t[1] == 0] + [t for S, t in X if t[1] == 0]
        W = [z for z in W if z[1][1] > 0]; X = [z for z in X if z[1][1] > 0]
        def dl(tag):
            return (tag[1] - 1) * M + self.mb if tag[0] == "w" else tag[1] * M
        for _ in range(self.npro):
            q = W if dl(W[0][1]) <= dl(X[0][1]) else X
            assert q[0][0] < 0
            pro.append(q.pop(0)[1])
        load = [0] * tot
        post = [[] for _ in range(tot)]
        for e in self.extras:
            k = e["k"] if e["k"] >= 0 else nk + e["k"]
            assert (0 <= e["k"] < self.H) or (-self.T <= e["k"] < 0), e
            post[k * M + e["m"]].append(("ex", e)); load[k * M + e["m"]] += e["cost"]
        var = lambda m: m < self.H * M or m >= (nk - self.T) * M
        last = -10**9
        for m in range(tot):
            if m - last < (self.gh if m < self.H * M else 1): continue
            cand = [q for q in (W, X) if q and q[0][0] <= m]
            if not cand: continue
            if (load[m] > 0 or (m + 1) % (2 * RT) == 0) and (m % M) != M - 1 and M > 16:
                continue
            q = min(cand, key=lambda q: dl(q[0][1]))
            S, tag = q.pop(0)
            assert m < dl(tag), ("vm op misses deadline", tag, m)
            post[m].append(("vm", tag)); load[m] += 2 + (len(self.txt_vm(tag)) - 1)
            last = m
            if not var(m): assert m - S <= 3, ("backlog not cleared in head", tag, S, m)
        assert not W and not X
        pro_rd = [("lds", ("r", f, s)) for f in range(R) for s in range(2)]
        m_next = 0
        for f in range(nk * NT - R):
            e = f * 2 * RT + 2 * RT - 1
            m = max(e, m_next)
            kend = (e // M + 1) * M - 1
            lim = max(e, min(kend, e + (R - 1) * 2 * RT - self.rdmargin))
            m = min(m, lim)
            for s in range(2):
                while load[m] >= self.cap - 1 and m < lim: m += 1
                post[m].append(("lds", ("r", f + R, s))); load[m] += 1
                if m < lim: m += 1
            m_next = m
        seq = self.mfma_seq()
        steps = []
        for i in range(nk):
            it = []
            seen = set()
            for n, (j, t, s) in enumerate(seq):
                if n == self.mb and i + 1 < nk: it.append(("bar", i))
                first = (i == 0 and (j, t) not in seen); seen.add((j, t))
                it.append(("mfma", i, j, t, s, first))
                it.extend(post[i * M + n])
            steps.append(it)
        pitems = [("vm", t) for t in pro] + [("hook",), ("bar", -1)] + pro_rd
        return pitems, steps

    def emit(self, hook=None):
        a = self.a
        UN, H, T = self.UN, self.H, self.T
        niter = (self.KSTEPS - H - T) // UN
        simit = min(niter, 3)
        nk = H + UN * simit + T
        pitems, steps = self.build(nk)
        def norm(item, base):
            if item[0] == "vm": t = item[1]; return ("vm", t[0], t[1] - base) + tuple(t[2:])
            if item[0] == "lds": t = item[1]; return ("lds", t[1] - base * self.NT) + tuple(t[2:])
            if item[0] == "bar": return ("bar",)
            return ("mfma",) + tuple(item[2:5])
        for i in range(H + UN, H + UN * simit):
            assert [norm(x, i) for x in steps[i]] == [norm(x, i - UN) for x in steps[i - UN]], ("not periodic", i)
        prog = [(("P", n), it) for n, it in enumerate(pitems)]
        for i in range(nk):
            for n, it in enumerate(steps[i]):
                if i < H: key = ("H", i, n)
                elif i < H + UN * simit: key = ("L", (i - H) % UN, n)
                else: key = ("T", i - (H + UN * simit), n)
                prog.append((key, it))
        vmq = {}; ldq = {}; nv = 0; nl = 0
        need = {}
        mn = lambda x, y: y if x is None else (x if y is None else min(x, y))
        for key, item in prog:
            vmN = lgN = None
            if item[0] == "vm": vmq[item[1]] = nv; nv += 1
            elif item[0] == "lds": ldq[item[1]] = nl; nl += 1
            elif item[0] == "ex":
                e = item[1]
                if e["needvm"]: vmN = nv - 1 - max(vmq[t] for t in e["needvm"])
                if e["needlds"]: lgN = nl - 1 - max(ldq[t] for t in e["needlds"])
                if e["vm"] is not None: vmq[e["vm"]] = nv; nv += 1
                if e["lds"] is not None: ldq[e["lds"]] = nl; nl += 1
            elif item[0] == "bar":
                i = item[1]
                vmN = nv - 1 - max(vmq[("w", i + 1, d)] for d in range(self.ND))
            elif item[0] == "mfma":
                _, i, j, t, s, first = item
                f = i * self.NT + j
                if i < self.fine: vmN = nv - 1 - max(vmq[("x", i, t, 0)], vmq[("x", i, t, 1)])
                else: vmN = nv - 1 - max(vmq[("x", i, tt, ss)] for tt in range(self.RT) for ss in range(2))
                lgN = nl - 1 - max(ldq[("r", f, ss)] for ss in range(2))
            if vmN is not None or lgN is not None:
                o = need.get(key, (None, None))
                need[key] = (mn(o[0], vmN), mn(o[1], lgN))
        self.vmq = vmq; self.nv = nv
        st = dict(vm=10**9, lg=10**9)
        npro_vm = sum(1 for it in pitems if it[0] == "vm")
        def emit_items(items):
            for key, item in items:
                if key in need:
                    vmN, lgN = need[key]
                    w = []
                    if vmN is not None and vmN < st["vm"]:
                        vmN = min(vmN, 63)
                        w.append(f"vmcnt({vmN})"); st["vm"] = vmN
                    if lgN is not None and lgN < st["lg"]:
                        lgN = min(lgN, 15 if (key[0] == "H" and key[1] == 0) else self.lgsafe)
                        w.append(f"lgkmcnt({lgN})"); st["lg"] = lgN
                    if w: a("s_waitcnt " + " ".join(w))
                if item[0] == "vm":
                    if not (item[1][0] in self.skip and item[1][1] >= UN):
                        for tx in self.txt_vm(item[1]): a(tx)
                    st["vm"] += 1
                elif item[0] == "lds":
                    if not ('r' in self.skip and key[0] != 'P'):
                        for tx in self.txt_rd(item[1]): a(tx)
                    st["lg"] += 1
                elif item[0] == "ex":
                    for tx in item[1]["txt"]: a(tx)
                    if item[1]["vm"] is not None: st["vm"] += 1
                    if item[1]["lds"] is not None: st["lg"] += 1
                elif item[0] == "bar":
                    a("s_barrier")
                    if self.barstamp is not None:
                        n = {"P": 0, "H": 1, "L": None, "T": 1 + H}[key[0]]
                        if n is not None:
                            if key[0] != "P": n += key[1]
                            if n < 9: a(f"s_memtime s[{self.barstamp+2*n}:{self.barstamp+2*n+1}]")
                elif item[0] == "hook":
                    if hook: hook(npro_vm)
                    st["vm"] = st["lg"] = 10**9
                elif item[0] == "mfma":
                    _, i, j, t, s, first = item
                    f = i * self.NT + j
                    w = self.wreg(f, s); x = self.xreg(i, s, t)
                    A_, B_ = (x, w) if j in self.nontrans else (w, x)
                    c = "0" if (first and not self.init_acc) else self.acc(j, t)
                    a(f"v_mfma_f32_16x16x32_bf16 {self.acc(j,t)}, {A_}, {B_}, {c}")
        emit_items([p for p in prog if p[0][0] in ("P", "H")])
        if niter > 0:
            if niter > 1:
                a(f"s_mov_b32 s{self.sCnt}, {niter}")
                a.label(f"L_{self.name}")
                st["vm"] = st["lg"] = 10**9
            body = []
            for i in range(H, H + UN):
                for n, it in enumerate(steps[i]): body.append((("L", i - H, n), it))
            emit_items(body)
            if niter > 1:
                a(f"s_sub_u32 s{self.sCnt}, s{self.sCnt}, 1")
                a(f"s_cmp_lg_u32 s{self.sCnt}, 0")
                a(f"s_cbranch_scc1 L_{self.name}")
        emit_items([p for p in prog if p[0][0] == "T"])
    def wait_vm(self, tags):
        return self.nv - 1 - max(self.vmq[t] for t in tags)

    def setup_addr(self, L, s_wave, rbB):
        a = self.a
        a(f"v_lshlrev_b32 v{self.vX}, 4, v{L}")
        for t in range(1, self.RT): a(f"v_add_u32 v{self.vX+t}, {t*rbB}, v{self.vX}")
        a(f"s_mul_i32 s{self.sM0}, s{s_wave}, {self.ND*1024}")
        a(f"v_add_u32 v{self.vD}, s{self.sM0}, v{self.vX}")
        for g in range(1, self.NDG): a(f"v_add_u32 v{self.vD+g}, {4096*g}, v{self.vD}")
    def setup_rd(self):
        a = self.a
        for g in range(self.NG):
            if g == 0: a(f"v_mov_b32 v{self.vWr}, v{self.vX}")
            else: a(f"v_add_u32 v{self.vWr+g}, {g*self.SPG*self.stage_bytes}, v{self.vX}")

    def setup_ktab(self, L, G, s_rho, s_j0, t0, t1):
        a = self.a; vKX, vKW = self.ktab
        a(f"v_add_u32 v{t0}, s{s_j0}, v{L}")
        a(f"v_subrev_u32 v{t1}, {self.KSTEPS}, v{t0}")
        a(f"v_min_u32 v{t0}, v{t0}, v{t1}")
        a(f"v_add_u32 v{t1}, s{s_rho}, v{t0}")
        a(f"v_and_b32 v{t1}, {G-1}, v{t1}")
        a(f"v_and_b32 v{t0}, {0x100 - G}, v{t0}")
        a(f"v_or_b32 v{t0}, v{t0}, v{t1}")
        a(f"v_mul_u32_u24 v{vKX}, {self.xstep}, v{t0}")
        a(f"v_mul_u32_u24 v{vKW}, {self.wstep}, v{t0}")
        a(f"v_add_u32 v{vKX}, s{self.sXoff}, v{vKX}")
        a(f"v_add_u32 v{vKW}, s{self.sWoff}, v{vKW}")
        a(f"s_mov_b32 s{self.sXi}, 0"); a(f"s_mov_b32 s{self.sWi}, 0")
        a(f"v_readlane_b32 s{self.sXo}, v{vKX}, 0")
        a(f"v_readlane_b32 s{self.sWo}, v{vKW}, 0")
```

```python
from common import *

def plane_dma_lane(a, L, pitch, dst, t0, t1, t2):
    a(f"v_lshrrev_b32 v{t0}, 3, v{L}")
    a(f"v_bfe_u32 v{t1}, v{L}, 4, 2")
    a(f"v_lshlrev_b32 v{t1}, 1, v{t1}")
    a(f"v_and_b32 v{t2}, 7, v{L}")
    a(f"v_xor_b32 v{t1}, v{t1}, v{t2}")
    a(f"v_lshlrev_b32 v{t1}, 4, v{t1}")
    a(f"v_mul_u32_u24 v{t0}, {pitch}, v{t0}")
    a(f"v_add_u32 v{dst}, v{t0}, v{t1}")

def plane_read_bases(a, L, vWr, t0, t1, t2):
    a(f"v_lshrrev_b32 v{t0}, 2, v{L}")
    a(f"v_lshlrev_b32 v{t0}, 7, v{t0}")
    a(f"v_and_b32 v{t1}, 3, v{L}")
    a(f"v_lshl_add_u32 v{t0}, v{t1}, 3, v{t0}")
    a(f"v_bfe_u32 v{t1}, v{L}, 3, 2")
    for aa in range(4):
        a(f"v_xor_b32 v{t2}, {aa}, v{t1}")
        a(f"v_lshl_add_u32 v{vWr+aa}, v{t2}, 5, v{t0}")

def gen_k0(name, ldflag="nt", stflag="", st=False, ngate=48):
    a = A()
    N1, N3, N2 = 192, 4 * ngate, 64
    NW = N1 + N3 + N2; NX = 128
    a(f"s_cmp_ge_u32 s2, {NW+NX}")
    a(f"s_cbranch_scc1 E_{name}")
    a("s_load_dwordx4 s[4:7], s[0:1], 0")
    a("s_load_dwordx2 s[40:41], s[0:1], 16")
    a("s_load_dwordx2 s[8:9], s[0:1], 32")
    a("s_load_dwordx2 s[12:13], s[0:1], 72")
    a("v_and_b32 v1, 63, v0")
    a("v_lshrrev_b32 v2, 6, v0")
    a("s_nop 0")
    a("v_readfirstlane_b32 s14, v2")
    a(f"s_cmp_lt_u32 s2, {NX}")
    a(f"s_cbranch_scc1 X_{name}")
    a(f"s_sub_u32 s15, s2, {NX}")
    a("s_waitcnt lgkmcnt(0)")
    a(f"s_cmp_ge_u32 s15, {N1}")
    a(f"s_cbranch_scc1 C2_{name}")
    a("s_mul_i32 s36, s15, 1366"); a("s_lshr_b32 s36, s36, 16")
    a("s_mul_i32 s22, s36, 48"); a("s_sub_u32 s22, s15, s22")
    a("s_mov_b32 s16, s6"); a("s_mov_b32 s17, s7"); a("s_movk_i32 s21, 6144"); a(f"s_mov_b32 s18, {1024*6144}")
    a("s_and_b32 s23, s22, 15"); a(f"s_mul_i32 s23, s23, {16*24576}")
    a("s_lshr_b32 s24, s22, 4"); a("s_lshl_b32 s24, s24, 13")
    a("s_add_u32 s30, s23, s24"); a(f"s_add_u32 s30, s30, {WF1}")
    for j in range(1, 4): a(f"s_add_u32 s{30+j}, s30, {j*2048}")
    a("s_movk_i32 s34, 24576")
    a("s_mov_b32 s35, 1")
    a(f"s_lshl_b32 s37, s15, 8"); a(f"s_add_u32 s37, s37, {CSQ}")
    a(f"s_branch G_{name}")
    a.label(f"C2_{name}")
    a(f"s_cmp_ge_u32 s15, {N1+N2}")
    a(f"s_cbranch_scc1 C3_{name}")
    a(f"s_sub_u32 s15, s15, {N1}")
    a("s_lshr_b32 s36, s15, 4"); a("s_and_b32 s22, s15, 15")
    a("s_movk_i32 s21, 2048"); a("s_movk_i32 s34, 8192"); a("s_mov_b32 s35, 0")
    a("s_mov_b32 s16, s40"); a("s_mov_b32 s17, s41"); a(f"s_mov_b32 s18, {1024*2048}")
    a("s_lshl_b32 s30, s22, 17"); a(f"s_add_u32 s30, s30, {WF2}")
    for j in range(1, 4): a(f"s_add_u32 s{30+j}, s30, {j*2048}")
    a(f"s_branch G_{name}")
    a.label(f"C3_{name}")
    a(f"s_sub_u32 s15, s15, {N1+N2}")
    a(f"s_mul_i32 s36, s15, {(65536 + ngate - 1) // ngate}"); a("s_lshr_b32 s36, s36, 16")
    a(f"s_mul_i32 s22, s36, {ngate}"); a("s_sub_u32 s22, s15, s22")
    a("s_mov_b32 s16, s8"); a("s_mov_b32 s17, s9")
    a("s_movk_i32 s21, 7168"); a(f"s_mov_b32 s18, {1024*7168}")
    for j in range(4):
        a(f"s_lshl_b32 s25, s22, 2"); a(f"s_add_u32 s25, s25, {j}")
        a("s_mul_i32 s26, s25, 9363"); a("s_lshr_b32 s26, s26, 16")
        a("s_mul_i32 s27, s26, 7"); a("s_sub_u32 s27, s25, s27")
        a("s_and_b32 s28, s26, 1"); a("s_mul_i32 s28, s28, 6"); a("s_add_u32 s27, s27, s28")
        a("s_sub_u32 s28, s27, 7"); a("s_min_u32 s27, s27, s28")
        a("s_lshl_b32 s27, s27, 12")
        a(f"s_mul_i32 s26, s26, {16*28672}")
        a(f"s_add_u32 s{30+j}, s26, s27"); a(f"s_add_u32 s{30+j}, s{30+j}, {WF3}")
    a("s_movk_i32 s34, 28672")
    a("s_mov_b32 s35, 2")
    a.label(f"G_{name}")
    a("s_lshl_b32 s36, s36, 2"); a("s_add_u32 s36, s36, s14")
    a("s_mov_b32 s19, 0x20000")
    plane_dma_lane(a, 1, "s21", 3, 4, 5, 6)
    a("s_lshl_b32 s20, s22, 7")
    a("s_lshl_b32 s23, s21, 6"); a("s_mul_i32 s23, s23, s36"); a("s_add_u32 s20, s20, s23")
    a("s_lshl_b32 s24, s21, 3")
    a("s_lshl_b32 s26, s14, 13")
    for d in range(8):
        a(f"s_add_u32 m0, s26, {d*1024}")
        if d: a("s_add_u32 s20, s20, s24")
        else: a("s_nop 0")
        a(f"buffer_load_dwordx4 v3, s[16:19], s20 offen {ldflag} lds")
    srd(a, 44, "s12", "s13", WS_USED)
    a("s_mul_i32 s23, s34, s36")
    for j in range(4): a(f"s_add_u32 s{30+j}, s{30+j}, s23")
    plane_read_bases(a, 1, 8, 4, 5, 6)
    for aa in range(4): a(f"v_add_u32 v{8+aa}, s26, v{8+aa}")
    a("v_lshlrev_b32 v7, 4, v1")
    for e in range(4): a(f"v_mov_b32 v{12+e}, 0x3f803f80")
    a("v_cmp_gt_u32 s[50:51], 16, v1"); a("v_cmp_gt_u32 s[52:53], 32, v1"); a("v_cmp_gt_u32 s[54:55], 48, v1")
    a("s_waitcnt vmcnt(0)")
    for j in range(4):
        for s in range(2):
            for qq in range(2):
                r = 16 + j * 8 + s * 4 + qq * 2
                a(f"ds_read_b64_tr_b16 v[{r}:{r+1}], v{8+j} offset:{(32*s+16*qq)*128}")
    for j in range(4):
        for s in range(2):
            r = 16 + j * 8 + s * 4
            a(f"s_waitcnt lgkmcnt({14 - 2*(2*j+s)})")
            a(f"buffer_store_dwordx4 v[{r}:{r+3}], v7, s[44:47], s{30+j} offen offset:{s*1024} {stflag}")
            a(f"v_mfma_f32_16x16x32_bf16 v[{48+4*j}:{51+4*j}], v[12:15], v[{r}:{r+3}], {'0' if s == 0 else f'v[{48+4*j}:{51+4*j}]'}")
    a("s_cmp_eq_u32 s35, 0")
    a(f"s_cbranch_scc1 E_{name}")
    a("s_nop 6")
    a("v_cndmask_b32 v56, v60, v56, s[54:55]")
    a("v_cndmask_b32 v52, v56, v52, s[52:53]")
    a("v_cndmask_b32 v48, v52, v48, s[50:51]")
    a("v_lshlrev_b32 v2, 2, v1")
    a("s_cmp_eq_u32 s35, 1")
    a(f"s_cbranch_scc1 Q_{name}")
    a(f"s_mul_i32 s23, s36, {7168*4}"); a("s_lshl_b32 s24, s22, 8"); a("s_add_u32 s23, s23, s24"); a(f"s_add_u32 s23, s23, {CSP}")
    a("buffer_store_dword v48, v2, s[44:47], s23 offen")
    a("s_endpgm")
    a.label(f"Q_{name}")
    a("v_lshlrev_b32 v3, 2, v0")
    a("ds_write_b32 v3, v48 offset:32768")
    a("s_waitcnt lgkmcnt(0)")
    a("s_barrier")
    a("s_cmp_lg_u32 s14, 0")
    a(f"s_cbranch_scc1 E_{name}")
    for i in range(4): a(f"ds_read_b32 v{60+i}, v3 offset:{32768+i*256}")
    a("s_waitcnt lgkmcnt(0)")
    a("v_add_f32 v60, v60, v61"); a("v_add_f32 v62, v62, v63"); a("v_add_f32 v60, v60, v62")
    a("buffer_store_dword v60, v2, s[44:47], s37 offen")
    a("s_endpgm")
    a.label(f"X_{name}")
    a("s_mov_b32 s15, s2")
    a("v_and_b32 v3, 15, v1")
    a("v_lshrrev_b32 v4, 4, v1")
    a("v_lshlrev_b32 v5, 11, v3")
    a("v_and_b32 v6, 1, v4")
    a("v_lshl_add_u32 v5, v6, 5, v5")
    a("v_lshrrev_b32 v7, 1, v4")
    a("v_lshl_add_u32 v5, v7, 4, v5")
    a("s_lshl_b32 s20, s15, 15"); a("s_lshl_b32 s21, s14, 9"); a("s_add_u32 s20, s20, s21")
    a("s_waitcnt lgkmcnt(0)")
    srd(a, 16, "s4", "s5", 2048 * 2048)
    srd(a, 24, "s12", "s13", WS_USED)
    for b in range(8):
        a(f"buffer_load_dwordx4 v[{16+4*b}:{19+4*b}], v5, s[16:19], s20 offen offset:{b*64}")
    for e in range(4): a(f"v_mov_b32 v{8+e}, 0")
    a("v_lshlrev_b32 v12, 4, v0")
    a(f"s_mul_i32 s22, s15, 1056"); a(f"s_add_u32 s22, s22, {KV}")
    a("v_cmp_gt_u32 vcc, 66, v0")
    a("s_and_saveexec_b64 s[28:29], vcc")
    a(f"s_cbranch_execz Z_{name}")
    a("buffer_store_dwordx4 v[8:11], v12, s[24:27], s22 offen")
    a.label(f"Z_{name}")
    a("s_mov_b64 exec, s[28:29]")
    a("v_lshlrev_b32 v12, 4, v1")
    a("v_mov_b32 v13, 0x3f803f80")
    a("s_lshl_b32 s21, s15, 15"); a("s_lshl_b32 s22, s14, 13"); a("s_add_u32 s21, s21, s22"); a(f"s_add_u32 s21, s21, {XF}")
    a("s_add_u32 s22, s21, 4096")
    for e in range(8): a(f"v_mov_b32 v{48+e}, 0")
    a("s_waitcnt vmcnt(0)")
    for b in range(8):
        r = 16 + 4 * b
        a(f"v_permlane16_swap_b32 v{r}, v{r+2}")
        a(f"v_permlane16_swap_b32 v{r+1}, v{r+3}")
        a(f"buffer_store_dwordx4 v[{r}:{r+3}], v12, s[24:27], s{21 + b // 4} offen offset:{(b%4)*1024}")
        for p in range(4):
            a(f"v_dot2_f32_bf16 v{48+b//2}, v{r+p}, v13, v{48+b//2}")
            a(f"v_dot2_f32_bf16 v{52+b//2}, v{r+p}, v{r+p}, v{52+b//2}")
    a("s_nop 2")
    ls = []
    for e in range(8):
        r = Rec(); xlane_sum4(r, 48 + e, 56 + e); ls.append(r.l)
    for x in interleave(ls):
        if x.startswith("s_nop"): continue
        a(x)
    a("v_cmp_eq_u32 vcc, 0, v6")
    a("v_lshlrev_b32 v5, 6, v3")
    a("v_lshl_add_u32 v5, v6, 17, v5")
    for e in range(4): a(f"v_cndmask_b32 v{48+e}, v{52+e}, v{48+e}, vcc")
    a("s_lshl_b32 s21, s15, 10"); a("s_lshl_b32 s22, s14, 4"); a("s_add_u32 s21, s21, s22"); a(f"s_add_u32 s21, s21, {STA}")
    a("buffer_store_dwordx4 v[48:51], v5, s[24:27], s21 offen")
    a.label(f"E_{name}")
    a("s_endpgm")
    return kernel_wrap(name, a.text(), vgpr=64, sgpr=60), 32768 + 1024, NW + NX
```

```python
from common import *
from core import Core
from k0 import plane_dma_lane, plane_read_bases

def pk_bc(d, s, b):
    if b % 2 == 0: return f"v_pk_mul_f32 v[{d}:{d+1}], v[{s}:{s+1}], v[{b}:{b+1}] op_sel_hi:[1,0]"
    return f"v_pk_mul_f32 v[{d}:{d+1}], v[{s}:{s+1}], v[{b-1}:{b}] op_sel:[0,1] op_sel_hi:[1,1]"

def gen_k1(name, R=4, st=False, hb=15, nxt=(), **kw):
    st_off = STA; kv_off = KV
    a = A()
    RT = 2; NT = 12
    STAGE = 24576
    AUX = 4 * STAGE
    RED = 0
    REDW = 8448
    HSC = AUX + 2048
    LDS = HSC + 32768
    vX = 192; vD = 194; vWr = 196
    L = 198; t0, t1, t2 = 199, 200, 201
    vA = 202; vB = 203; vOne = 204
    vSt = 206
    vN4 = 222
    vCs = 238
    pt = 246
    vK = 96
    vV = 112
    vKV = 128
    tmp = 176
    assert R <= 4
    c = Core(a, name, RT, NT, 16, R, vWr, nontrans=range(4, 12), vX=vX, vD=vD, init_acc=True, xf='v', wf='v', xa0=96,
             barstamp=(84 if st else None), **kw)
    a("s_cmp_ge_u32 s2, 256")
    a(f"s_cbranch_scc1 E_{name}")
    if st: stamp(a, 0)
    a("s_load_dwordx2 s[32:33], s[0:1], 72")
    a(f"v_lshrrev_b32 v{t0}, 6, v0")
    a(f"v_and_b32 v{L}, 63, v0")
    a(f"v_readfirstlane_b32 s34, v{t0}")
    a("s_load_dwordx4 s[28:31], s[0:1], 32")
    a("s_cmp_ge_u32 s34, 4")
    a(f"s_cbranch_scc1 H_{name}")
    a(f"v_lshlrev_b32 v{vA}, 2, v0")
    a("s_and_b32 s35, s2, 7"); a("s_lshr_b32 s36, s2, 3")
    a("s_lshr_b32 s37, s35, 2"); a("s_lshl_b32 s37, s37, 3"); a("s_lshr_b32 s38, s36, 2"); a("s_add_u32 s37, s37, s38")
    a("s_and_b32 s38, s35, 3"); a("s_lshl_b32 s38, s38, 2"); a("s_and_b32 s39, s36, 3"); a("s_add_u32 s38, s38, s39")
    rbB = 32768
    c.setup_addr(L, 34, rbB)
    a("s_lshl_b32 s42, s37, 3"); a("s_lshl_b32 s43, s34, 1"); a("s_add_u32 s42, s42, s43")
    a(f"s_lshl_b32 s{c.sXoff}, s42, 15")
    if XF: a(f"s_add_u32 s{c.sXoff}, s{c.sXoff}, {XF}")
    a(f"s_mul_i32 s{c.sWoff}, s38, {16*STAGE}"); a(f"s_add_u32 s{c.sWoff}, s{c.sWoff}, {WF1}")
    a(f"v_and_b32 v{t0}, 15, v{L}")
    a(f"v_lshrrev_b32 v{t1}, 4, v{L}")
    a(f"v_lshlrev_b32 v{pt+1}, 6, v{t0}")
    a(f"v_lshl_add_u32 v{pt+1}, v{t1}, 4, v{pt+1}")
    a(f"v_lshlrev_b32 v{pt+2}, 2, v{L}")
    a("s_lshl_b32 s48, s42, 10"); a(f"s_add_u32 s48, s48, {st_off}"); a(f"s_add_u32 s49, s48, {SQOFF}")
    a("s_lshl_b32 s50, s38, 8"); a("s_lshl_b32 s51, s34, 12"); a("s_add_u32 s50, s50, s51"); a(f"s_add_u32 s50, s50, {CSQ}")
    a("s_lshl_b32 s51, s34, 8"); a(f"s_add_u32 s51, s51, {AUX + 1024}")
    a("s_waitcnt lgkmcnt(0)")
    srd(a, 44, "s32", "s33", WS_USED)
    for p in range(4):
        a(f"buffer_load_dword v{vCs+p}, v{pt+2}, s[44:47], s50 offen")
        if p < 3: a(f"s_add_u32 s50, s50, {3072*4}")
    for t in range(RT):
        for k in range(2):
            a(f"buffer_load_dwordx4 v[{vSt+8*t+4*k}:{vSt+8*t+4*k+3}], v{pt+1}, s[44:47], s{48+k} offen offset:{t*1024}")
    def hook(nvm):
        a(f"v_lshl_add_u32 v{pt+3}, v{t0}, 2, s51")
        a(f"v_lshl_add_u32 v{pt+4}, v{t1}, 4, s51")
        a(f"v_add_u32 v{pt+5}, {AUX}, v{vA}")
        a(f"v_lshlrev_b32 v{pt+6}, 2, v{t0}"); a(f"v_add_u32 v{pt+6}, {AUX}, v{pt+6}")
        a(f"v_lshlrev_b32 v{pt+7}, 4, v{t1}"); a(f"v_add_u32 v{pt+7}, {AUX}, v{pt+7}")
        c.setup_rd()
        a(f"s_waitcnt vmcnt({nvm+4})")
        a(f"v_add_f32 v{vCs}, v{vCs}, v{vCs+1}"); a(f"v_add_f32 v{vCs+2}, v{vCs+2}, v{vCs+3}"); a(f"v_add_f32 v{vCs}, v{vCs}, v{vCs+2}")
        a(f"ds_write_b32 v{pt+5}, v{vCs}")
        a(f"s_waitcnt vmcnt({nvm}) lgkmcnt(0)")
        a("s_barrier")
        for j in range(4):
            r = c.accr(j, 0)
            a(f"ds_read_b128 v[{r}:{r+3}], v{pt+7} offset:{j*64}")
        for j in range(4, 12):
            a(f"ds_read_b32 v{vCs+j-4}, v{pt+6} offset:{j*64}")
        ls = []
        for t in range(RT):
            r = Rec(); row_stats(r, vSt + 8 * t, vSt + 8 * t + 4)
            r(f"ds_write_b32 v{pt+3}, v{vSt+8*t} offset:{t*128}")
            r(f"ds_write_b32 v{pt+3}, v{vSt+8*t+4} offset:{t*128+64}")
            r(f"ds_read_b128 v[{vN4+8*t}:{vN4+8*t+3}], v{pt+4} offset:{t*128}")
            r(f"ds_read_b128 v[{vN4+8*t+4}:{vN4+8*t+7}], v{pt+4} offset:{t*128+64}")
            ls.append(r.l)
        for x in interleave(ls): a(x)
        a("s_waitcnt lgkmcnt(8)")
        for j in range(4):
            for t in (1, 0):
                for h in range(2):
                    a(pk_bc(c.accr(j, t) + 2 * h, c.accr(j, 0) + 2 * h, vSt + 8 * t))
        a("s_waitcnt lgkmcnt(0)")
        for j in range(4, 12):
            for t in range(2):
                for h in range(2):
                    a(pk_bc(c.accr(j, t) + 2 * h, vN4 + 8 * t + 2 * h, vCs + j - 4))
        if st: stamp(a, 1); a("s_waitcnt lgkmcnt(0)")
    c.emit(hook)
    if st: stamp(a, 2)
    if nxt: code_prefetch(a, nxt, L, pt, pt + 1)
    a("s_mov_b32 s52, 0x358637bd"); a("s_mov_b32 s53, 0x358637bd")
    a("s_mov_b32 s54, 0x3fb8aa3b")
    for t in range(RT):
        for e in range(4): a(f"v_mul_f32 v{vN4+8*t+e}, s54, v{vN4+8*t+4+e}")
        a(f"v_mul_f32 v{vSt+8*t}, s54, v{vSt+8*t+4}")
    a(f"v_mov_b32 v{vOne}, 1.0"); a(f"v_mov_b32 v{vOne+1}, 1.0")
    def phi4(r, dst, rs, rsl, bc, tb):
        o = []
        for h in range(2):
            if bc:
                o.append(pk_bc(tb + 2 * h, r + 2 * h, rsl))
            else:
                o.append(f"v_pk_mul_f32 v[{tb+2*h}:{tb+2*h+1}], v[{r+2*h}:{r+2*h+1}], v[{rsl+2*h}:{rsl+2*h+1}]")
        for e in range(4): o.append(f"v_exp_f32_e64 v{tb+e}, v{tb+e} clamp")
        for h in range(2):
            if bc:
                assert rs % 2 == 0
                o.append(f"v_pk_fma_f32 v[{r+2*h}:{r+2*h+1}], v[{r+2*h}:{r+2*h+1}], v[{rs}:{rs+1}], v[{vOne}:{vOne+1}] op_sel_hi:[1,0,1]")
            else:
                o.append(f"v_pk_fma_f32 v[{r+2*h}:{r+2*h+1}], v[{r+2*h}:{r+2*h+1}], v[{rs+2*h}:{rs+2*h+1}], v[{vOne}:{vOne+1}]")
        for e in range(4): o.append(f"v_max_f32 v{r+e}, v{r+e}, v{tb+e}")
        for h in range(2): o.append(f"v_pk_add_f32 v[{r+2*h}:{r+2*h+1}], v[{r+2*h}:{r+2*h+1}], s[52:53]")
        for h in range(2): o.append(f"v_cvt_pk_bf16_f32 v{dst+h}, v{r+2*h}, v{r+2*h+1}")
        return o
    for j in range(4, 8):
        for t in range(RT):
            for x in phi4(c.accr(j, t), vK + 4 * (j - 4) + 2 * t, vN4 + 8 * t + 4, vN4 + 8 * t, False, tmp + 4 * t): a(x)
    for j in range(8, 12):
        for t in range(RT):
            r = c.accr(j, t)
            for h in range(2):
                a(f"v_pk_mul_f32 v[{r+2*h}:{r+2*h+1}], v[{r+2*h}:{r+2*h+1}], v[{vN4+8*t+4+2*h}:{vN4+8*t+5+2*h}]")
            for h in range(2):
                a(f"v_cvt_pk_bf16_f32 v{vV+4*(j-8)+2*t+h}, v{r+2*h}, v{r+2*h+1}")
    for e in range(4): a(f"v_mov_b32 v{tmp+8+e}, 0x3f803f80")
    a(f"s_mul_i32 s55, s34, {REDW}"); a(f"s_add_u32 s55, s55, {RED}")
    a(f"v_add_u32 v{vB}, s55, v{vX}")
    a(f"v_lshrrev_b32 v{t1}, 4, v{L}")
    a(f"v_lshl_add_u32 v{t1}, v{t1}, 4, s55")
    for hl in range(2):
        for es in range(2):
            for ds in range(2):
                d = vKV + ((hl * 2 + es) * 2 + ds) * 4
                A_ = vK + 4 * (hl * 2 + ds); B_ = vV + 4 * (hl * 2 + es)
                a(f"v_mfma_f32_16x16x32_bf16 v[{d}:{d+3}], v[{A_}:{A_+3}], v[{B_}:{B_+3}], 0")
        for ds in range(2):
            d = vKV + 32 + (hl * 2 + ds) * 4
            A_ = vK + 4 * (hl * 2 + ds)
            a(f"v_mfma_f32_16x16x32_bf16 v[{d}:{d+3}], v[{A_}:{A_+3}], v[{tmp+8}:{tmp+11}], 0")
    a("s_nop 3")
    for n in range(8):
        a(f"ds_write_b128 v{vB}, v[{vKV+4*n}:{vKV+4*n+3}] offset:{n*1024}")
    for n in range(4):
        a(f"ds_write_b128 v{t1}, v[{vKV+32+4*n}:{vKV+32+4*n+3}] offset:{8192+n*64}")
    a(f"v_add_u32 v{vB}, {RED}, v{vA}")
    a("s_lshl_b32 s56, s38, 13"); a(f"s_add_u32 s56, s56, {kv_off}"); a("s_add_u32 s57, s56, 4096")
    a("s_lshl_b32 s58, s38, 8"); a(f"s_add_u32 s58, s58, {kv_off + KVZ}")
    a("s_waitcnt lgkmcnt(0)")
    a("s_barrier")
    for i in range(8):
        for w in range(2):
            a(f"ds_read2st64_b32 v[{vKV+4*i+2*w}:{vKV+4*i+2*w+1}], v{vB} offset0:{i*4+66*w} offset1:{i*4+66*w+33}")
    for w in range(2):
        a(f"ds_read2st64_b32 v[{vKV+32+2*w}:{vKV+33+2*w}], v{vB} offset0:{32+66*w} offset1:{32+66*w+33}")
    for i in range(8):
        r = vKV + 4 * i
        a(f"s_waitcnt lgkmcnt({min(15, 16 - 2*i)})")
        a(f"v_pk_add_f32 v[{r}:{r+1}], v[{r}:{r+1}], v[{r+2}:{r+3}]")
        a(f"v_add_f32 v{r}, v{r}, v{r+1}")
        a(f"buffer_atomic_add_f32 v{r}, v{vA}, s[44:47], s{56 + i // 4} offen offset:{(i%4)*1024}")
    a("s_cmp_lg_u32 s34, 0")
    a(f"s_cbranch_scc1 Q_{name}")
    r = vKV + 32
    a("s_waitcnt lgkmcnt(0)")
    a(f"v_pk_add_f32 v[{r}:{r+1}], v[{r}:{r+1}], v[{r+2}:{r+3}]")
    a(f"v_add_f32 v{r}, v{r}, v{r+1}")
    a(f"buffer_atomic_add_f32 v{r}, v{vA}, s[44:47], s58 offen")
    a.label(f"Q_{name}")
    a("s_lshl_b32 s56, s42, 15"); a("s_lshl_b32 s57, s38, 11"); a("s_add_u32 s56, s56, s57"); a(f"s_add_u32 s56, s56, {PQ}")
    a("s_add_u32 s57, s56, 32768")
    for t in range(RT):
        for hl in range(2):
            dst = vK + 4 * (t * 2 + hl)
            for h in range(2):
                for x in phi4(c.accr(2 * hl + h, t), dst + 2 * h, vSt + 8 * t + 4, vSt + 8 * t, True, tmp + 4 * h): a(x)
            a(f"buffer_store_dwordx4 v[{dst}:{dst+3}], v{vX}, s[44:47], s{56+t} offen offset:{hl*1024}")
    if st:
        stamp(a, 3); a("s_waitcnt vmcnt(0)"); stamp(a, 4)
        stamp_store(a, 5, tmp, 44, 34)
        barstamp_store(a, 84, 9, tmp, 44)
    a.label(f"E_{name}")
    a("s_endpgm")
    a.label(f"H_{name}")
    a("s_sub_u32 s34, s34, 4")
    a("s_lshr_b32 s36, s2, 4")
    a("s_and_b32 s37, s2, 15"); a("s_lshl_b32 s37, s37, 2"); a("s_add_u32 s37, s37, s34"); a("s_add_u32 s37, s37, 48")
    plane_dma_lane(a, L, 7168, 3, 4, 5, 6)
    plane_read_bases(a, L, 8, 4, 5, 6)
    a(f"s_lshl_b32 s26, s34, 13"); a(f"s_add_u32 s26, s26, {HSC}")
    for aa in range(4): a(f"v_add_u32 v{8+aa}, s26, v{8+aa}")
    a(f"v_lshlrev_b32 v7, 4, v{L}")
    a(f"v_lshlrev_b32 v2, 2, v{L}")
    for e in range(4): a(f"v_mov_b32 v{12+e}, 0x3f803f80")
    a(f"v_cmp_gt_u32 s[56:57], 16, v{L}"); a(f"v_cmp_gt_u32 s[58:59], 32, v{L}"); a(f"v_cmp_gt_u32 s[60:61], 48, v{L}")
    a("s_waitcnt lgkmcnt(0)")
    srd(a, 44, "s32", "s33", WS_USED)
    a(f"s_mov_b32 s18, {1024*7168}"); a("s_mov_b32 s19, 0x20000")
    def hsetup(db):
        a("s_cmp_ge_u32 s37, 56")
        a("s_cselect_b32 s16, s30, s28"); a("s_cselect_b32 s17, s31, s29")
        a("s_cselect_b32 s23, 56, 0"); a("s_cselect_b32 s24, 2048, 0")
        a("s_sub_u32 s22, s37, s23")
        a("s_lshl_b32 s20, s22, 7"); a(f"s_mul_i32 s23, s36, {64*7168}"); a("s_add_u32 s20, s20, s23")
        a("s_mul_i32 s23, s36, 28672"); a("s_add_u32 s24, s24, s23"); a(f"s_add_u32 s24, s24, {WF3}")
        for j in range(4):
            a(f"s_lshl_b32 s25, s22, 2"); a(f"s_add_u32 s25, s25, {j}")
            a("s_mul_i32 s38, s25, 9363"); a("s_lshr_b32 s38, s38, 16")
            a("s_mul_i32 s27, s38, 7"); a("s_sub_u32 s27, s25, s27")
            a("s_and_b32 s39, s38, 1"); a("s_mul_i32 s39, s39, 6"); a("s_add_u32 s27, s27, s39")
            a("s_sub_u32 s39, s27, 7"); a("s_min_u32 s27, s27, s39")
            a("s_lshl_b32 s27, s27, 12")
            a(f"s_mul_i32 s38, s38, {16*28672}")
            a(f"s_add_u32 s{db+j}, s38, s27"); a(f"s_add_u32 s{db+j}, s{db+j}, s24")
        a(f"s_mul_i32 s{db+4}, s36, {7168*4}"); a("s_lshl_b32 s23, s37, 8"); a(f"s_add_u32 s{db+4}, s{db+4}, s23"); a(f"s_add_u32 s{db+4}, s{db+4}, {CSP}")
    def hdma1(d):
        a(f"s_add_u32 m0, s26, {d*1024}")
        if d: a(f"s_add_u32 s20, s20, {8*7168}")
        else: a("s_nop 0")
        a("buffer_load_dwordx4 v3, s[16:19], s20 offen nt lds")
    def hread():
        a("s_waitcnt vmcnt(0)")
        for j in range(4):
            for s_ in range(2):
                for qq in range(2):
                    r = 16 + j * 8 + s_ * 4 + qq * 2
                    a(f"ds_read_b64_tr_b16 v[{r}:{r+1}], v{8+j} offset:{(32*s_+16*qq)*128}")
        a("s_waitcnt lgkmcnt(0)")
    def hst1(db, n):
        j, s_ = n // 2, n % 2
        r = 16 + j * 8 + s_ * 4
        a(f"buffer_store_dwordx4 v[{r}:{r+3}], v7, s[44:47], s{db+j} offen offset:{s_*1024}")
        a(f"v_mfma_f32_16x16x32_bf16 v[{48+4*j}:{51+4*j}], v[12:15], v[{r}:{r+3}], {'0' if s_ == 0 else f'v[{48+4*j}:{51+4*j}]'}")
    def hfin(db):
        a("s_nop 7")
        a("v_cndmask_b32 v56, v60, v56, s[60:61]")
        a("v_cndmask_b32 v52, v56, v52, s[58:59]")
        a("v_cndmask_b32 v48, v52, v48, s[56:57]")
        a(f"buffer_store_dword v48, v2, s[44:47], s{db+4} offen")
    hsetup(48)
    for _ in range(hb + 1): a("s_barrier")
    for d in range(8): hdma1(d)
    for _ in range(17 - hb): a("s_barrier")
    hread()
    for d in range(8): hst1(48, d)
    hfin(48)
    a("s_endpgm")
    return kernel_wrap(name, a.text(), vgpr=256, agpr=0, sgpr=102), LDS
```

```python
from common import *
from k4 import tile_map_16x16, epi_setup

def gen_k2(name, st=False, LW=3, LQ=3, LK=5):
    kv_off = KV
    a = A()
    NS = 16
    UN = LW + 1
    STAGE = 12288; KVO = 8192; ZO = UN * STAGE
    LDS = ZO + 2048
    accr = lambda j, t: j * 4
    vX = 16; vD = 17; ones = 18; L = 19; t0, t1 = 20, 21
    vRow, vStat, vS, vOut = 22, 23, 24, 25
    vKVw = 26; vZr = 27; vZ0 = 28; vZw = 29
    vEps = 32
    vO = 36
    vN = 52
    NG = LK - 2
    vG = 76
    vXo = vG + 4 * NG
    tmp = vXo + 8
    NV = tmp + 12
    NQ = LQ
    aPQ = 0
    aW = aPQ + 8 * NQ
    aKV = aW + 64
    NA = aKV + 48
    a("s_cmp_ge_u32 s2, 256")
    a(f"s_cbranch_scc1 E_{name}")
    if st: stamp(a, 0)
    a("s_load_dwordx2 s[32:33], s[0:1], 72")
    a(f"v_lshrrev_b32 v{t0}, 6, v0")
    a(f"v_and_b32 v{L}, 63, v0")
    a(f"v_readfirstlane_b32 s34, v{t0}")
    a(f"v_and_b32 v{vZw}, 255, v0")
    a(f"v_lshlrev_b32 v{vZ0}, 4, v{vZw}")
    tile_map_16x16(a)
    a(f"v_lshlrev_b32 v{vX}, 4, v{L}")
    a("s_lshl_b32 s26, s34, 10")
    a(f"v_add_u32 v{vD}, s26, v{vX}")
    a("s_lshl_b32 s42, s37, 3"); a("s_add_u32 s42, s42, s34")
    a("s_lshl_b32 s20, s42, 15"); a(f"s_add_u32 s20, s20, {PQ}")
    a(f"s_mov_b32 s22, {kv_off}")
    a(f"s_mov_b32 s23, {kv_off + KVZ}")
    a("s_lshl_b32 s24, s38, 17"); a(f"s_add_u32 s24, s24, {WF2}")
    a("s_waitcnt lgkmcnt(0)")
    srd(a, 44, "s32", "s33", WS_USED)
    q = Seq(a)
    def ld_kv(m):
        r = vG + (m % NG) * 4
        pre = [(f"s_add_u32 s22, s22, 8192", {})] if m > 0 else []
        return [pre + [(f"buffer_load_dwordx4 v[{r}:{r+3}], v{vD}, s[44:47], s22 offen", dict(vm=("kv", m)))]]
    def ld_pq(m):
        o = []
        for h in range(2):
            r = aPQ + (m % NQ) * 8 + h * 4
            pre = [(f"s_add_u32 s20, s20, 2048", {})] if (h == 0 and m > 0) else []
            o.append(pre + [(f"buffer_load_dwordx4 a[{r}:{r+3}], v{vX}, s[44:47], s20 offen offset:{h*1024}", dict(vm=("pq", m, h)))])
        return o
    def ld_w(m):
        pre = [(f"s_add_u32 m0, s26, {(m%UN)*STAGE}", {}), ((f"s_add_u32 s24, s24, 8192" if m > 0 else "s_nop 0"), {})]
        return [pre + [(f"buffer_load_dwordx4 v{vD}, s[44:47], s24 offen lds", dict(vm=("w", m)))]]
    def st_kv(m):
        r = vG + (m % NG) * 4
        o = [[(f"v_cvt_pk_bf16_f32 v{r+p}, v{r+2*p}, v{r+2*p+1}", dict(needvm=[("kv", m)]))] for p in range(2)]
        o.append([(f"ds_write_b64 v{vKVw}, v[{r}:{r+1}] offset:{(m%UN)*STAGE}", dict(lds=("kvw", m)))])
        return o
    def rd_kv(m):
        o = []
        for h in range(2):
            b = aKV + (m % 2) * 24 + h * 12
            o.append([(f"ds_read_b128 a[{b+8}:{b+11}], v{vZr} offset:{(2*m+h)*64}", dict(lds=("kvr", m, h, 2)))])
            for es in range(2):
                o.append([(f"ds_read_b128 a[{b+4*es}:{b+4*es+3}], v{vX} offset:{(m%UN)*STAGE + KVO + (h*2+es)*1024}", dict(lds=("kvr", m, h, es)))])
        return o
    def rd_w(m):
        o = []
        for j in range(4):
            for s in range(2):
                r = aW + (m % 2) * 32 + j * 8 + s * 4
                o.append([(f"ds_read_b128 a[{r}:{r+3}], v{vX} offset:{(m%UN)*STAGE + (j*2+s)*1024}", dict(lds=("wr", m, j, s)))])
        return o
    def mf_a(m):
        o = []
        for h in range(2):
            b = aKV + (m % 2) * 24 + h * 12
            p = aPQ + (m % NQ) * 8 + h * 4
            for k in (2, 0, 1):
                d = vN + h * 12 + 4 * k
                cc = f"v[{vEps}:{vEps+3}]" if k == 2 else "0"
                o.append([(f"v_mfma_f32_16x16x32_bf16 v[{d}:{d+3}], a[{b+4*k}:{b+4*k+3}], a[{p}:{p+3}], {cc}",
                           dict(needvm=[("pq", m, h)], needlds=[("kvr", m, h, k)]))])
        return o
    def va_o(m):
        l = [f"v_rcp_f32 v{vN+8}, v{vN+8}", f"v_rcp_f32 v{vN+20}, v{vN+20}"]
        for h in range(2):
            n = vN + h * 12
            d = vO + (m % 2) * 8 + h * 4
            for p in range(8): l.append(f"v_mul_f32 v{n+p}, v{n+p}, v{n+8}")
            for p in range(4): l.append(f"v_cvt_pk_bf16_f32 v{d+p}, v{n+2*p}, v{n+2*p+1}")
        return [[(x, {})] for x in l]
    def mf_m(m):
        o = []
        for j in range(4):
            for s in range(2):
                w = aW + (m % 2) * 32 + j * 8 + s * 4
                x = vO + (m % 2) * 8 + s * 4
                r = accr(j, 0)
                cc = "0" if (m == 0 and s == 0) else f"v[{r}:{r+3}]"
                o.append([(f"v_mfma_f32_16x16x32_bf16 v[{r}:{r+3}], a[{w}:{w+3}], v[{x}:{x+3}], {cc}", dict(needlds=[("wr", m, j, s)]))])
        return o
    def run(groups):
        for gset in groups:
            for txt, kw in gset: q(txt, **kw)
    ok = lambda m: 0 <= m < NS
    q(f"buffer_load_dwordx4 v[{tmp}:{tmp+3}], v{vZ0}, s[44:47], s23 offen", vm="z")
    for m in range(0, LK - 3): run(ld_kv(m))
    for m in range(0, LQ - 3): run(ld_pq(m))
    for m in range(0, LW - 3): run(ld_w(m))
    a("s_lshr_b32 s40, s34, 1"); a("s_lshl_b32 s40, s40, 10"); a("s_and_b32 s41, s34, 1"); a("s_lshl_b32 s41, s41, 3")
    a("s_add_u32 s40, s40, s41"); a(f"s_add_u32 s40, s40, {KVO}")
    a(f"v_add_u32 v{vKVw}, s40, v{vX}")
    a(f"v_lshrrev_b32 v{t1}, 4, v{L}")
    a(f"v_lshlrev_b32 v{vZr}, 4, v{t1}")
    a(f"v_add_u32 v{vZr}, {ZO}, v{vZr}")
    a(f"v_lshrrev_b32 v{t0}, 3, v{vZw}"); a(f"v_lshlrev_b32 v{t0}, 6, v{t0}")
    a(f"v_and_b32 v{t1}, 3, v{vZw}"); a(f"v_lshl_add_u32 v{t0}, v{t1}, 4, v{t0}")
    a(f"v_bfe_u32 v{t1}, v{vZw}, 2, 1"); a(f"v_lshl_add_u32 v{vZw}, v{t1}, 3, v{t0}")
    for e in range(4): a(f"v_mov_b32 v{vEps+e}, 0x358637bd")
    for n in range(-3, NS):
        if n >= -2:
            q.wait(needvm=[("w", n + 1)] if ok(n + 1) else [], alllds=True)
            if n + 1 < NS: a("s_barrier")
        l1 = []; l2 = []
        if ok(n + LW): l1 += ld_w(n + LW)
        if ok(n + LK): l1 += ld_kv(n + LK)
        if ok(n + LQ): l2 += ld_pq(n + LQ)
        if n == NS - 4:
            for b in range(2):
                l2.append([(f"buffer_load_dwordx4 v[{vXo+4*b}:{vXo+4*b+3}], v{vX}, s[44:47], s48 offen offset:{b*1024}", dict(vm=("xo", b)))])
        reads = (rd_kv(n + 2) if ok(n + 2) else []) + (rd_w(n + 1) if ok(n + 1) else [])
        stg = st_kv(n + 3) if ok(n + 3) else []
        A_ = mf_a(n + 1) if ok(n + 1) else []
        M_ = mf_m(n) if ok(n) else []
        V_ = va_o(n + 1) if ok(n + 1) else []
        if n == -3:
            run(l2 + l1)
            epi_setup(a, L, t0, t1, vRow, vStat, vS, vOut, ones, 0, STB, False, RT=1)
            q(f"v_cvt_pk_bf16_f32 v{tmp}, v{tmp}, v{tmp+1}", needvm=["z"])
            q(f"v_cvt_pk_bf16_f32 v{tmp+1}, v{tmp+2}, v{tmp+3}")
            q(f"ds_write_b64 v{vZw}, v[{tmp}:{tmp+1}] offset:{ZO}", lds="zw")
            run(stg)
            if st: stamp(a, 1); a("s_waitcnt lgkmcnt(0)")
            continue
        f1 = l1 + l2 + reads[:8]
        if A_: run(merge(A_, f1))
        else: run(f1)
        pad = [[("s_nop 7", {})]] if A_ and len(reads[8:]) < 6 else []
        if M_:
            run(merge(M_[:2], reads[8:] + pad))
            run(merge(M_[2:], V_ + stg))
        else:
            run(reads[8:] + ([[("s_nop 7", {})]] if A_ else []) + V_ + stg)
        if V_ and not stg: a("s_nop 1")
    if st: stamp(a, 2)
    vCp = vO
    a("s_cmp_lg_u32 s34, 7")
    a(f"s_cbranch_scc1 C0_{name}")
    a("s_cmp_ge_u32 s2, 112")
    a(f"s_cbranch_scc1 C0_{name}")
    a("s_lshl_b32 s40, s2, 8"); a(f"s_add_u32 s40, s40, {CSP}")
    a(f"v_lshlrev_b32 v{t0}, 2, v{L}")
    a("s_nop 7")
    for i in range(16):
        a(f"buffer_load_dword v{vCp+i}, v{t0}, s[44:47], s40 offen")
        if i < 15: a(f"s_add_u32 s40, s40, {7168*4}")
    a.label(f"C0_{name}")
    a("s_waitcnt vmcnt(0)")
    a("s_nop 7")
    resid_epilogue(a, accr, 1, lambda t, b: vXo + 4 * b, None, tmp, vX, vRow, 44,
                   lambda t: 48 + t, 52, vStat, False, ones=ones)
    a("s_cmp_lg_u32 s34, 7")
    a(f"s_cbranch_scc1 C_{name}")
    a("s_cmp_ge_u32 s2, 112")
    a(f"s_cbranch_scc1 C_{name}")
    for i in range(1, 16): a(f"v_add_f32 v{vCp}, v{vCp}, v{vCp+i}")
    a("s_lshl_b32 s40, s2, 8"); a(f"s_add_u32 s40, s40, {CSF + 3072*4}")
    a(f"v_lshlrev_b32 v{t0}, 2, v{L}")
    a(f"buffer_store_dword v{vCp}, v{t0}, s[44:47], s40 offen")
    a.label(f"C_{name}")
    if st:
        stamp(a, 3); a("s_waitcnt vmcnt(0)"); stamp(a, 4)
        a("s_lshr_b32 s34, s34, 1")
        stamp_store(a, 5, tmp, 44, 34)
    a.label(f"E_{name}")
    a("s_endpgm")
    return kernel_wrap(name, a.text(), vgpr=NV, agpr=NA, sgpr=102), LDS, 512
```

```python
from common import *
from core import Core
from k1 import pk_bc
from k0 import plane_dma_lane, plane_read_bases

def gen_k3(name, R=4, st=False, rep=False, rp=(-3, 92, -1, 2), **kw):
    st_off = STB
    a = A()
    RT = 4; NT = 14
    STAGE = 28672
    AUX = 4 * STAGE
    HSC = AUX + 4096
    LDS = HSC + (32768 if rep else 0)
    vX = 224; vD = 228; vWr = 230
    L = 234; t0, t1, t2 = 235, 236, 237
    vS = 238; vC = 239
    vSum = 240
    c = Core(a, name, RT, NT, 16, R, vWr, vX=vX, vD=vD, init_acc=True, barstamp=(84 if st else None), **kw)
    a("s_cmp_ge_u32 s2, 256")
    a(f"s_cbranch_scc1 E_{name}")
    if st: stamp(a, 0)
    a("s_load_dwordx2 s[32:33], s[0:1], 72")
    if rep: a("s_load_dwordx2 s[16:17], s[0:1], 48")
    a(f"v_lshrrev_b32 v{t0}, 6, v0")
    a(f"v_and_b32 v{L}, 63, v0")
    a(f"v_readfirstlane_b32 s34, v{t0}")
    a("s_and_b32 s35, s2, 7")
    a("s_lshr_b32 s36, s2, 3")
    a("s_lshr_b32 s37, s35, 2"); a("s_lshl_b32 s37, s37, 2"); a("s_lshr_b32 s38, s36, 3"); a("s_add_u32 s37, s37, s38")
    a("s_and_b32 s38, s35, 3"); a("s_lshl_b32 s38, s38, 3"); a("s_and_b32 s39, s36, 7"); a("s_add_u32 s38, s38, s39")
    a("s_and_b32 s53, s38, 1")
    a(f"s_lshl_b32 s42, s37, 4")
    a(f"s_lshl_b32 s43, s34, 2")
    a("s_add_u32 s42, s42, s43")
    a(f"v_and_b32 v{t0}, 15, v{L}")
    a(f"v_lshrrev_b32 v{t1}, 4, v{L}")
    a(f"v_lshlrev_b32 v{vS}, 6, v{t0}")
    a(f"v_lshl_add_u32 v{vS}, v{t1}, 4, v{vS}")
    a(f"v_lshrrev_b32 v{t0}, 3, v{L}")
    a(f"v_add_u32 v{t0}, s53, v{t0}")
    a(f"v_subrev_u32 v{t2}, 7, v{t0}")
    a(f"v_min_u32 v{t0}, v{t0}, v{t2}")
    a(f"v_lshlrev_b32 v{t0}, 6, v{t0}")
    a(f"v_and_b32 v{t2}, 3, v{L}")
    a(f"v_lshl_add_u32 v{t0}, v{t2}, 4, v{t0}")
    a(f"v_bfe_u32 v{t2}, v{L}, 2, 1")
    a(f"v_mul_u32_u24 v{t2}, 14336, v{t2}")
    a(f"v_add_u32 v{vC}, v{t0}, v{t2}")
    a(f"s_lshl_b32 s48, s42, 10")
    a(f"s_add_u32 s48, s48, {st_off}")
    a(f"s_mul_i32 s49, s38, 448")
    a(f"s_add_u32 s49, s49, {CSF + 3072*4}")
    a("s_lshl_b32 s62, s34, 10"); a(f"s_add_u32 s62, s62, {AUX}")
    a("s_mov_b32 m0, s62")
    rbB = 32768
    c.setup_addr(L, 34, rbB)
    a(f"s_lshl_b32 s{c.sXoff}, s42, 15")
    if XF: a(f"s_add_u32 s{c.sXoff}, s{c.sXoff}, {XF}")
    a(f"s_mul_i32 s{c.sWoff}, s38, {16*STAGE}"); a(f"s_add_u32 s{c.sWoff}, s{c.sWoff}, {WF3}")
    a("s_waitcnt lgkmcnt(0)")
    srd(a, 44, "s32", "s33", WS_USED)
    for t in range(RT):
        a(f"buffer_load_dwordx4 v[{vSum+4*t}:{vSum+4*t+3}], v{vS}, s[44:47], s48 offen offset:{t*1024}")
    a(f"buffer_load_dwordx4 v{vC}, s[44:47], s49 offen lds")
    a(f"v_lshl_add_u32 v{vC}, v{t1}, 4, s62")
    def hook(nvm):
        a(f"s_waitcnt vmcnt({nvm})")
        for j in range(NT):
            r = c.accr(j, 0)
            a(f"ds_read_b128 v[{r}:{r+3}], v{vC} offset:{j*64}")
        ls = []
        for t in range(RT):
            r = Rec(); row_stats(r, vSum + 4 * t, None, want_rstd=False); ls.append(r.l)
        for x in interleave(ls):
            if not x.startswith("s_nop"): a(x)
        c.setup_rd()
        a("s_waitcnt lgkmcnt(0)")
        for j in range(NT):
            for t in (3, 2, 1, 0):
                for h in range(2):
                    a(pk_bc(c.accr(j, t) + 2 * h, c.accr(j, 0) + 2 * h, vSum + 4 * t))
        a(f"s_mul_i32 s50, s42, {112*1024}")
        a(f"s_add_u32 s50, s50, {HF}")
        a(f"s_mul_i32 s55, s38, 7")
        a("s_add_u32 s51, s55, s53"); a("s_lshr_b32 s51, s51, 1"); a("s_lshl_b32 s51, s51, 10")
        a("s_add_u32 s51, s51, s50")
        a("s_lshr_b32 s52, s55, 1"); a("s_lshl_b32 s52, s52, 10"); a("s_add_u32 s52, s52, s50")
        a("s_cmp_eq_u32 s53, 0")
        a("s_cselect_b32 s55, 3072, 8")
        a("s_add_u32 s52, s52, s55")
        for t in range(1, RT):
            a(f"s_add_u32 s{54+2*t}, s51, {t*112*1024}"); a(f"s_add_u32 s{55+2*t}, s52, {t*112*1024}")
        if rep:
            plane_dma_lane(a, L, 2048, vSum, t0, t1, t2)
            plane_read_bases(a, L, vSum + 4, t0, t1, t2)
            a("s_lshl_b32 s21, s34, 13"); a(f"s_add_u32 s21, s21, {HSC}")
            for aa in range(4): a(f"v_add_u32 v{vSum+4+aa}, s21, v{vSum+4+aa}")
            a("s_lshl_b32 s22, s2, 2"); a("s_add_u32 s22, s22, s34")
            a("s_lshr_b32 s23, s22, 4"); a("s_and_b32 s22, s22, 15")
            a(f"s_mov_b32 s18, {3584*2048}"); a("s_mov_b32 s19, 0x20000")
            a("s_lshl_b32 s20, s23, 17"); a("s_lshl_b32 s28, s22, 7"); a("s_add_u32 s20, s20, s28")
            a(f"s_mul_i32 s28, s22, {56*8192}"); a("s_lshl_b32 s29, s23, 13"); a("s_add_u32 s28, s28, s29"); a(f"s_add_u32 s28, s28, {WF4}")
            a("s_cmp_ge_u32 s23, 56")
            a(f"s_cselect_b32 s28, 0x7ff00000, s28")
            a("s_add_u32 s29, s28, 4096")
        if st: stamp(a, 1); a("s_waitcnt lgkmcnt(0)")
    aR = c.agpr_end
    if rep:
        k0_, m0_, k1_, m1_ = rp
        m = m0_
        for d in range(8):
            kk, mm = k0_ + m // c.M, m % c.M
            c.extra(kk, mm, [f"s_add_u32 m0, s21, {d*1024}", (f"s_add_u32 s20, s20, {8*2048}" if d else "s_nop 0"),
                             f"buffer_load_dwordx4 v{vSum}, s[16:19], s20 offen nt lds"], cost=3, vm=("rd", d))
            m += 2
        m = m1_
        for j in range(4):
            for s_ in range(2):
                for qq in range(2):
                    r = aR + j * 8 + s_ * 4 + qq * 2
                    c.extra(k1_, m, f"ds_read_b64_tr_b16 a[{r}:{r+1}], v{vSum+4+j} offset:{(32*s_+16*qq)*128}", lds=("rr", j, s_, qq), needvm=[("rd", 7)]); m += 1
        m += 2
        for j in range(4):
            for s_ in range(2):
                r = aR + j * 8 + s_ * 4
                c.extra(k1_, m, f"buffer_store_dwordx4 a[{r}:{r+3}], v{vX}, s[44:47], s{28 + j//2} offen offset:{((j%2)*2+s_)*1024}", cost=2, vm=("rs", j, s_), needlds=[("rr", j, s_, 0), ("rr", j, s_, 1)]); m += 1
    sP = lambda t: 51 if t == 0 else 54 + 2 * t
    sS = lambda t: 52 if t == 0 else 55 + 2 * t
    def piece(p, t):
        r = Rec()
        js = (2 * p, 2 * p + 1) if p < 3 else (6,)
        dst = c.accr(2 * js[0], t)
        for jj in js:
            rg = c.accr(2 * jj, t); ru = c.accr(2 * jj + 1, t)
            for h in range(2):
                r(f"v_pk_mul_f32 v[{ru+2*h}:{ru+2*h+1}], v[{rg+2*h}:{rg+2*h+1}], v[{ru+2*h}:{ru+2*h+1}]")
        for n, jj in enumerate(js):
            ru = c.accr(2 * jj + 1, t)
            for h in range(2):
                r(f"v_cvt_pk_bf16_f32 v{dst+2*n+h}, v{ru+2*h}, v{ru+2*h+1}")
        if p < 3: s_ = f"buffer_store_dwordx4 v[{dst}:{dst+3}], v{vX}, s[44:47], s{sP(t)} offen offset:{p*1024}"
        else: s_ = f"buffer_store_dwordx2 v[{dst}:{dst+1}], v{vX}, s[44:47], s{sS(t)} offen"
        return r.l, s_
    after = []
    for p in range(3):
        m = (4 * p + 4) * 8 + 2
        per = 1 if p < 2 else 2
        for t in (3, 2, 1, 0):
            ins, s_ = piece(p, t)
            if per == 1: ins = [ins[0:2], ins[2:3], ins[3:4], ins[4:6], ins[6:7], ins[7:8]]
            else: ins = [ins[2*i:2*i+2] for i in range(4)]
            if m + len(ins) + 1 <= c.M:
                for grp in ins:
                    c.extra(-1, m, grp); m += 1
                c.extra(-1, m, s_, cost=2, vm=("st", p, t)); m += 1
            else:
                for grp in ins: after += grp
                after.append(s_)
    c.emit(hook)
    if st: stamp(a, 2)
    for x in after: a(x)
    if len(after) < 8: a("s_nop 7")
    for t in (3, 2, 1, 0):
        ins, s_ = piece(3, t)
        for x in ins: a(x)
        a(s_)
    a("s_cmp_lg_u32 s34, 0")
    a(f"s_cbranch_scc1 Z_{name}")
    for e in range(4): a(f"v_mov_b32 v{vSum+e}, 0")
    a("s_mul_i32 s48, s2, 528"); a(f"s_add_u32 s48, s48, {KV}")
    a("s_mov_b32 exec_lo, -1"); a("s_mov_b32 exec_hi, 1")
    a(f"buffer_store_dwordx4 v[{vSum}:{vSum+3}], v{vX}, s[44:47], s48 offen")
    a("s_mov_b64 exec, -1")
    a.label(f"Z_{name}")
    if st:
        a("s_nop 1")
        stamp(a, 3); a("s_waitcnt vmcnt(0)"); stamp(a, 4)
        stamp_store(a, 5, 240, 44, 34)
        barstamp_store(a, 84, 9, 240, 44)
    a.label(f"E_{name}")
    a("s_endpgm")
    return kernel_wrap(name, a.text(), vgpr=256, agpr=c.agpr_end + (32 if rep else 0), sgpr=102), LDS
```

```python
from common import *
from core import Core

def tile_map_16x16(a, lc=3):
    lx = 4 - lc
    a("s_and_b32 s35, s2, 7"); a("s_lshr_b32 s36, s2, 3")
    a(f"s_lshr_b32 s37, s35, {lx}"); a(f"s_lshl_b32 s37, s37, {5-lc}"); a(f"s_lshr_b32 s38, s36, {lc}"); a("s_add_u32 s37, s37, s38")
    a(f"s_and_b32 s38, s35, {(1<<lx)-1}"); a(f"s_lshl_b32 s38, s38, {lc}"); a(f"s_and_b32 s39, s36, {(1<<lc)-1}"); a("s_add_u32 s38, s38, s39")

def epi_setup(a, L, t0, t1, vRow, vStat, vS, vOut, ones, stin_off, stout_off, final, RT=2):
    a(f"v_and_b32 v{vRow}, 31, v{L}")
    a(f"v_and_b32 v{t0}, 15, v{L}")
    a(f"v_lshrrev_b32 v{t1}, 4, v{L}")
    a(f"v_lshlrev_b32 v{vS}, 6, v{t0}")
    a(f"v_lshl_add_u32 v{vS}, v{t1}, 4, v{vS}")
    if RT == 2:
        a(f"v_lshrrev_b32 v{vStat}, 5, v{L}")
        a(f"v_lshl_add_u32 v{vStat}, v{vStat}, 4, v{t0}")
        a(f"v_lshlrev_b32 v{vStat}, 6, v{vStat}")
    else:
        a(f"v_lshlrev_b32 v{vStat}, 6, v{t0}")
    a(f"v_and_b32 v{ones}, 1, v{t1}")
    a(f"v_lshl_add_u32 v{vStat}, v{ones}, 17, v{vStat}")
    if final:
        a(f"v_lshlrev_b32 v{vOut}, 11, v{t0}")
        a(f"v_lshl_add_u32 v{vOut}, v{ones}, 5, v{vOut}")
        a(f"v_lshrrev_b32 v{t1}, 1, v{t1}")
        a(f"v_lshl_add_u32 v{vOut}, v{t1}, 4, v{vOut}")
    a(f"v_mov_b32 v{ones}, 0x3f803f80")
    a("s_lshl_b32 s54, s42, 15")
    a("s_lshl_b32 s55, s38, 11")
    a("s_add_u32 s48, s54, s55")
    if XF: a(f"s_add_u32 s48, s48, {XF}")
    a("s_add_u32 s49, s48, 32768")
    if final:
        a("s_lshl_b32 s55, s38, 7"); a("s_add_u32 s50, s54, s55"); a("s_add_u32 s51, s50, 32768")
    a("s_lshl_b32 s54, s42, 10")
    a("s_lshl_b32 s55, s38, 2")
    a("s_add_u32 s52, s54, s55"); a(f"s_add_u32 s52, s52, {stout_off}")
    a(f"s_add_u32 s53, s54, {stin_off}")

def gen_k4(name, final, R=4, st=False, UN=4, lc=3, rot=None, **kw):
    a = A()
    RT = 2; NT = 4
    vX = 32; vD = 34; ones = 35; vWr = 36; L = 40; t0, t1, t2 = 41, 42, 43
    vRow, vStat, vS, vOut = 44, 45, 46, 47
    vSt = 48
    vXo = 64
    tmp = 80
    c = Core(a, name, RT, NT, 56, R, vWr, vX=vX, vD=vD, UN=UN, barstamp=(84 if st else None), ktab=((38, 39) if rot else None), **kw)
    a("s_cmp_ge_u32 s2, 256")
    a(f"s_cbranch_scc1 E_{name}")
    if st: stamp(a, 0)
    a("s_load_dwordx2 s[32:33], s[0:1], 72")
    if final: a("s_load_dwordx2 s[30:31], s[0:1], 56")
    a(f"v_lshrrev_b32 v{t0}, 6, v0")
    a(f"v_and_b32 v{L}, 63, v0")
    a(f"v_readfirstlane_b32 s34, v{t0}")
    tile_map_16x16(a, lc)
    rbB = 3584 * 16 * 2
    c.setup_addr(L, 34, rbB)
    a("s_lshl_b32 s42, s37, 3"); a("s_lshl_b32 s43, s34, 1"); a("s_add_u32 s42, s42, s43")
    a(f"s_mul_i32 s{c.sXoff}, s42, {rbB}"); a(f"s_add_u32 s{c.sXoff}, s{c.sXoff}, {HF}")
    a(f"s_mul_i32 s{c.sWoff}, s38, {56*8192}"); a(f"s_add_u32 s{c.sWoff}, s{c.sWoff}, {WF4}")
    if rot:
        G, mc, mr, dr = rot
        a(f"s_and_b32 s40, s36, {(1<<lc)-1}"); a(f"s_lshr_b32 s41, s36, {lc}")
        a(f"s_mul_i32 s40, s40, {mc}"); a(f"s_mul_i32 s43, s41, {mr}"); a("s_add_u32 s40, s40, s43")
        a(f"s_mul_i32 s41, s41, {dr}")
        c.setup_ktab(L, G, 40, 41, t0, t1)
    a("s_waitcnt lgkmcnt(0)")
    srd(a, 44, "s32", "s33", WS_USED)
    def hook(nvm):
        c.setup_rd()
        if final: srd(a, 56, "s30", "s31", 2048 * 2048)
        epi_setup(a, L, t0, t1, vRow, vStat, vS, vOut, ones, STB, STA, final)
        a(f"s_add_u32 s55, s53, {SQOFF}")
        if st: stamp(a, 1); a("s_waitcnt lgkmcnt(0)")
    n = 0
    for t in range(RT):
        for k in range(2):
            c.extra(-3 + n // 2, 3 + 8 * (n % 2), f"buffer_load_dwordx4 v[{vSt+8*t+4*k}:{vSt+8*t+4*k+3}], v{vS}, s[44:47], s{53 if k == 0 else 55} offen offset:{t*1024}", cost=2, vm=("stt", t, k)); n += 1
    n = 0
    for t in range(RT):
        for b in range(2):
            c.extra(-3 + n // 2, 6 + 8 * (n % 2), f"buffer_load_dwordx4 v[{vXo+8*t+4*b}:{vXo+8*t+4*b+3}], v{vX}, s[44:47], s{48+t} offen offset:{b*1024}", cost=2, vm=("xo", t, b)); n += 1
    c.emit(hook)
    if st: stamp(a, 2)
    a("s_waitcnt vmcnt(0)")
    ls = []
    for t in range(RT):
        r = Rec(); row_stats(r, vSt + 8 * t, vSt + 8 * t + 4, want_mean=False)
        r(f"v_mul_f32 v{vSt+8*t+4}, v{vSt+8*t+4}, v{vSt+8*t+4}")
        ls.append(r.l)
    for x in interleave(ls): a(x)
    resid_epilogue(a, c.accr, RT, lambda t, b: vXo + 8 * t + 4 * b, lambda t: vSt + 8 * t + 4, tmp, vX, vRow, 44,
                   lambda t: 48 + t, 52, vStat, final, srd_out=56, s_out=lambda t: 50 + t, vOut=vOut, ones=ones)
    if st:
        stamp(a, 3); a("s_waitcnt vmcnt(0)"); stamp(a, 4)
        stamp_store(a, 5, tmp, 44, 34)
        barstamp_store(a, 84, 9, tmp, 44)
    a.label(f"E_{name}")
    a("s_endpgm")
    return kernel_wrap(name, a.text(), vgpr=92, agpr=c.agpr_end, sgpr=102), UN * c.stage_bytes
```

```python
MB = 1 << 20
XF = 0
PQ = 4 * MB
HF = 8 * MB
WF1 = 22 * MB
WF2 = 28 * MB
WF3 = 30 * MB
WF4 = 44 * MB
STA = 51 * MB
STB = STA + 256 * 1024
SQOFF = 128 * 1024
CSF = STB + 256 * 1024
KV = CSF + 64 * 1024
KVZ = 128 * 1024
KVSZ = 132 * 1024
CSP = KV + 256 * 1024
CSQ = CSP + 448 * 1024
STAMP_OFF = 52 * MB + 512 * 1024
WS_USED = 53 * MB
```

```python
import sys
from common import *
from k0 import gen_k0
from k1 import gen_k1
from k2 import gen_k2
from k3 import gen_k3
from k4 import gen_k4
HDR = open("interleave_layers__linear_attn_block__glu_gated_bilinear__prompt.s.ref").read().split("; Override launch")[0]
def build(fn, st=False, k0kw={}, k1kw={}, k2kw={}, k3kw={}, k4kw={}):
    ks = []; L = {}
    K1 = dict(gh=3, npro=4, rdmargin=6); K1.update(k1kw)
    K3 = dict(); K3.update(k3kw)
    K4 = dict(gh=1, cap=3, R=2, rdmargin=2, npro=6); K4.update(k4kw)
    k, lds, n = gen_k0("k0_kernel", **k0kw); ks.append(k); L[0] = ("k0_kernel", (n,1,1), (256,1,1), lds)
    k, lds = gen_k1("k1_kernel", st=st, **K1); ks.append(k); L[1] = ("k1_kernel", (256,1,1), (256,1,1), lds)
    r = gen_k2("k2_kernel", st=st, **k2kw); ks.append(r[0]); L[2] = ("k2_kernel", (256,1,1), (r[2] if len(r) > 2 else 256,1,1), r[1])
    k, lds = gen_k3("k3_kernel", st=st, **K3); ks.append(k); L[3] = ("k3_kernel", (256,1,1), (256,1,1), lds)
    k, lds = gen_k4("k4a_kernel", False, st=st, **K4); ks.append(k); L[4] = ("k4a_kernel", (256,1,1), (256,1,1), lds)
    k, lds = gen_k4("k4b_kernel", True, st=st, **K4); ks.append(k); L[5] = ("k4b_kernel", (256,1,1), (256,1,1), lds)
    k, lds = gen_k3("k3a_kernel", st=st, rep=True, **K3); ks.append(k); L[7] = ("k3a_kernel", (256,1,1), (256,1,1), lds)
    L[6] = ("k1_kernel", (256,1,1), (512,1,1), L[1][3])
    ls = [L[i] for i in (0, 6, 2, 7, 4, 1, 2, 3, 5)]
    open(fn, "w").write(HDR + file_wrap(ls, ks))
if __name__ == "__main__":
    build("full.s")
    build("full_st.s", st=True)
```

```python
from g import *
from layout import *
def srd(a, s, lo, hi, nbytes):
    a(f"s_mov_b32 s{s}, {lo}"); a(f"s_mov_b32 s{s+1}, {hi}")
    a(f"s_mov_b32 s{s+2}, {nbytes}"); a(f"s_mov_b32 s{s+3}, 0x20000")
SID = [0]
def stamp(a, n):
    a(f"s_memtime s[{64+4*n}:{65+4*n}]")
    a(f"s_memrealtime s[{66+4*n}:{67+4*n}]")
def stamp_store(a, n, vtmp, srd_, wave_s, nw_log2=2):
    a("s_waitcnt lgkmcnt(0)")
    a(f"s_lshl_b32 s60, s2, {nw_log2}"); a(f"s_add_u32 s60, s60, s{wave_s}"); a("s_lshl_b32 s60, s60, 7"); a(f"s_add_u32 s60, s60, {STAMP_OFF + SID[0] * 0x80000}")
    a(f"v_mov_b32 v{vtmp+4}, 0")
    for i in range(n):
        for k in range(4): a(f"v_mov_b32 v{vtmp+k}, s{64+4*i+k}")
        a(f"buffer_store_dwordx4 v[{vtmp}:{vtmp+3}], v{vtmp+4}, s[{srd_}:{srd_+3}], s60 offen offset:{16*i}")
        a("s_nop 1")
def xlane_sum4(a, r, tmp):
    a(f"v_mov_b32 v{tmp}, v{r}")
    a("s_nop 1")
    a(f"v_permlane32_swap_b32 v{r}, v{tmp}")
    a(f"v_add_f32 v{r}, v{r}, v{tmp}")
    a(f"v_mov_b32 v{tmp}, v{r}")
    a("s_nop 1")
    a(f"v_permlane16_swap_b32 v{r}, v{tmp}")
    a(f"v_add_f32 v{r}, v{r}, v{tmp}")

def barstamp_store(a, base, n, vtmp, srd_):
    a("s_add_u32 s60, s60, 0x40000")
    for i in range(n):
        a(f"v_mov_b32 v{vtmp}, s{base+2*i}")
        a(f"buffer_store_dword v{vtmp}, v{vtmp+4}, s[{srd_}:{srd_+3}], s60 offen offset:{4*i}")
        a("s_nop 1")

def spread(c, k, m0, instrs, per=2, step=1, **kw):
    m = m0; first = True
    for i in range(0, len(instrs), per):
        kk, mm = k, m
        while mm >= c.M: mm -= c.M; kk += 1
        assert kk < 0 or k >= 0
        c.extra(kk, mm, instrs[i:i+per], **(kw if first else {}))
        first = False
        m += step
    return m

class Rec(A):
    def __call__(self, s): self.l.append(s)

def bf16_round(a, r):
    a(f"v_cvt_pk_bf16_f32 v{r}, v{r}, v{r}")
    a(f"v_and_b32 v{r}, 0xffff0000, v{r}")

def row_stats(a, bs, bq, want_mean=True, want_rstd=True):
    a(f"v_add_f32 v{bs}, v{bs}, v{bs+1}"); a(f"v_add_f32 v{bs+2}, v{bs+2}, v{bs+3}"); a(f"v_add_f32 v{bs}, v{bs}, v{bs+2}")
    xlane_sum4(a, bs, bs + 1)
    a(f"v_mul_f32 v{bs}, 0xba800000, v{bs}")
    if want_rstd:
        a(f"v_add_f32 v{bq}, v{bq}, v{bq+1}"); a(f"v_add_f32 v{bq+2}, v{bq+2}, v{bq+3}"); a(f"v_add_f32 v{bq}, v{bq}, v{bq+2}")
        xlane_sum4(a, bq, bq + 1)
        a(f"v_mul_f32 v{bq}, 0x3a800000, v{bq}")
        a(f"v_fma_f32 v{bq}, -v{bs}, v{bs}, v{bq}")
        a(f"v_max_f32 v{bq}, 0, v{bq}")
        bf16_round(a, bq)
        a(f"v_add_f32 v{bq}, 0x3727c5ac, v{bq}")
        bf16_round(a, bq)
        a(f"v_sqrt_f32 v{bq}, v{bq}")
        a("s_nop 0")
        bf16_round(a, bq)
        a(f"v_rcp_f32 v{bq}, v{bq}")
        a("s_nop 0")
    if want_mean:
        bf16_round(a, bs)

def interleave(lists):
    out = []
    n = max(len(l) for l in lists)
    for i in range(n):
        for l in lists:
            if i < len(l): out.append(l[i])
    return out

def resid_epilogue(a, accr, RT, xold, scale, tmp, vX, vRow, srd_ws, s_xnew, s_stat, vStat, final, srd_out=None, s_out=None, vOut=None, ones=None):
    vs = [tmp + 8 + 2 * t for t in range(RT)]
    for t in range(RT):
        a(f"v_mov_b32 v{vs[t]}, 0"); a(f"v_mov_b32 v{vs[t]+1}, 0")
        for b in range(2):
            xo = xold(t, b)
            for h in range(2):
                r = accr(2 * b + h, t)
                for p in range(2):
                    a(f"v_lshlrev_b32 v{tmp+4*h+2*p}, 16, v{xo+2*h+p}")
                    a(f"v_and_b32 v{tmp+4*h+2*p+1}, 0xffff0000, v{xo+2*h+p}")
                for e in range(4):
                    if scale is None: a(f"v_add_f32 v{r+e}, v{r+e}, v{tmp+4*h+e}")
                    else: a(f"v_fma_f32 v{r+e}, v{r+e}, v{scale(t)}, v{tmp+4*h+e}")
            for h in range(2):
                r = accr(2 * b + h, t)
                for p in range(2):
                    a(f"v_cvt_pk_bf16_f32 v{xo+2*h+p}, v{r+2*p}, v{r+2*p+1}")
            if not final:
                a(f"buffer_store_dwordx4 v[{xo}:{xo+3}], v{vX}, s[{srd_ws}:{srd_ws+3}], s{s_xnew(t)} offen offset:{b*1024}")
                for p in range(4):
                    a(f"v_dot2_f32_bf16 v{vs[t]}, v{xo+p}, v{ones}, v{vs[t]}")
                for p in range(4):
                    a(f"v_dot2_f32_bf16 v{vs[t]+1}, v{xo+p}, v{xo+p}, v{vs[t]+1}")
            else:
                a("s_nop 1")
                a(f"v_permlane16_swap_b32 v{xo}, v{xo+2}")
                a(f"v_permlane16_swap_b32 v{xo+1}, v{xo+3}")
                a(f"buffer_store_dwordx4 v[{xo}:{xo+3}], v{vOut}, s[{srd_out}:{srd_out+3}], s{s_out(t)} offen offset:{b*64}")
    if not final:
        a("s_nop 2")
        ls = []
        for t in range(RT):
            for k in range(2):
                r = Rec(); xlane_sum4(r, vs[t] + k, tmp + 2 * t + k); ls.append(r.l)
        for x in interleave(ls): a(x)
        a(f"v_cmp_gt_u32 vcc, 16, v{vRow}")
        a("s_nop 1")
        a(f"v_cndmask_b32 v{tmp}, v{vs[0]+1}, v{vs[0]}, vcc")
        if RT == 2:
            a(f"v_cndmask_b32 v{tmp+1}, v{vs[1]+1}, v{vs[1]}, vcc")
            a(f"v_cmp_gt_u32 vcc, 512, v{vX}")
            a("s_nop 1")
            a(f"v_cndmask_b32 v{tmp}, v{tmp+1}, v{tmp}, vcc")
        a(f"buffer_store_dword v{tmp}, v{vStat}, s[{srd_ws}:{srd_ws+3}], s{s_stat} offen")

class Seq:
    def __init__(self, a):
        self.a = a; self.vm = {}; self.ld = {}; self.nv = 0; self.nl = 0; self.dv = 0; self.dl = 0
    def wait(self, needvm=(), needlds=(), alllds=False):
        w = []
        if needvm:
            i = max(self.vm[t] for t in needvm) + 1
            if i > self.dv:
                n = min(self.nv - i, 63); w.append(f"vmcnt({n})"); self.dv = self.nv - n
        if needlds or alllds:
            i = self.nl if alllds else max(self.ld[t] for t in needlds) + 1
            if i > self.dl:
                n = min(self.nl - i, 15); w.append(f"lgkmcnt({n})"); self.dl = self.nl - n
        if w: self.a("s_waitcnt " + " ".join(w))
    def __call__(self, txt, vm=None, lds=None, needvm=(), needlds=()):
        self.wait(needvm, needlds)
        self.a(txt)
        if vm is not None: self.vm[vm] = self.nv; self.nv += 1
        if lds is not None: self.ld[lds] = self.nl; self.nl += 1

def merge(main, fill, start=0, per=None):
    out = []
    n = len(main) - start
    k = 0
    for i, m in enumerate(main):
        out.append(m)
        if i >= start:
            tgt = (len(fill) * (i - start + 1) + n - 1) // n if per is None else min(len(fill), per * (i - start + 1))
            while k < tgt: out.append(fill[k]); k += 1
    out.extend(fill[k:])
    return out

_pfn = [0]
def code_prefetch(a, targets, vL, v0_, v1_, s0=10):
    a(f"s_lshr_b32 s{s0+2}, s2, 3"); a(f"s_and_b32 s{s0+2}, s{s0+2}, 31"); a(f"s_lshl_b32 s{s0+2}, s{s0+2}, 10")
    a(f"v_and_b32 v{v0_}, 7, v{vL}")
    a(f"v_lshlrev_b32 v{v0_}, 7, v{v0_}")
    a(f"v_add_u32 v{v0_}, s{s0+2}, v{v0_}")
    for t in targets:
        a(f"s_getpc_b64 s[{s0}:{s0+1}]")
        a(f"s_add_u32 s{s0}, s{s0}, {t}@rel32@lo+4")
        a(f"s_addc_u32 s{s0+1}, s{s0+1}, {t}@rel32@hi+12")
        a(f"v_min_u32 v{v1_}, END_{t}-{t}-4, v{v0_}")
        a(f"global_load_dword v{v1_}, v{v1_}, s[{s0}:{s0+1}]")
    return len(targets)
```

```python
from g import *

class Core:
    def __init__(self, a, name, RT, NT, KSTEPS, R, vWr,
                 nontrans=(), UN=4, acc0=0, xa0=0, vX=None, vD=None,
                 bar_early=0, dma_span=0.9, xlead=None, gh=4, cap=2, npro=0, H=None, T=None, xstep=2048,
                 lgsafe=8, fine=2, accf=None, xf='a', wf='a', wa0=None, barstamp=None, rdmargin=9, skip='', init_acc=False, nwaves=4, ktab=None, m0_from=None, TM=1, tail_span=0.4, umap=None, XUN=None, XK=None, bs0=0, rddelay=5):
        self.rddelay = rddelay
        self.bs0 = bs0
        self.umap = umap; self.XUN = XUN; self.XK = XK
        self.TM = TM; self.tail_span = tail_span
        self.m0_from = m0_from; self._nk = 10**9
        self.ktab = ktab
        self.sXo = 4; self.sWo = 6; self.sXi = 8; self.sWi = 9
        self.init_acc = init_acc
        self.skip = skip
        self.rdmargin = rdmargin
        self.a = a; self.name = name
        self.RT = RT; self.NT = NT; self.KSTEPS = KSTEPS; self.ND = ND = NT * 2 // nwaves
        self.stage_bytes = stage_bytes = NT * 2048; self.wstep = stage_bytes; self.xstep = xstep
        self.R = R; self.vWr = vWr; self.SPG = 65536 // stage_bytes; self.NG = (UN + self.SPG - 1) // self.SPG; self.NDG = (ND + 3) // 4
        self.nontrans = set(nontrans)
        self.UN = UN
        self.acc0 = acc0; self.xa0 = xa0
        self.xslot = 2 * RT * 4
        if self.XUN is None: self.XUN = UN
        self.wa0 = xa0 + self.XUN * self.xslot if wa0 is None else wa0
        self.vX = vX; self.vD = vD
        self.bar_early = bar_early; self.dma_span = dma_span
        self.xlead = xlead if xlead is not None else UN - 1
        self.wlead = UN - 1
        self.gh = gh; self.cap = cap
        self.H = H if H is not None else UN
        self.T = T if T is not None else UN
        assert (KSTEPS - self.H - self.T) % UN == 0 and KSTEPS >= self.H + self.T
        assert self.T >= UN - 1 or self.T == 0
        assert (UN * NT) % R == 0 or KSTEPS == self.H + self.T
        self.agpr_end = self.wa0 + 8 * R
        self.M = NT * RT * 2
        self.npro = npro
        self.lgsafe = lgsafe; self.fine = fine
        self.accf = accf; self.xf = xf; self.wf = wf; self.barstamp = barstamp
        self.sW = 44; self.sWoff = 24; self.sXoff = 25; self.sM0 = 26; self.sCnt = 27
        self.mb = max((NT - R) * RT * 2 + RT * 2 - 1 - bar_early, 0)
        self.extras = []

    def extra(self, k, m, txt, cost=None, vm=None, needvm=(), lds=None, needlds=()):
        if isinstance(txt, str): txt = [txt]
        self.extras.append(dict(k=k, m=m, txt=txt, cost=len(txt) if cost is None else cost, vm=vm, needvm=tuple(needvm), lds=lds, needlds=tuple(needlds)))

    def accr(self, j, t): return self.acc0 + (j * self.RT + t) * 4
    def acc(self, j, t):
        if self.accf:
            f, r = self.accf(j, t); return f"{f}[{r}:{r+3}]"
        r = self.accr(j, t); return f"v[{r}:{r+3}]"
    def xreg(self, i, s, t):
        r = self.xa0 + (i % self.XUN) * self.xslot + (t * 2 + s) * 4
        return f"{self.xf}[{r}:{r+3}]"
    def wreg(self, f, s, q=None):
        r = self.wa0 + (f % self.R) * 8 + 4 * s
        if q is None: return f"{self.wf}[{r}:{r+3}]"
        return f"{self.wf}[{r+2*q}:{r+2*q+1}]"

    def txt_vm(self, tag):
        kt = self.ktab
        if tag[0] == "x":
            _, i, t, s = tag
            txt = []
            so = self.sXo + i % 2 if kt else self.sXoff
            if t == 0 and s == 0 and i > 0 and not kt:
                txt.append(f"s_add_u32 s{self.sXoff}, s{self.sXoff}, {self.xstep}")
            txt.append(f"buffer_load_dwordx4 {self.xreg(i,s,t)}, v{self.vX + t}, s[{self.sW}:{self.sW+3}], s{so} offen offset:{s*1024}")
            if t == 0 and s == 0 and kt:
                txt.append(f"s_add_u32 s{self.sXi}, s{self.sXi}, 1")
                txt.append(f"v_readlane_b32 s{self.sXo + (i+1) % 2}, v{kt[0]}, s{self.sXi}")
            return txt
        _, i, d = tag
        txt = []
        so = self.sWo + i % 2 if kt else self.sWoff
        if d % 4 == 0 or (self.m0_from is not None and i >= self._nk - self.m0_from):
            txt.append(f"s_add_u32 m0, s{self.sM0}, {(i % self.UN) * self.stage_bytes + 4096 * (d // 4)}")
            if d == 0 and kt:
                txt.append(f"s_add_u32 s{self.sWi}, s{self.sWi}, 1")
            elif d == 0 and i > 0:
                txt.append(f"s_add_u32 s{self.sWoff}, s{self.sWoff}, {self.wstep}")
            else:
                txt.append("s_nop 0")
        txt.append(f"buffer_load_dwordx4 v{self.vD + d // 4}, s[{self.sW}:{self.sW+3}], s{so} offen offset:{(d%4)*1024} lds")
        if d == 0 and kt:
            txt.append(f"v_readlane_b32 s{self.sWo + (i+1) % 2}, v{kt[1]}, s{self.sWi}")
            if self.ND < 4: txt.append("s_nop 1")
        return txt
    def txt_rd(self, tag):
        _, f, s = tag
        i, j = self.unit(f)
        stg = i % self.UN
        return [f"ds_read_b128 {self.wreg(f,s)}, v{self.vWr + stg // self.SPG} offset:{(stg % self.SPG) * self.stage_bytes + (j*2+s)*1024}"]

    def unit(self, f, nk=None):
        nk = self._nk if nk is None else nk
        e = f - (nk - self.TM) * self.NT
        if e < 0: return f // self.NT, f % self.NT
        return nk - self.TM + e % self.TM, e // self.TM
    def fin_slot(self, j, t):
        e = j * self.TM + self.TM - 1
        ts = list(range(self.RT))
        if e % 2: ts = ts[::-1]
        pos = e * 2 * self.RT + ts.index(t) * 2 + 1
        return pos
    def fin_order(self, j):
        e = j * self.TM + self.TM - 1
        ts = list(range(self.RT))
        return ts[::-1] if e % 2 else ts
    def extra_at(self, pos, txt, **kw):
        self.extra(-self.TM + pos // self.M, pos % self.M, txt, **kw)
    def mfma_seq(self):
        seq = []
        for j in range(self.NT):
            ts = list(range(self.RT))
            if j % 2: ts = ts[::-1]
            for n, t in enumerate(ts):
                ss = (0, 1) if n % 2 == 0 else (1, 0)
                for s in ss: seq.append((j, t, s))
        return seq
    def slot_of(self, j, t):
        return max(n for n, (jj, tt, s) in enumerate(self.mfma_seq()) if jj == j and tt == t)

    def steady_vm_slots(self):
        M, mb, ND, RT = self.M, self.mb, self.ND, self.RT
        res = []
        span = int(M * self.dma_span)
        for d in range(ND):
            res.append((mb + 1 + (d * span) // ND, ("w", self.wlead, d)))
        nx = 2 * RT
        for n in range(nx):
            res.append((((2 * n + 1) * M) // (2 * nx), ("x", self.xlead, n // 2, n % 2)))
        return res

    def build(self, nk):
        M, NT, RT, R = self.M, self.NT, self.RT, self.R
        tot = nk * M
        self._nk = nk
        W = []; X = []
        for i in range(-max(self.UN, self.xlead) - 1, nk):
            for p, tg in self.steady_vm_slots():
                tag = (tg[0], i + tg[1]) + tuple(tg[2:])
                if tag[1] < 0 or tag[1] >= nk: continue
                if tag[0] == "x" and self.XK is not None and tag[1] >= self.XK: continue
                if tag[0] == "w" and tag[1] > nk - self.TM:
                    p = self.mb + 1 + (tag[2] * int(M * self.tail_span)) // self.ND
                (W if tag[0] == "w" else X).append((i * M + p, tag))
        W.sort(key=lambda z: z[1][1:]); X.sort(key=lambda z: z[1][1:])
        pro = [t for S, t in W if t[1] == 0] + [t for S, t in X if t[1] == 0]
        W = [z for z in W if z[1][1] > 0]; X = [z for z in X if z[1][1] > 0]
        def dl(tag):
            i = min(tag[1], nk - self.TM)
            return (i - 1) * M + self.mb if tag[0] == "w" else i * M
        for _ in range(self.npro):
            q = W if dl(W[0][1]) <= dl(X[0][1]) else X
            assert q[0][0] < 0
            pro.append(q.pop(0)[1])
        load = [0] * tot
        post = [[] for _ in range(tot)]
        for e in self.extras:
            k = e["k"] if e["k"] >= 0 else nk + e["k"]
            assert (0 <= e["k"] < self.H) or (-self.T <= e["k"] < 0), e
            post[k * M + e["m"]].append(("ex", e)); load[k * M + e["m"]] += e["cost"]
        var = lambda m: m < self.H * M or m >= (nk - self.T) * M
        last = -10**9; skipped = 0
        for m in range(tot):
            if m - last < (self.gh if m < self.H * M else 1): continue
            cand = [q for q in (W, X) if q and q[0][0] <= m]
            if not cand: continue
            if (load[m] > 0 or (m + 1) % (2 * RT) == 0) and (m % M) != M - 1 and M > 16 and skipped < 2:
                skipped += 1
                continue
            skipped = 0
            q = min(cand, key=lambda q: dl(q[0][1]))
            S, tag = q.pop(0)
            assert m < dl(tag), ("vm op misses deadline", tag, m)
            post[m].append(("vm", tag)); load[m] += 2 + (len(self.txt_vm(tag)) - 1)
            last = m
            if not var(m): assert m - S <= 3, ("backlog not cleared in head", tag, S, m)
        assert not W and not X
        pro_rd = [("lds", ("r", f, s)) for f in range(R) for s in range(2)]
        m_next = 0
        for f in range(nk * NT - R):
            e = f * 2 * RT + 2 * RT - 1
            m = max(e, m_next)
            kend = (e // M + 1) * M - 1
            lim = max(e, min(kend, e + (R - 1) * 2 * RT - self.rdmargin, e + self.rddelay))
            m = min(m, lim)
            for s in range(2):
                while load[m] >= self.cap - 1 and m < lim: m += 1
                post[m].append(("lds", ("r", f + R, s))); load[m] += 1
                if m < lim: m += 1
            m_next = m
        seq = self.mfma_seq()
        steps = []
        for i in range(nk):
            it = []
            seen = set()
            for n, (j, t, s) in enumerate(seq):
                if n == self.mb and i + 1 <= nk - self.TM: it.append(("bar", i))
                first = (i == 0 and (j, t) not in seen); seen.add((j, t))
                f = i * NT + j
                ii, jj = self.unit(f)
                if self.umap: ii, jj = self.umap(ii, jj)
                it.append(("mfma", ii, jj, t, s, first, f))
                it.extend(post[i * M + n])
            steps.append(it)
        pitems = [("vm", t) for t in pro] + [("hook",), ("bar", -1)] + pro_rd
        return pitems, steps

    def emit(self, hook=None):
        a = self.a
        UN, H, T = self.UN, self.H, self.T
        niter = (self.KSTEPS - H - T) // UN
        simit = min(niter, 3)
        nk = H + UN * simit + T
        pitems, steps = self.build(nk)
        def norm(item, base):
            if item[0] == "vm": t = item[1]; return ("vm", t[0], t[1] - base) + tuple(t[2:])
            if item[0] == "lds": t = item[1]; return ("lds", t[1] - base * self.NT) + tuple(t[2:])
            if item[0] == "bar": return ("bar",)
            return ("mfma",) + tuple(item[2:5])
        for i in range(H + UN, H + UN * simit):
            assert [norm(x, i) for x in steps[i]] == [norm(x, i - UN) for x in steps[i - UN]], ("not periodic", i)
        prog = [(("P", n), it) for n, it in enumerate(pitems)]
        for i in range(nk):
            for n, it in enumerate(steps[i]):
                if i < H: key = ("H", i, n)
                elif i < H + UN * simit: key = ("L", (i - H) % UN, n)
                else: key = ("T", i - (H + UN * simit), n)
                prog.append((key, it))
        vmq = {}; ldq = {}; nv = 0; nl = 0
        need = {}
        mn = lambda x, y: y if x is None else (x if y is None else min(x, y))
        for key, item in prog:
            vmN = lgN = None
            if item[0] == "vm": vmq[item[1]] = nv; nv += 1
            elif item[0] == "lds": ldq[item[1]] = nl; nl += 1
            elif item[0] == "ex":
                e = item[1]
                if e["needvm"]: vmN = nv - 1 - max(vmq[t] for t in e["needvm"])
                if e["needlds"]: lgN = nl - 1 - max(ldq[t] for t in e["needlds"])
                if e["vm"] is not None: vmq[e["vm"]] = nv; nv += 1
                if e["lds"] is not None: ldq[e["lds"]] = nl; nl += 1
            elif item[0] == "bar":
                i = item[1]
                ks = [i + 1] if i + 1 < nk - self.TM else range(i + 1, nk)
                vmN = nv - 1 - max(vmq[("w", k_, d)] for d in range(self.ND) for k_ in ks)
            elif item[0] == "mfma":
                _, i, j, t, s, first, f = item
                if i < self.fine: vmN = nv - 1 - max(vmq[("x", i, t, 0)], vmq[("x", i, t, 1)])
                else: vmN = nv - 1 - max(vmq[("x", i, tt, ss)] for tt in range(self.RT) for ss in range(2))
                lgN = nl - 1 - max(ldq[("r", f, ss)] for ss in range(2))
            if vmN is not None or lgN is not None:
                o = need.get(key, (None, None))
                need[key] = (mn(o[0], vmN), mn(o[1], lgN))
        self.vmq = vmq; self.nv = nv
        st = dict(vm=10**9, lg=10**9)
        npro_vm = sum(1 for it in pitems if it[0] == "vm")
        def emit_items(items):
            for key, item in items:
                if key in need:
                    vmN, lgN = need[key]
                    w = []
                    if vmN is not None and vmN < st["vm"]:
                        vmN = min(vmN, 63)
                        w.append(f"vmcnt({vmN})"); st["vm"] = vmN
                    if lgN is not None and lgN < st["lg"]:
                        lgN = min(lgN, 15 if (key[0] == "H" and key[1] == 0) else self.lgsafe)
                        w.append(f"lgkmcnt({lgN})"); st["lg"] = lgN
                    if w: a("s_waitcnt " + " ".join(w))
                if item[0] == "vm":
                    if not (item[1][0] in self.skip and item[1][1] >= UN):
                        for tx in self.txt_vm(item[1]): a(tx)
                    st["vm"] += 1
                elif item[0] == "lds":
                    if not ('r' in self.skip and key[0] != 'P'):
                        for tx in self.txt_rd(item[1]): a(tx)
                    st["lg"] += 1
                elif item[0] == "ex":
                    for tx in item[1]["txt"]: a(tx)
                    if item[1]["vm"] is not None: st["vm"] += 1
                    if item[1]["lds"] is not None: st["lg"] += 1
                elif item[0] == "bar":
                    a("s_barrier")
                    if self.barstamp is not None:
                        n = {"P": 0, "H": 1, "L": None, "T": 1 + H}[key[0]]
                        if n is not None:
                            if key[0] != "P": n += key[1]
                            n -= self.bs0
                            if 0 <= n < 9: a(f"s_memtime s[{self.barstamp+2*n}:{self.barstamp+2*n+1}]")
                elif item[0] == "hook":
                    if hook: hook(npro_vm)
                    st["vm"] = st["lg"] = 10**9
                elif item[0] == "mfma":
                    _, i, j, t, s, first, f = item
                    w = self.wreg(f, s); x = self.xreg(i, s, t)
                    A_, B_ = (x, w) if j in self.nontrans else (w, x)
                    c = "0" if (first and not self.init_acc) else self.acc(j, t)
                    a(f"v_mfma_f32_16x16x32_bf16 {self.acc(j,t)}, {A_}, {B_}, {c}")
        emit_items([p for p in prog if p[0][0] in ("P", "H")])
        if niter > 0:
            if niter > 1:
                a(f"s_mov_b32 s{self.sCnt}, {niter}")
                a.label(f"L_{self.name}")
                st["vm"] = st["lg"] = 10**9
            body = []
            for i in range(H, H + UN):
                for n, it in enumerate(steps[i]): body.append((("L", i - H, n), it))
            emit_items(body)
            if niter > 1:
                a(f"s_sub_u32 s{self.sCnt}, s{self.sCnt}, 1")
                a(f"s_cmp_lg_u32 s{self.sCnt}, 0")
                a(f"s_cbranch_scc1 L_{self.name}")
        emit_items([p for p in prog if p[0][0] == "T"])
    def wait_vm(self, tags):
        return self.nv - 1 - max(self.vmq[t] for t in tags)

    def setup_addr(self, L, s_wave, rbB):
        a = self.a
        a(f"v_lshlrev_b32 v{self.vX}, 4, v{L}")
        for t in range(1, self.RT): a(f"v_add_u32 v{self.vX+t}, {t*rbB}, v{self.vX}")
        a(f"s_mul_i32 s{self.sM0}, s{s_wave}, {self.ND*1024}")
        a(f"v_add_u32 v{self.vD}, s{self.sM0}, v{self.vX}")
        for g in range(1, self.NDG): a(f"v_add_u32 v{self.vD+g}, {4096*g}, v{self.vD}")
    def setup_rd(self):
        a = self.a
        for g in range(self.NG):
            if g == 0: a(f"v_mov_b32 v{self.vWr}, v{self.vX}")
            else: a(f"v_add_u32 v{self.vWr+g}, {g*self.SPG*self.stage_bytes}, v{self.vX}")

    def setup_ktab(self, L, G, s_rho, s_j0, t0, t1):
        a = self.a; vKX, vKW = self.ktab
        a(f"v_add_u32 v{t0}, s{s_j0}, v{L}")
        a(f"v_subrev_u32 v{t1}, {self.KSTEPS}, v{t0}")
        a(f"v_min_u32 v{t0}, v{t0}, v{t1}")
        a(f"v_add_u32 v{t1}, s{s_rho}, v{t0}")
        a(f"v_and_b32 v{t1}, {G-1}, v{t1}")
        a(f"v_and_b32 v{t0}, {0x100 - G}, v{t0}")
        a(f"v_or_b32 v{t0}, v{t0}, v{t1}")
        a(f"v_mul_u32_u24 v{vKX}, {self.xstep}, v{t0}")
        a(f"v_mul_u32_u24 v{vKW}, {self.wstep}, v{t0}")
        a(f"v_add_u32 v{vKX}, s{self.sXoff}, v{vKX}")
        a(f"v_add_u32 v{vKW}, s{self.sWoff}, v{vKW}")
        a(f"s_mov_b32 s{self.sXi}, 0"); a(f"s_mov_b32 s{self.sWi}, 0")
        a(f"v_readlane_b32 s{self.sXo}, v{vKX}, 0")
        a(f"v_readlane_b32 s{self.sWo}, v{vKW}, 0")
```

```python
from common import *

def plane_dma_lane(a, L, pitch, dst, t0, t1, t2):
    a(f"v_lshrrev_b32 v{t0}, 3, v{L}")
    a(f"v_bfe_u32 v{t1}, v{L}, 4, 2")
    a(f"v_lshlrev_b32 v{t1}, 1, v{t1}")
    a(f"v_and_b32 v{t2}, 7, v{L}")
    a(f"v_xor_b32 v{t1}, v{t1}, v{t2}")
    a(f"v_lshlrev_b32 v{t1}, 4, v{t1}")
    a(f"v_mul_u32_u24 v{t0}, {pitch}, v{t0}")
    a(f"v_add_u32 v{dst}, v{t0}, v{t1}")

def plane_read_bases(a, L, vWr, t0, t1, t2):
    a(f"v_lshrrev_b32 v{t0}, 2, v{L}")
    a(f"v_lshlrev_b32 v{t0}, 7, v{t0}")
    a(f"v_and_b32 v{t1}, 3, v{L}")
    a(f"v_lshl_add_u32 v{t0}, v{t1}, 3, v{t0}")
    a(f"v_bfe_u32 v{t1}, v{L}, 3, 2")
    for aa in range(4):
        a(f"v_xor_b32 v{t2}, {aa}, v{t1}")
        a(f"v_lshl_add_u32 v{vWr+aa}, v{t2}, 5, v{t0}")

def gen_k0(name, ldflag="nt", stflag="", st=False, ngate=48, nxt=(), tlb=0, v2=False):
    a = A()
    N1, N3, N2 = 192, 4 * ngate, 64
    NW = N1 + N3 + N2; NX = 128
    a(f"s_cmp_ge_u32 s2, {NW+NX}")
    a(f"s_cbranch_scc1 E_{name}")
    a("s_load_dwordx4 s[4:7], s[0:1], 0")
    a("s_load_dwordx2 s[40:41], s[0:1], 16")
    a("s_load_dwordx4 s[8:11], s[0:1], 32")
    a("s_load_dwordx2 s[12:13], s[0:1], 72")
    a("v_and_b32 v1, 63, v0")
    a("v_lshrrev_b32 v2, 6, v0")
    a("s_nop 0")
    a("v_readfirstlane_b32 s14, v2")
    if nxt: code_prefetch(a, nxt, 1, 62, 63, s0=56)
    a(f"s_cmp_lt_u32 s2, {NX}")
    a(f"s_cbranch_scc1 X_{name}")
    a(f"s_sub_u32 s15, s2, {NX}")
    a("s_waitcnt lgkmcnt(0)")
    a(f"s_cmp_ge_u32 s15, {N1}")
    a(f"s_cbranch_scc1 C2_{name}")
    a("s_mul_i32 s36, s15, 1366"); a("s_lshr_b32 s36, s36, 16")
    a("s_mul_i32 s22, s36, 48"); a("s_sub_u32 s22, s15, s22")
    a("s_mov_b32 s16, s6"); a("s_mov_b32 s17, s7"); a("s_movk_i32 s21, 6144"); a(f"s_mov_b32 s18, {1024*6144}")
    a("s_and_b32 s23, s22, 15"); a(f"s_mul_i32 s23, s23, {16*24576}")
    a("s_lshr_b32 s24, s22, 4")
    if v2:
        a("s_lshl_b32 s25, s36, 2"); a("s_add_u32 s25, s25, s14")
        a("s_lshl_b32 s26, s25, 14"); a("s_sub_u32 s27, s24, 1"); a("s_lshl_b32 s27, s27, 13"); a("s_add_u32 s26, s26, s27")
        a("s_lshl_b32 s27, s25, 11"); a(f"s_add_u32 s27, s27, {16*16384}")
        a("s_cmp_eq_u32 s24, 0")
        a("s_cselect_b32 s26, s27, s26"); a("s_cselect_b32 s27, 16, 1"); a("s_lshl_b32 s27, s27, 11")
        a("s_add_u32 s30, s23, s26"); a(f"s_add_u32 s30, s30, {WF1}")
        for j in range(1, 4): a(f"s_add_u32 s{30+j}, s{29+j}, s27")
        a("s_mov_b32 s34, 0")
    else:
        a("s_lshl_b32 s24, s24, 13")
        a("s_add_u32 s30, s23, s24"); a(f"s_add_u32 s30, s30, {WF1}")
        for j in range(1, 4): a(f"s_add_u32 s{30+j}, s30, {j*2048}")
        a("s_movk_i32 s34, 24576")
    a("s_mov_b32 s35, 1")
    a(f"s_lshl_b32 s37, s15, 8"); a(f"s_add_u32 s37, s37, {CSQ}")
    a(f"s_branch G_{name}")
    a.label(f"C2_{name}")
    a(f"s_cmp_ge_u32 s15, {N1+N2}")
    a(f"s_cbranch_scc1 C3_{name}")
    a(f"s_sub_u32 s15, s15, {N1}")
    a("s_lshr_b32 s36, s15, 4"); a("s_and_b32 s22, s15, 15")
    a("s_movk_i32 s21, 2048"); a("s_movk_i32 s34, 8192"); a("s_mov_b32 s35, 0")
    a("s_mov_b32 s16, s40"); a("s_mov_b32 s17, s41"); a(f"s_mov_b32 s18, {1024*2048}")
    a("s_lshl_b32 s30, s22, 17"); a(f"s_add_u32 s30, s30, {WF2}")
    for j in range(1, 4): a(f"s_add_u32 s{30+j}, s30, {j*2048}")
    a(f"s_branch G_{name}")
    a.label(f"C3_{name}")
    a(f"s_sub_u32 s15, s15, {N1+N2}")
    a(f"s_mul_i32 s36, s15, {(65536 + ngate - 1) // ngate}"); a("s_lshr_b32 s36, s36, 16")
    a(f"s_mul_i32 s22, s36, {ngate}"); a("s_sub_u32 s22, s15, s22")
    a("s_mov_b32 s38, s22")
    a("s_cmp_ge_u32 s22, 56")
    a("s_cselect_b32 s16, s10, s8"); a("s_cselect_b32 s17, s11, s9")
    a("s_cselect_b32 s23, 56, 0"); a("s_cselect_b32 s24, 2048, 0")
    a("s_sub_u32 s22, s22, s23"); a(f"s_add_u32 s24, s24, {WF3}")
    a("s_movk_i32 s21, 7168"); a(f"s_mov_b32 s18, {1024*7168}")
    for j in range(4):
        a(f"s_lshl_b32 s25, s22, 2"); a(f"s_add_u32 s25, s25, {j}")
        a("s_mul_i32 s26, s25, 9363"); a("s_lshr_b32 s26, s26, 16")
        a("s_mul_i32 s27, s26, 7"); a("s_sub_u32 s27, s25, s27")
        a("s_and_b32 s28, s26, 1"); a("s_mul_i32 s28, s28, 6"); a("s_add_u32 s27, s27, s28")
        a("s_sub_u32 s28, s27, 7"); a("s_min_u32 s27, s27, s28")
        a("s_lshl_b32 s27, s27, 12")
        a(f"s_mul_i32 s26, s26, {16*28672}")
        a(f"s_add_u32 s{30+j}, s26, s27"); a(f"s_add_u32 s{30+j}, s{30+j}, s24")
    a("s_movk_i32 s34, 28672")
    a("s_mov_b32 s35, 2")
    a.label(f"G_{name}")
    a("s_lshl_b32 s36, s36, 2"); a("s_add_u32 s36, s36, s14")
    a("s_mov_b32 s19, 0x20000")
    plane_dma_lane(a, 1, "s21", 3, 4, 5, 6)
    a("s_lshl_b32 s20, s22, 7")
    a("s_lshl_b32 s23, s21, 6"); a("s_mul_i32 s23, s23, s36"); a("s_add_u32 s20, s20, s23")
    a("s_lshl_b32 s24, s21, 3")
    a("s_lshl_b32 s26, s14, 13")
    for d in range(8):
        a(f"s_add_u32 m0, s26, {d*1024}")
        if d: a("s_add_u32 s20, s20, s24")
        else: a("s_nop 0")
        a(f"buffer_load_dwordx4 v3, s[16:19], s20 offen {ldflag} lds")
    srd(a, 44, "s12", "s13", WS_USED)
    a("s_mul_i32 s23, s34, s36")
    for j in range(4): a(f"s_add_u32 s{30+j}, s{30+j}, s23")
    plane_read_bases(a, 1, 8, 4, 5, 6)
    for aa in range(4): a(f"v_add_u32 v{8+aa}, s26, v{8+aa}")
    a("v_lshlrev_b32 v7, 4, v1")
    for e in range(4): a(f"v_mov_b32 v{12+e}, 0x3f803f80")
    a("v_cmp_gt_u32 s[50:51], 16, v1"); a("v_cmp_gt_u32 s[52:53], 32, v1"); a("v_cmp_gt_u32 s[54:55], 48, v1")
    a("s_waitcnt vmcnt(0)")
    for j in range(4):
        for s in range(2):
            for qq in range(2):
                r = 16 + j * 8 + s * 4 + qq * 2
                a(f"ds_read_b64_tr_b16 v[{r}:{r+1}], v{8+j} offset:{(32*s+16*qq)*128}")
    for j in range(4):
        for s in range(2):
            r = 16 + j * 8 + s * 4
            a(f"s_waitcnt lgkmcnt({14 - 2*(2*j+s)})")
            a(f"buffer_store_dwordx4 v[{r}:{r+3}], v7, s[44:47], s{30+j} offen offset:{s*1024} {stflag}")
            a(f"v_mfma_f32_16x16x32_bf16 v[{48+4*j}:{51+4*j}], v[12:15], v[{r}:{r+3}], {'0' if s == 0 else f'v[{48+4*j}:{51+4*j}]'}")
    a("s_cmp_eq_u32 s35, 0")
    a(f"s_cbranch_scc1 E_{name}")
    a("s_nop 6")
    a("v_cndmask_b32 v56, v60, v56, s[54:55]")
    a("v_cndmask_b32 v52, v56, v52, s[52:53]")
    a("v_cndmask_b32 v48, v52, v48, s[50:51]")
    a("v_lshlrev_b32 v2, 2, v1")
    a("s_cmp_eq_u32 s35, 1")
    a(f"s_cbranch_scc1 Q_{name}")
    a(f"s_mul_i32 s23, s36, {7168*4}"); a("s_lshl_b32 s24, s38, 8"); a("s_add_u32 s23, s23, s24"); a(f"s_add_u32 s23, s23, {CSP}")
    a("buffer_store_dword v48, v2, s[44:47], s23 offen")
    a("s_endpgm")
    a.label(f"Q_{name}")
    a("v_lshlrev_b32 v3, 2, v0")
    a("ds_write_b32 v3, v48 offset:32768")
    a("s_waitcnt lgkmcnt(0)")
    a("s_barrier")
    a("s_cmp_lg_u32 s14, 0")
    a(f"s_cbranch_scc1 E_{name}")
    for i in range(4): a(f"ds_read_b32 v{60+i}, v3 offset:{32768+i*256}")
    a("s_waitcnt lgkmcnt(0)")
    a("v_add_f32 v60, v60, v61"); a("v_add_f32 v62, v62, v63"); a("v_add_f32 v60, v60, v62")
    a("buffer_store_dword v60, v2, s[44:47], s37 offen")
    a("s_endpgm")
    a.label(f"X_{name}")
    a("s_mov_b32 s15, s2")
    a("v_and_b32 v3, 15, v1")
    a("v_lshrrev_b32 v4, 4, v1")
    a("v_lshlrev_b32 v5, 11, v3")
    a("v_and_b32 v6, 1, v4")
    a("v_lshl_add_u32 v5, v6, 5, v5")
    a("v_lshrrev_b32 v7, 1, v4")
    a("v_lshl_add_u32 v5, v7, 4, v5")
    a("s_lshl_b32 s20, s15, 15"); a("s_lshl_b32 s21, s14, 9"); a("s_add_u32 s20, s20, s21")
    a("s_waitcnt lgkmcnt(0)")
    srd(a, 16, "s4", "s5", 2048 * 2048)
    srd(a, 24, "s12", "s13", WS_USED)
    for b in range(8):
        a(f"buffer_load_dwordx4 v[{16+4*b}:{19+4*b}], v5, s[16:19], s20 offen offset:{b*64}")
    if tlb:
        a(f"v_mul_u32_u24 v61, {tlb // 256}, v0"); a("v_lshlrev_b32 v61, 8, v61")
        a("buffer_load_dword v61, v61, s[24:27], 0 offen")
    for e in range(4): a(f"v_mov_b32 v{8+e}, 0")
    a("v_lshlrev_b32 v12, 4, v0")
    a(f"s_mul_i32 s22, s15, 1088"); a(f"s_add_u32 s22, s22, {KV}")
    a("v_cmp_gt_u32 vcc, 68, v0")
    a("s_and_saveexec_b64 s[28:29], vcc")
    a(f"s_cbranch_execz Z_{name}")
    a("buffer_store_dwordx4 v[8:11], v12, s[24:27], s22 offen sc1")
    a.label(f"Z_{name}")
    a("s_mov_b64 exec, s[28:29]")
    a("v_lshlrev_b32 v12, 4, v1")
    a("v_mov_b32 v13, 0x3f803f80")
    a("s_lshl_b32 s21, s15, 15"); a("s_lshl_b32 s22, s14, 13"); a("s_add_u32 s21, s21, s22"); a(f"s_add_u32 s21, s21, {XF}")
    a("s_add_u32 s22, s21, 4096")
    for e in range(8): a(f"v_mov_b32 v{48+e}, 0")
    a("s_waitcnt vmcnt(0)")
    for b in range(8):
        r = 16 + 4 * b
        a(f"v_permlane16_swap_b32 v{r}, v{r+2}")
        a(f"v_permlane16_swap_b32 v{r+1}, v{r+3}")
        a(f"buffer_store_dwordx4 v[{r}:{r+3}], v12, s[24:27], s{21 + b // 4} offen offset:{(b%4)*1024}")
        for p in range(4):
            a(f"v_dot2_f32_bf16 v{48+b//2}, v{r+p}, v13, v{48+b//2}")
            a(f"v_dot2_f32_bf16 v{52+b//2}, v{r+p}, v{r+p}, v{52+b//2}")
    a("s_nop 2")
    ls = []
    for e in range(8):
        r = Rec(); xlane_sum4(r, 48 + e, 56 + e); ls.append(r.l)
    for x in interleave(ls):
        if x.startswith("s_nop"): continue
        a(x)
    a("v_cmp_eq_u32 vcc, 0, v6")
    a("v_lshlrev_b32 v5, 6, v3")
    a("v_lshl_add_u32 v5, v6, 17, v5")
    for e in range(4): a(f"v_cndmask_b32 v{48+e}, v{52+e}, v{48+e}, vcc")
    a("s_lshl_b32 s21, s15, 10"); a("s_lshl_b32 s22, s14, 4"); a("s_add_u32 s21, s21, s22"); a(f"s_add_u32 s21, s21, {STA}")
    a("buffer_store_dwordx4 v[48:51], v5, s[24:27], s21 offen")
    a.label(f"E_{name}")
    a("s_endpgm")
    return kernel_wrap(name, a.text(), vgpr=64, sgpr=64), 32768 + 1024, NW + NX
```

```python
from common import *
from core import Core
from k1 import pk_bc

def gen_k1b(name, R=4, st=False, nxt=(), UN=6, per=2, e0=3, pk=False, sig=None, poll=238, **kw):
    a = A()
    RT = 2; NT = 8
    STAGE = 16384
    AUX = UN * STAGE
    RED = AUX + 2048
    REDW = 8448
    LDS = RED + 4 * REDW
    KVL = RED
    wa0 = 96
    vX = 128; vD = 130; vWr = 131
    L = 133; t0, t1, t2 = 134, 135, 136
    vA = 137; vB = 138; vZw = 139; vOne = 140
    vSt = 142
    vN4 = 158
    vCs = 174
    pt = 182
    vKV = 190
    tmp = 238
    vRed = 254; vRedG = 255
    def umap(stg, u):
        if stg < 16: return stg, u
        return 8 * ((stg - 16) % 2) + u, 8 + (stg - 16) // 2
    c = Core(a, name, RT, NT, 24, R, vWr, nontrans=range(0, 8), vX=vX, vD=vD, init_acc=True, xf='a', wf='v', xa0=0, wa0=wa0,
             UN=UN, XUN=16, XK=16, umap=umap, H=12, T=12, barstamp=(84 if st else None), **kw)
    a("s_cmp_ge_u32 s2, 256")
    a(f"s_cbranch_scc1 E_{name}")
    if st: stamp(a, 0)
    a("s_load_dwordx2 s[32:33], s[0:1], 72")
    a(f"v_lshrrev_b32 v{t0}, 6, v0")
    a(f"v_and_b32 v{L}, 63, v0")
    a(f"v_readfirstlane_b32 s34, v{t0}")
    a(f"v_lshlrev_b32 v{vA}, 2, v0")
    a("s_and_b32 s35, s2, 7"); a("s_lshr_b32 s36, s2, 3")
    a("s_lshr_b32 s37, s35, 2"); a("s_lshl_b32 s37, s37, 3"); a("s_lshr_b32 s38, s36, 2"); a("s_add_u32 s37, s37, s38")
    a("s_and_b32 s38, s35, 3"); a("s_lshl_b32 s38, s38, 2"); a("s_and_b32 s39, s36, 3"); a("s_add_u32 s38, s38, s39")
    rbB = 32768
    c.setup_addr(L, 34, rbB)
    a("s_lshl_b32 s42, s37, 3"); a("s_lshl_b32 s43, s34, 1"); a("s_add_u32 s42, s42, s43")
    a(f"s_lshl_b32 s{c.sXoff}, s42, 15")
    if XF: a(f"s_add_u32 s{c.sXoff}, s{c.sXoff}, {XF}")
    a(f"s_mul_i32 s{c.sWoff}, s38, {24*STAGE}"); a(f"s_add_u32 s{c.sWoff}, s{c.sWoff}, {WF1}")
    a(f"v_and_b32 v{t0}, 15, v{L}")
    a(f"v_lshrrev_b32 v{t1}, 4, v{L}")
    a(f"v_lshlrev_b32 v{pt+1}, 6, v{t0}")
    a(f"v_lshl_add_u32 v{pt+1}, v{t1}, 4, v{pt+1}")
    a(f"v_lshlrev_b32 v{pt+2}, 2, v{L}")
    a("s_lshl_b32 s48, s42, 10"); a(f"s_add_u32 s48, s48, {STA}"); a(f"s_add_u32 s49, s48, {SQOFF}")
    a("s_lshl_b32 s50, s38, 8"); a("s_lshl_b32 s51, s34, 12"); a("s_add_u32 s50, s50, s51"); a(f"s_add_u32 s50, s50, {CSQ}")
    a("s_lshl_b32 s51, s34, 8"); a(f"s_add_u32 s51, s51, {AUX + 1024}")
    a("s_waitcnt lgkmcnt(0)")
    srd(a, 44, "s32", "s33", WS_USED)
    for p in range(4):
        a(f"buffer_load_dword v{vCs+p}, v{pt+2}, s[44:47], s50 offen")
        if p < 3: a(f"s_add_u32 s50, s50, {3072*4}")
    for t in range(RT):
        for k in range(2):
            a(f"buffer_load_dwordx4 v[{vSt+8*t+4*k}:{vSt+8*t+4*k+3}], v{pt+1}, s[44:47], s{48+k} offen offset:{t*1024}")
    def hook(nvm):
        a(f"v_lshl_add_u32 v{pt+3}, v{t0}, 2, s51")
        a(f"v_lshl_add_u32 v{pt+4}, v{t1}, 4, s51")
        a(f"v_add_u32 v{pt+5}, {AUX}, v{vA}")
        a(f"v_lshlrev_b32 v{pt+6}, 2, v{t0}"); a(f"v_add_u32 v{pt+6}, {AUX}, v{pt+6}")
        a(f"v_lshlrev_b32 v{pt+7}, 4, v{t1}"); a(f"v_add_u32 v{pt+7}, {AUX}, v{pt+7}")
        c.setup_rd()
        a(f"s_waitcnt vmcnt({nvm+4})")
        a(f"v_add_f32 v{vCs}, v{vCs}, v{vCs+1}"); a(f"v_add_f32 v{vCs+2}, v{vCs+2}, v{vCs+3}"); a(f"v_add_f32 v{vCs}, v{vCs}, v{vCs+2}")
        a(f"ds_write_b32 v{pt+5}, v{vCs}")
        a(f"s_waitcnt vmcnt({nvm})")
        ls = []
        for t in range(RT):
            r = Rec(); row_stats(r, vSt + 8 * t, vSt + 8 * t + 4)
            r(f"ds_write_b32 v{pt+3}, v{vSt+8*t} offset:{t*128}")
            r(f"ds_write_b32 v{pt+3}, v{vSt+8*t+4} offset:{t*128+64}")
            r(f"ds_read_b128 v[{vN4+8*t}:{vN4+8*t+3}], v{pt+4} offset:{t*128}")
            r(f"ds_read_b128 v[{vN4+8*t+4}:{vN4+8*t+7}], v{pt+4} offset:{t*128+64}")
            ls.append(r.l)
        for x in interleave(ls): a(x)
        a("s_waitcnt lgkmcnt(0)")
        a("s_barrier")
        for j in range(8):
            a(f"ds_read_b32 v{vCs+j}, v{pt+6} offset:{256 + j*64}")
        for j in range(4):
            r = c.accr(8 + j, 0)
            a(f"ds_read_b128 v[{r}:{r+3}], v{pt+7} offset:{j*64}")
        for j in range(8):
            a(f"s_waitcnt lgkmcnt({11-j})")
            for t in range(2):
                for h in range(2):
                    a(pk_bc(c.accr(j, t) + 2 * h, vN4 + 8 * t + 2 * h, vCs + j))
        if st: stamp(a, 1)
        a("s_waitcnt lgkmcnt(0)")
    r = Rec()
    for j in range(4):
        for t in (1, 0):
            for e in range(4):
                r(f"v_mul_f32 v{c.accr(8+j,t)+e}, v{c.accr(8+j,0)+e}, v{vSt+8*t}")
    r("s_mov_b32 s52, 0x358637bd"); r("s_mov_b32 s53, 0x358637bd"); r("s_mov_b32 s54, 0x3fb8aa3b")
    for t in range(RT):
        for e in range(4): r(f"v_mul_f32 v{vN4+8*t+e}, s54, v{vN4+8*t+4+e}")
        r(f"v_mul_f32 v{vSt+8*t}, s54, v{vSt+8*t+4}")
    r(f"v_mov_b32 v{vOne}, 1.0"); r(f"v_mov_b32 v{vOne+1}, 1.0")
    for e in range(4): r(f"v_mov_b32 v{tmp+8+e}, 0x3f803f80")
    for e in range(4): r(f"v_mov_b32 v{tmp+12+e}, 0x358637bd")
    r(f"s_mul_i32 s55, s34, {REDW}"); r(f"s_add_u32 s55, s55, {RED}")
    r(f"v_add_u32 v{vRed}, s55, v{vX}")
    r(f"v_lshl_add_u32 v{vRedG}, v{t1}, 4, s55")
    r(f"v_add_u32 v{vB}, {RED}, v{vA}")
    r("s_lshl_b32 s56, s38, 13"); r(f"s_add_u32 s56, s56, {KV}"); r("s_add_u32 s57, s56, 4096")
    r("s_lshl_b32 s58, s38, 8"); r(f"s_add_u32 s59, s58, {FLG}"); r(f"s_add_u32 s58, s58, {KV + KVZ}")
    r("s_lshl_b32 s60, s42, 15"); r("s_lshl_b32 s61, s38, 11"); r("s_add_u32 s60, s60, s61"); r(f"s_add_u32 s60, s60, {PQ}")
    r("s_add_u32 s61, s60, 32768")
    r(f"v_min_u32 v{pt+2}, 1, v{L}"); r(f"v_lshlrev_b32 v{pt+2}, 26, v{pt+2}")
    r(f"v_mov_b32 v{pt+3}, 1"); r(f"v_mov_b32 v{t0}, 0")
    r("s_cmp_eq_u32 s34, 0"); r("s_cselect_b32 s62, s58, 0x7ff00000"); r("s_cselect_b32 s63, s59, 0x7ff00000")
    lst = r.l
    spread(c, 6, 1, lst[:-3], per=1)
    c.extra(10, 1, lst[-3:])
    def phi4s(r_, dst, rs, rsl, tb):
        o = []
        for e in range(4): o.append(f"v_mul_f32 v{tb+e}, v{r_+e}, v{rsl+e}")
        for e in range(4): o.append(f"v_exp_f32_e64 v{tb+e}, v{tb+e} clamp")
        for e in range(4): o.append(f"v_fma_f32 v{r_+e}, v{r_+e}, v{rs+e}, 1.0")
        for e in range(4): o.append(f"v_max_f32 v{r_+e}, v{r_+e}, v{tb+e}")
        for e in range(4): o.append(f"v_add_f32 v{r_+e}, s52, v{r_+e}")
        for h in range(2): o.append(f"v_cvt_pk_bf16_f32 v{dst+h}, v{r_+2*h}, v{r_+2*h+1}")
        return o
    def phi4k(r_, dst, rs, rsl, tb):
        o = []
        for h in range(2): o.append(f"v_pk_mul_f32 v[{tb+2*h}:{tb+2*h+1}], v[{r_+2*h}:{r_+2*h+1}], v[{rsl+2*h}:{rsl+2*h+1}]")
        for e in range(4): o.append(f"v_exp_f32_e64 v{tb+e}, v{tb+e} clamp")
        for h in range(2): o.append(f"v_pk_fma_f32 v[{r_+2*h}:{r_+2*h+1}], v[{r_+2*h}:{r_+2*h+1}], v[{rs+2*h}:{rs+2*h+1}], v[{vOne}:{vOne+1}]")
        for e in range(4): o.append(f"v_max_f32 v{r_+e}, v{r_+e}, v{tb+e}")
        for h in range(2): o.append(f"v_pk_add_f32 v[{r_+2*h}:{r_+2*h+1}], v[{r_+2*h}:{r_+2*h+1}], s[52:53]")
        for h in range(2): o.append(f"v_cvt_pk_bf16_f32 v{dst+h}, v{r_+2*h}, v{r_+2*h+1}")
        return o
    ev = []
    for j in range(4):
        for t in range(RT):
            ev += (phi4k if pk else phi4s)(c.accr(j, t), c.accr(j, 0) + 2 * t, vN4 + 8 * t + 4, vN4 + 8 * t, tmp + 4 * t)
    for j in range(4, 8):
        for t in range(RT):
            r_ = c.accr(j, t)
            if pk:
                for h in range(2): ev.append(f"v_pk_mul_f32 v[{r_+2*h}:{r_+2*h+1}], v[{r_+2*h}:{r_+2*h+1}], v[{vN4+8*t+4+2*h}:{vN4+8*t+5+2*h}]")
            else:
                for e in range(4): ev.append(f"v_mul_f32 v{r_+e}, v{r_+e}, v{vN4+8*t+4+e}")
            for h in range(2): ev.append(f"v_cvt_pk_bf16_f32 v{c.accr(j,0)+2*t+h}, v{r_+2*h}, v{r_+2*h+1}")
    nk_ = (16 if pk else 22) * 8
    m = spread(c, -9, 16 + e0, ev[:nk_], per=per)
    m = max(m, c.M + 3)
    m = spread(c, -9, m, ev[nk_:], per=per) - c.M
    m += 1
    def X(pos, txt, **k2): c.extra(-8 + pos // c.M, pos % c.M, txt, **k2)
    for hl in range(2):
        for es in range(2):
            for ds in range(2):
                d = vKV + ((hl * 2 + es) * 2 + ds) * 4
                A_ = c.accr(hl * 2 + ds, 0); B_ = c.accr(4 + hl * 2 + es, 0)
                X(m, f"v_mfma_f32_16x16x32_bf16 v[{d}:{d+3}], v[{A_}:{A_+3}], v[{B_}:{B_+3}], 0", cost=-1); m += 1
        for ds in range(2):
            d = vKV + 32 + (hl * 2 + ds) * 4
            A_ = c.accr(hl * 2 + ds, 0)
            X(m, f"v_mfma_f32_16x16x32_bf16 v[{d}:{d+3}], v[{A_}:{A_+3}], v[{tmp+8}:{tmp+11}], 0", cost=-1); m += 1
    m -= 6
    for n in range(8):
        X(m, f"ds_write_b128 v{vRed}, v[{vKV+4*n}:{vKV+4*n+3}] offset:{n*1024}", lds=("rw", n), cost=2); m += 1
    m += 2
    for n in range(4):
        X(m, f"ds_write_b128 v{vRedG}, v[{vKV+32+4*n}:{vKV+32+4*n+3}] offset:{8192+n*64}", lds=("rw", 8 + n), cost=2); m += 1
    m += 4
    X(m, "s_barrier", needlds=[("rw", 11)]); m += 1
    for i in range(8):
        for w in range(2):
            X(m, f"ds_read2st64_b32 v[{vKV+4*i+2*w}:{vKV+4*i+2*w+1}], v{vB} offset0:{i*4+66*w} offset1:{i*4+66*w+33}", lds=("rr", i, w))
        m += 1
    for w in range(2):
        X(m, f"ds_read2st64_b32 v[{vKV+32+2*w}:{vKV+33+2*w}], v{vB} offset0:{32+66*w} offset1:{32+66*w+33}", lds=("rr", 8, w))
    m += 1
    for i in range(9):
        r_ = vKV + 4 * i
        X(m, [f"v_add_f32 v{r_}, v{r_}, v{r_+1}", f"v_add_f32 v{r_+2}, v{r_+2}, v{r_+3}", f"v_add_f32 v{r_}, v{r_}, v{r_+2}"], needlds=[("rr", i, 1)]); m += 1
        so = f"s{56 + i // 4} offen offset:{(i%4)*1024}" if i < 8 else "s62 offen"
        X(m, f"buffer_atomic_add_f32 v{r_}, v{vA}, s[44:47], {so}", vm=("at", i), cost=2); m += 1
    def phi4q(r_, dst, rs, rsl, tb):
        o = []
        for e in range(4): o.append(f"v_mul_f32 v{tb+e}, v{r_+e}, v{rsl}")
        for e in range(4): o.append(f"v_exp_f32_e64 v{tb+e}, v{tb+e} clamp")
        for e in range(4): o.append(f"v_fma_f32 v{r_+e}, v{r_+e}, v{rs}, 1.0")
        for e in range(4): o.append(f"v_max_f32 v{r_+e}, v{r_+e}, v{tb+e}")
        for e in range(4): o.append(f"v_add_f32 v{r_+e}, s52, v{r_+e}")
        for h in range(2): o.append(f"v_cvt_pk_bf16_f32 v{dst+h}, v{r_+2*h}, v{r_+2*h+1}")
        return o
    vQf = lambda hl, t: c.accr(8 + 2 * hl, t)
    qs = []
    for jq in range(4):
        l = []
        for t in (1, 0):
            l += phi4q(c.accr(8 + jq, t), vQf(jq // 2, t) + 2 * (jq % 2), vSt + 8 * t + 4, vSt + 8 * t, tmp + 4 * t)
        qs.append(l)
    mq = m
    for jq in range(3):
        mq = max(mq, 64 * (jq + 1) + 5)
        for x in qs[jq]:
            X(mq, x); mq += 1
    assert mq < 8 * c.M
    if sig is not None:
        assert sig > m
        X(sig, "s_barrier", needvm=[("at", 8)])
        X(sig + 1, f"buffer_atomic_add v{pt+3}, v{pt+2}, s[44:47], s63 offen sc1", vm=("sig",), cost=2)
        X(poll, f"buffer_load_dword v{t2}, v{t0}, s[44:47], s59 offen sc1", vm=("poll",), cost=2)
        r = Rec()
        r("s_lshl_b32 s40, s34, 11"); r("s_add_u32 s40, s40, s56")
        r("s_lshl_b32 s41, s34, 10"); r(f"s_add_u32 s41, s41, {KVL}"); r(f"v_add_u32 v{vZw}, s41, v{vX}"); r(f"v_add_u32 v{pt+4}, {KVL}, v{vX}")
        r(f"v_lshlrev_b32 v{t1}, 4, v{t1}")
        if nxt: code_prefetch(r, nxt, L, pt, pt + 1)
        spread(c, 11, 2, r.l[:-5] if nxt else r.l, per=1)
        if nxt: X(sig + 3, r.l[-5:], vm=("cpf",))
    print(name, "atomics done at phase-2 slot", m, "of", 8 * c.M)
    assert m < 8 * c.M
    c.emit(hook)
    if st: stamp(a, 2)
    a("s_waitcnt vmcnt(0)")
    a(f"v_readfirstlane_b32 s16, v{t2}")
    a("s_mov_b32 s17, 0")
    a("s_cmp_ge_u32 s16, 16")
    a(f"s_cbranch_scc1 PE_{name}")
    a.label(f"P_{name}")
    a(f"buffer_load_dword v{t2}, v{t0}, s[44:47], s59 offen sc1")
    a("s_waitcnt vmcnt(0)")
    a(f"v_readfirstlane_b32 s16, v{t2}")
    a("s_cmp_ge_u32 s16, 16")
    a(f"s_cbranch_scc1 PE_{name}")
    a("s_sleep 1")
    a("s_add_u32 s17, s17, 1")
    a("s_cmp_lt_u32 s17, 0x40000")
    a(f"s_cbranch_scc1 P_{name}")
    a.label(f"PE_{name}")
    vG = vKV; vZ = vKV + 8
    a(f"buffer_load_dwordx4 v[{vG}:{vG+3}], v{vX}, s[44:47], s40 offen sc1")
    a(f"buffer_load_dwordx4 v[{vG+4}:{vG+7}], v{vX}, s[44:47], s40 offen offset:1024 sc1")
    for n in range(4):
        a(f"buffer_load_dwordx4 v[{vZ+4*n}:{vZ+4*n+3}], v{t1}, s[44:47], s58 offen offset:{n*64} sc1")
    for x in qs[3]: a(x)
    a("s_waitcnt vmcnt(4)")
    for p in range(4): a(f"v_cvt_pk_bf16_f32 v{vG+p}, v{vG+2*p}, v{vG+2*p+1}")
    a(f"ds_write_b128 v{vZw}, v[{vG}:{vG+3}]")
    a("s_waitcnt vmcnt(0)")
    for hl in range(2):
        for p in range(4): a(f"v_cvt_pk_bf16_f32 v{vZ+8*hl+p}, v{vZ+8*hl+2*p}, v{vZ+8*hl+2*p+1}")
    a("s_waitcnt lgkmcnt(0)")
    a("s_barrier")
    vF = vKV + 24
    for n in range(4): a(f"ds_read_b128 v[{vF+4*n}:{vF+4*n+3}], v{pt+4} offset:{n*1024}")
    vN = 16
    for hl in range(2):
        for t in range(RT):
            d = vN + (hl * 2 + t) * 12 + 8; p = vQf(hl, t)
            a(f"v_mfma_f32_16x16x32_bf16 v[{d}:{d+3}], v[{vZ+8*hl}:{vZ+8*hl+3}], v[{p}:{p+3}], v[{tmp+12}:{tmp+15}]")
    for hl in range(2):
        for es in range(2):
            a(f"s_waitcnt lgkmcnt({3 - (hl*2+es)})")
            for t in range(RT):
                d = vN + (hl * 2 + t) * 12 + 4 * es; p = vQf(hl, t); f = vF + 4 * (hl * 2 + es)
                a(f"v_mfma_f32_16x16x32_bf16 v[{d}:{d+3}], v[{f}:{f+3}], v[{p}:{p+3}], 0")
    for n in range(4): a(f"v_rcp_f32 v{vN+12*n+8}, v{vN+12*n+8}")
    for hl in range(2):
        for t in range(RT):
            n = vN + (hl * 2 + t) * 12; d = 4 * (hl * 2 + t)
            for p in range(4): a(pk_bc(n + 2 * p, n + 2 * p, n + 8))
            for p in range(4): a(f"v_cvt_pk_bf16_f32 v{d+p}, v{n+2*p}, v{n+2*p+1}")
            a(f"buffer_store_dwordx4 v[{d}:{d+3}], v{vX}, s[44:47], s{60+t} offen offset:{hl*1024}")
    if st:
        stamp(a, 3); a("s_waitcnt vmcnt(0)"); stamp(a, 4)
        stamp_store(a, 5, tmp, 44, 34)
        barstamp_store(a, 84, 9, tmp, 44)
    a.label(f"E_{name}")
    a("s_endpgm")
    return kernel_wrap(name, a.text(), vgpr=256, agpr=256, sgpr=102), LDS
```

```python
from common import *
from core import Core
from k1 import pk_bc
from k0 import plane_dma_lane, plane_read_bases

def gen_k3(name, R=4, st=False, rep=False, sk=False, nxt=(), stf='', ji=14, sm=False, rp=(-3, 92, -1, 2), **kw):
    st_off = STB
    a = A()
    RT = 4; NT = 14
    STAGE = 28672
    AUX = 4 * STAGE
    HSC = AUX + 4096
    LDS = HSC + (32768 if rep else 0)
    vX = 224; vD = 228; vWr = 230
    L = 232; t0, t1, t2 = 233, 234, 235
    vS = 236; vC = 237
    vSum = 240
    vRb = 236
    c = Core(a, name, RT, NT, 16, R, vWr, vX=vX, vD=vD, init_acc=True, barstamp=(84 if st else None), **kw)
    a("s_cmp_ge_u32 s2, 256")
    a(f"s_cbranch_scc1 E_{name}")
    if st: stamp(a, 0)
    a("s_load_dwordx2 s[32:33], s[0:1], 72")
    if rep: a("s_load_dwordx2 s[16:17], s[0:1], 48")
    a(f"v_lshrrev_b32 v{t0}, 6, v0")
    a(f"v_and_b32 v{L}, 63, v0")
    a(f"v_readfirstlane_b32 s34, v{t0}")
    a("s_and_b32 s35, s2, 7")
    a("s_lshr_b32 s36, s2, 3")
    a("s_lshr_b32 s37, s35, 2"); a("s_lshl_b32 s37, s37, 2"); a("s_lshr_b32 s38, s36, 3"); a("s_add_u32 s37, s37, s38")
    a("s_and_b32 s38, s35, 3"); a("s_lshl_b32 s38, s38, 3"); a("s_and_b32 s39, s36, 7"); a("s_add_u32 s38, s38, s39")
    a("s_and_b32 s53, s38, 1")
    a(f"s_lshl_b32 s42, s37, 4")
    a(f"s_lshl_b32 s43, s34, 2")
    a("s_add_u32 s42, s42, s43")
    a(f"v_and_b32 v{t0}, 15, v{L}")
    a(f"v_lshrrev_b32 v{t1}, 4, v{L}")
    a(f"v_lshlrev_b32 v{vS}, 6, v{t0}")
    a(f"v_lshl_add_u32 v{vS}, v{t1}, 4, v{vS}")
    a(f"v_lshrrev_b32 v{t0}, 3, v{L}")
    a(f"v_add_u32 v{t0}, s53, v{t0}")
    a(f"v_subrev_u32 v{t2}, 7, v{t0}")
    a(f"v_min_u32 v{t0}, v{t0}, v{t2}")
    a(f"v_lshlrev_b32 v{t0}, 6, v{t0}")
    a(f"v_and_b32 v{t2}, 3, v{L}")
    a(f"v_lshl_add_u32 v{t0}, v{t2}, 4, v{t0}")
    a(f"v_bfe_u32 v{t2}, v{L}, 2, 1")
    a(f"v_mul_u32_u24 v{t2}, 14336, v{t2}")
    a(f"v_add_u32 v{vC}, v{t0}, v{t2}")
    a(f"s_lshl_b32 s48, s42, 10")
    a(f"s_add_u32 s48, s48, {st_off}")
    a(f"s_mul_i32 s49, s38, 448")
    a(f"s_add_u32 s49, s49, {CSF + 3072*4}")
    a("s_lshl_b32 s62, s34, 10"); a(f"s_add_u32 s62, s62, {AUX}")
    a("s_mov_b32 m0, s62")
    rbB = 32768
    c.setup_addr(L, 34, rbB)
    a(f"s_lshl_b32 s{c.sXoff}, s42, 15")
    if XF: a(f"s_add_u32 s{c.sXoff}, s{c.sXoff}, {XF}")
    a(f"s_mul_i32 s{c.sWoff}, s38, {16*STAGE}"); a(f"s_add_u32 s{c.sWoff}, s{c.sWoff}, {WF3}")
    a("s_waitcnt lgkmcnt(0)")
    srd(a, 44, "s32", "s33", WS_USED)
    for t in range(RT):
        a(f"buffer_load_dwordx4 v[{vSum+4*t}:{vSum+4*t+3}], v{vS}, s[44:47], s48 offen offset:{t*1024}")
    a(f"buffer_load_dwordx4 v{vC}, s[44:47], s49 offen lds")
    a(f"v_lshl_add_u32 v{vC}, v{t1}, 4, s62")
    def hook(nvm):
        a(f"s_waitcnt vmcnt({nvm})")
        for j in range(NT):
            r = c.accr(j, 0)
            a(f"ds_read_b128 v[{r}:{r+3}], v{vC} offset:{j*64}")
        ls = []
        for t in range(RT):
            r = Rec(); row_stats(r, vSum + 4 * t, None, want_rstd=False); ls.append(r.l)
        for x in interleave(ls):
            if not x.startswith("s_nop"): a(x)
        c.setup_rd()
        a("s_waitcnt lgkmcnt(0)")
        for j in range(ji):
            for t in (3, 2, 1, 0):
                for h in range(2):
                    a(pk_bc(c.accr(j, t) + 2 * h, c.accr(j, 0) + 2 * h, vSum + 4 * t))
        a(f"s_mul_i32 s50, s42, {112*1024}")
        a(f"s_add_u32 s50, s50, {HF}")
        a(f"s_mul_i32 s55, s38, 7")
        a("s_add_u32 s51, s55, s53"); a("s_lshr_b32 s51, s51, 1"); a("s_lshl_b32 s51, s51, 10")
        a("s_add_u32 s51, s51, s50")
        a("s_lshr_b32 s52, s55, 1"); a("s_lshl_b32 s52, s52, 10"); a("s_add_u32 s52, s52, s50")
        a("s_cmp_eq_u32 s53, 0")
        a("s_cselect_b32 s55, 3072, 8")
        a("s_add_u32 s52, s52, s55")
        for t in range(1, RT):
            a(f"s_add_u32 s{54+2*t}, s51, {t*112*1024}"); a(f"s_add_u32 s{55+2*t}, s52, {t*112*1024}")
        if rep:
            plane_dma_lane(a, L, 2048, vSum + 1, t0, t1, t2)
            plane_read_bases(a, L, vRb, t0, t1, t2)
            a("s_lshl_b32 s21, s34, 13"); a(f"s_add_u32 s21, s21, {HSC}")
            for aa in range(4): a(f"v_add_u32 v{vRb+aa}, s21, v{vRb+aa}")
            a("s_lshl_b32 s22, s2, 2"); a("s_add_u32 s22, s22, s34")
            a("s_lshr_b32 s23, s22, 4"); a("s_and_b32 s22, s22, 15")
            a(f"s_mov_b32 s18, {3584*2048}"); a("s_mov_b32 s19, 0x20000")
            a("s_lshl_b32 s20, s23, 17"); a("s_lshl_b32 s28, s22, 7"); a("s_add_u32 s20, s20, s28")
            if sk:
                a("s_lshr_b32 s28, s22, 1"); a(f"s_mul_i32 s28, s28, {56*16384}"); a("s_lshl_b32 s29, s23, 14"); a("s_add_u32 s28, s28, s29")
                a("s_and_b32 s29, s22, 1"); a("s_lshl_b32 s29, s29, 13"); a("s_add_u32 s28, s28, s29"); a(f"s_add_u32 s28, s28, {WF4}")
            else:
                a(f"s_mul_i32 s28, s22, {56*8192}"); a("s_lshl_b32 s29, s23, 13"); a("s_add_u32 s28, s28, s29"); a(f"s_add_u32 s28, s28, {WF4}")
            a("s_cmp_ge_u32 s23, 56")
            a(f"s_cselect_b32 s28, 0x7ff00000, s28")
            a("s_add_u32 s29, s28, 4096")
        if st: stamp(a, 1); a("s_waitcnt lgkmcnt(0)")
    for j in range(ji, NT):
        l = [f"v_mul_f32 v{c.accr(j,t)+e}, v{c.accr(j,0)+e}, v{vSum+4*t}" for t in (3, 2, 1, 0) for e in range(4)]
        spread(c, 0, 8 * (j - ji), l, per=2)
    aR = c.agpr_end
    if rep:
        k0_, m0_, k1_, m1_ = rp
        m = m0_
        for d in range(8):
            kk, mm = k0_ + m // c.M, m % c.M
            c.extra(kk, mm, [f"s_add_u32 m0, s21, {d*1024}", (f"s_add_u32 s20, s20, {8*2048}" if d else "s_nop 0"),
                             f"buffer_load_dwordx4 v{vSum+1}, s[16:19], s20 offen nt lds"], cost=3, vm=("rd", d))
            m += 2
        m = m1_
        for j in range(4):
            for s_ in range(2):
                for qq in range(2):
                    r = aR + j * 8 + s_ * 4 + qq * 2
                    c.extra(k1_, m, f"ds_read_b64_tr_b16 a[{r}:{r+1}], v{vRb+j} offset:{(32*s_+16*qq)*128}", lds=("rr", j, s_, qq), needvm=[("rd", 7)]); m += 1
        m += 2
        for j in range(4):
            for s_ in range(2):
                r = aR + j * 8 + s_ * 4
                c.extra(k1_, m, f"buffer_store_dwordx4 a[{r}:{r+3}], v{vX}, s[44:47], s{28 + j//2} offen offset:{((j%2)*2+s_)*1024}", cost=2, vm=("rs", j, s_), needlds=[("rr", j, s_, 0), ("rr", j, s_, 1)]); m += 1
    sP = lambda t: 51 if t == 0 else 54 + 2 * t
    sS = lambda t: 52 if t == 0 else 55 + 2 * t
    def piece(p, t):
        r = Rec()
        js = (2 * p, 2 * p + 1) if p < 3 else (6,)
        dst = c.accr(2 * js[0], t)
        for jj in js:
            rg = c.accr(2 * jj, t); ru = c.accr(2 * jj + 1, t)
            if sm:
                for e in range(4): r(f"v_mul_f32 v{ru+e}, v{rg+e}, v{ru+e}")
            else:
                for h in range(2):
                    r(f"v_pk_mul_f32 v[{ru+2*h}:{ru+2*h+1}], v[{rg+2*h}:{rg+2*h+1}], v[{ru+2*h}:{ru+2*h+1}]")
        for n, jj in enumerate(js):
            ru = c.accr(2 * jj + 1, t)
            for h in range(2):
                r(f"v_cvt_pk_bf16_f32 v{dst+2*n+h}, v{ru+2*h}, v{ru+2*h+1}")
        if p < 3: s_ = f"buffer_store_dwordx4 v[{dst}:{dst+3}], v{vX}, s[44:47], s{sP(t)} offen offset:{p*1024} {stf}"
        else: s_ = f"buffer_store_dwordx2 v[{dst}:{dst+1}], v{vX}, s[44:47], s{sS(t)} offen {stf}"
        return r.l, s_
    if nxt:
        r = Rec(); code_prefetch(r, nxt, L, t0, t1)
        assert len(nxt) == 1
        m = spread(c, -2, 40, r.l[:6], per=1)
        c.extra(-2, m, r.l[6:], vm=("cpf",))
    after = []
    tot = c.TM * c.M
    for p in range(3):
        order = c.fin_order(4 * p + 3)
        m = c.fin_slot(4 * p + 3, order[-1]) + 3
        room = min(tot - m, 32 * c.TM)
        for t in order:
            ins, s_ = piece(p, t)
            if sm:
                pp = 1 if room >= 56 else 2
                grp = [ins[i:i+pp] for i in range(0, len(ins), pp)]
            elif room >= 40: grp = [[x] for x in ins]
            elif room >= 28: grp = [ins[0:2], ins[2:3], ins[3:4], ins[4:6], ins[6:7], ins[7:8]]
            else: grp = [ins[2*i:2*i+2] for i in range(4)]
            if m + len(grp) + 1 <= tot:
                for g_ in grp:
                    c.extra_at(m, g_); m += 1
                c.extra_at(m, s_, cost=2, vm=("st", p, t)); m += 1
            else:
                after += ins + [s_]
    c.emit(hook)
    if st: stamp(a, 2)
    for x in after: a(x)
    if len(after) < 8: a("s_nop 7")
    for t in c.fin_order(13):
        ins, s_ = piece(3, t)
        for x in ins: a(x)
        a(s_)
    a("s_cmp_lg_u32 s34, 0")
    a(f"s_cbranch_scc1 Z_{name}")
    for e in range(4): a(f"v_mov_b32 v{vSum+e}, 0")
    a("s_mul_i32 s48, s2, 544"); a(f"s_add_u32 s48, s48, {KV}")
    a("s_mov_b32 exec_lo, -1"); a("s_mov_b32 exec_hi, 3")
    a(f"buffer_store_dwordx4 v[{vSum}:{vSum+3}], v{vX}, s[44:47], s48 offen sc1")
    a("s_mov_b64 exec, -1")
    a.label(f"Z_{name}")
    if st:
        a("s_nop 1")
        stamp(a, 3); a("s_waitcnt vmcnt(0)"); stamp(a, 4)
        stamp_store(a, 5, 240, 44, 34)
        barstamp_store(a, 84, 9, 240, 44)
    a.label(f"E_{name}")
    a("s_endpgm")
    return kernel_wrap(name, a.text(), vgpr=256, agpr=c.agpr_end + (32 if rep else 0), sgpr=102), LDS
```

```python
from common import *
from core import Core

def tile_map_16x16(a, lc=3):
    lx = 4 - lc
    a("s_and_b32 s35, s2, 7"); a("s_lshr_b32 s36, s2, 3")
    a(f"s_lshr_b32 s37, s35, {lx}"); a(f"s_lshl_b32 s37, s37, {5-lc}"); a(f"s_lshr_b32 s38, s36, {lc}"); a("s_add_u32 s37, s37, s38")
    a(f"s_and_b32 s38, s35, {(1<<lx)-1}"); a(f"s_lshl_b32 s38, s38, {lc}"); a(f"s_and_b32 s39, s36, {(1<<lc)-1}"); a("s_add_u32 s38, s38, s39")

def epi_setup(a, L, t0, t1, vRow, vStat, vS, vOut, ones, stin_off, stout_off, final, RT=2):
    a(f"v_and_b32 v{vRow}, 31, v{L}")
    a(f"v_and_b32 v{t0}, 15, v{L}")
    a(f"v_lshrrev_b32 v{t1}, 4, v{L}")
    a(f"v_lshlrev_b32 v{vS}, 6, v{t0}")
    a(f"v_lshl_add_u32 v{vS}, v{t1}, 4, v{vS}")
    if RT == 2:
        a(f"v_lshrrev_b32 v{vStat}, 5, v{L}")
        a(f"v_lshl_add_u32 v{vStat}, v{vStat}, 4, v{t0}")
        a(f"v_lshlrev_b32 v{vStat}, 6, v{vStat}")
    else:
        a(f"v_lshlrev_b32 v{vStat}, 6, v{t0}")
    a(f"v_and_b32 v{ones}, 1, v{t1}")
    a(f"v_lshl_add_u32 v{vStat}, v{ones}, 17, v{vStat}")
    if final:
        a(f"v_lshlrev_b32 v{vOut}, 11, v{t0}")
        a(f"v_lshl_add_u32 v{vOut}, v{ones}, 5, v{vOut}")
        a(f"v_lshrrev_b32 v{t1}, 1, v{t1}")
        a(f"v_lshl_add_u32 v{vOut}, v{t1}, 4, v{vOut}")
    a(f"v_mov_b32 v{ones}, 0x3f803f80")
    a("s_lshl_b32 s54, s42, 15")
    a("s_lshl_b32 s55, s38, 11")
    a("s_add_u32 s48, s54, s55")
    if XF: a(f"s_add_u32 s48, s48, {XF}")
    a("s_add_u32 s49, s48, 32768")
    if final:
        a("s_lshl_b32 s55, s38, 7"); a("s_add_u32 s50, s54, s55"); a("s_add_u32 s51, s50, 32768")
    a("s_lshl_b32 s54, s42, 10")
    a("s_lshl_b32 s55, s38, 2")
    a("s_add_u32 s52, s54, s55"); a(f"s_add_u32 s52, s52, {stout_off}")
    a(f"s_add_u32 s53, s54, {stin_off}")

def gen_k4(name, final, R=4, st=False, UN=4, lc=3, rot=None, nxt=(), attn=False, **kw):
    a = A()
    RT = 2; NT = 4
    vX = 32; vD = 34; ones = 35; vWr = 36; L = 40; t0, t1, t2 = 41, 42, 43
    vRow, vStat, vS, vOut = 44, 45, 46, 47
    vSt = 48
    vXo = 64
    tmp = 80
    KS = 16 if attn else 56
    c = Core(a, name, RT, NT, KS, R, vWr, vX=vX, vD=vD, UN=UN, barstamp=(84 if st else None), ktab=((38, 39) if rot else None), **kw)
    a("s_cmp_ge_u32 s2, 256")
    a(f"s_cbranch_scc1 E_{name}")
    if st: stamp(a, 0)
    a("s_load_dwordx2 s[32:33], s[0:1], 72")
    if final: a("s_load_dwordx2 s[30:31], s[0:1], 56")
    a(f"v_lshrrev_b32 v{t0}, 6, v0")
    a(f"v_and_b32 v{L}, 63, v0")
    a(f"v_readfirstlane_b32 s34, v{t0}")
    tile_map_16x16(a, lc)
    rbB = KS * 2048
    c.setup_addr(L, 34, rbB)
    a("s_lshl_b32 s42, s37, 3"); a("s_lshl_b32 s43, s34, 1"); a("s_add_u32 s42, s42, s43")
    a(f"s_mul_i32 s{c.sXoff}, s42, {rbB}"); a(f"s_add_u32 s{c.sXoff}, s{c.sXoff}, {PQ if attn else HF}")
    a(f"s_mul_i32 s{c.sWoff}, s38, {KS*8192}"); a(f"s_add_u32 s{c.sWoff}, s{c.sWoff}, {WF2 if attn else WF4}")
    if rot:
        G, mc, mr, dr = rot
        a(f"s_and_b32 s40, s36, {(1<<lc)-1}"); a(f"s_lshr_b32 s41, s36, {lc}")
        a(f"s_mul_i32 s40, s40, {mc}"); a(f"s_mul_i32 s43, s41, {mr}"); a("s_add_u32 s40, s40, s43")
        a(f"s_mul_i32 s41, s41, {dr}")
        c.setup_ktab(L, G, 40, 41, t0, t1)
    a("s_waitcnt lgkmcnt(0)")
    srd(a, 44, "s32", "s33", WS_USED)
    def hook(nvm):
        c.setup_rd()
        if final: srd(a, 56, "s30", "s31", 2048 * 2048)
        epi_setup(a, L, t0, t1, vRow, vStat, vS, vOut, ones, STB, STB if attn else STA, final)
        a(f"s_add_u32 s55, s53, {SQOFF}")
        a(f"v_lshlrev_b32 v{t2}, 2, v{L}")
        if st: stamp(a, 1); a("s_waitcnt lgkmcnt(0)")
    n = 0
    for t in range(RT):
        for k in range(2):
            if attn: continue
            c.extra(-3 + n // 2, 3 + 8 * (n % 2), f"buffer_load_dwordx4 v[{vSt+8*t+4*k}:{vSt+8*t+4*k+3}], v{vS}, s[44:47], s{53 if k == 0 else 55} offen offset:{t*1024}", cost=2, vm=("stt", t, k)); n += 1
    n = 0
    for t in range(RT):
        for b in range(2):
            c.extra(-3 + n // 2, 6 + 8 * (n % 2), f"buffer_load_dwordx4 v[{vXo+8*t+4*b}:{vXo+8*t+4*b+3}], v{vX}, s[44:47], s{48+t} offen offset:{b*1024}", cost=2, vm=("xo", t, b)); n += 1
    if nxt:
        r = Rec(); code_prefetch(r, nxt, L, t0, t1)
        c.extra(-1, 2, r.l[:11], vm=("cpf",))
        if len(nxt) > 1: c.extra(-1, 6, r.l[11:], vm=("cpf2",))
    c.emit(hook)
    if st: stamp(a, 2)
    if attn:
        a("s_cmp_lg_u32 s34, 3")
        a(f"s_cbranch_scc1 C0_{name}")
        a("s_cmp_ge_u32 s2, 112")
        a(f"s_cbranch_scc1 C0_{name}")
        a("s_lshl_b32 s40, s2, 8"); a(f"s_add_u32 s41, s40, {CSF + 3072*4}"); a(f"s_add_u32 s40, s40, {CSP}")
        for i in range(16):
            a(f"buffer_load_dword v{vSt+i}, v{t2}, s[44:47], s40 offen")
            if i < 15: a(f"s_add_u32 s40, s40, {7168*4}")
        a(f"s_waitcnt vmcnt({len(nxt)+16})")
        a(f"s_branch C1_{name}")
        a.label(f"C0_{name}")
        a(f"s_waitcnt vmcnt({len(nxt)})")
        a("s_nop 7")
        a.label(f"C1_{name}")
    else:
        a(f"s_waitcnt vmcnt({len(nxt)})")
    ls = [[]]
    for t in range(0 if attn else RT):
        r = Rec(); row_stats(r, vSt + 8 * t, vSt + 8 * t + 4, want_mean=False)
        r(f"v_mul_f32 v{vSt+8*t+4}, v{vSt+8*t+4}, v{vSt+8*t+4}")
        ls.append(r.l)
    for x in interleave(ls): a(x)
    resid_epilogue(a, c.accr, RT, lambda t, b: vXo + 8 * t + 4 * b, None if attn else (lambda t: vSt + 8 * t + 4), tmp, vX, vRow, 44,
                   lambda t: 48 + t, 52, vStat, final, srd_out=56, s_out=lambda t: 50 + t, vOut=vOut, ones=ones)
    if attn:
        a("s_cmp_lg_u32 s34, 3")
        a(f"s_cbranch_scc1 C_{name}")
        a("s_cmp_ge_u32 s2, 112")
        a(f"s_cbranch_scc1 C_{name}")
        a("s_waitcnt vmcnt(5)")
        for i in range(1, 16): a(f"v_add_f32 v{vSt}, v{vSt}, v{vSt+i}")
        a(f"buffer_store_dword v{vSt}, v{t2}, s[44:47], s41 offen")
        a.label(f"C_{name}")
    if st:
        stamp(a, 3); a("s_waitcnt vmcnt(0)"); stamp(a, 4)
        stamp_store(a, 5, tmp, 44, 34)
        barstamp_store(a, 84, 9, tmp, 44)
    a.label(f"E_{name}")
    a("s_endpgm")
    return kernel_wrap(name, a.text(), vgpr=92, agpr=c.agpr_end, sgpr=102), UN * c.stage_bytes

def gen_k4s(name, final, R=4, st=False, UN=4, lr=2, **kw):
    a = A()
    RT = 2; NT = 8
    vX = 64; vD = 66; ones = 67; vWr = 68; L = 70; t0, t1, t2 = 71, 72, 73
    vRow, vStat, vS, vOut = 74, 75, 76, 77
    vF = 78; vZ = 79
    vSt = 80
    vXo = 96
    tmp = 112
    c = Core(a, name, RT, NT, 28, R, vWr, vX=vX, vD=vD, UN=UN, barstamp=(84 if st else None), **kw)
    a("s_cmp_ge_u32 s2, 256")
    a(f"s_cbranch_scc1 E_{name}")
    if st: stamp(a, 0)
    a("s_load_dwordx2 s[32:33], s[0:1], 72")
    if final: a("s_load_dwordx2 s[30:31], s[0:1], 56")
    a(f"v_lshrrev_b32 v{t0}, 6, v0")
    a(f"v_and_b32 v{L}, 63, v0")
    a(f"v_readfirstlane_b32 s34, v{t0}")
    lc = 5 - lr; lxc = 3 - lc
    a("s_and_b32 s40, s2, 1")
    a("s_bfe_u32 s35, s2, 0x20001"); a("s_lshr_b32 s36, s2, 3")
    a(f"s_lshr_b32 s37, s35, {lxc}"); a(f"s_lshl_b32 s37, s37, {lr}"); a(f"s_lshr_b32 s39, s36, {lc}"); a("s_add_u32 s37, s37, s39")
    a(f"s_and_b32 s41, s35, {(1<<lxc)-1}"); a(f"s_lshl_b32 s41, s41, {lc}"); a(f"s_and_b32 s39, s36, {(1<<lc)-1}"); a("s_add_u32 s41, s41, s39")
    a("s_lshl_b32 s38, s41, 1"); a("s_add_u32 s38, s38, s40")
    rbB = 3584 * 16 * 2
    c.setup_addr(L, 34, rbB)
    a("s_xor_b32 s39, s40, 1"); a("s_lshl_b32 s39, s39, 13")
    a(f"v_xor_b32 v{vD}, s39, v{vD}")
    a("s_lshl_b32 s42, s37, 3"); a("s_lshl_b32 s43, s34, 1"); a("s_add_u32 s42, s42, s43")
    a(f"s_mul_i32 s{c.sXoff}, s42, {rbB}"); a(f"s_mul_i32 s43, s40, {28*2048}"); a(f"s_add_u32 s{c.sXoff}, s{c.sXoff}, s43"); a(f"s_add_u32 s{c.sXoff}, s{c.sXoff}, {HF}")
    a(f"s_mul_i32 s{c.sWoff}, s38, {28*16384}"); a(f"s_add_u32 s{c.sWoff}, s{c.sWoff}, {WF4}")
    a("s_waitcnt lgkmcnt(0)")
    srd(a, 44, "s32", "s33", WS_USED)
    def hook(nvm):
        c.setup_rd()
        if final: srd(a, 56, "s30", "s31", 2048 * 2048)
        epi_setup(a, L, t0, t1, vRow, vStat, vS, vOut, ones, STB, STA, final)
        a(f"s_add_u32 s55, s53, {SQOFF}")
        a("s_lshl_b32 s10, s37, 4"); a("s_add_u32 s10, s10, s38"); a("s_lshl_b32 s10, s10, 2"); a("s_add_u32 s10, s10, s34")
        a("s_xor_b32 s11, s10, 4")
        a("s_lshl_b32 s12, s10, 13"); a(f"s_add_u32 s12, s12, {EXCH}"); a("s_add_u32 s13, s12, 4096")
        a("s_lshl_b32 s14, s11, 13"); a(f"s_add_u32 s14, s14, {EXCH}"); a("s_add_u32 s15, s14, 4096")
        a("s_lshl_b32 s10, s10, 2"); a(f"s_add_u32 s10, s10, {FLG}")
        a("s_lshl_b32 s11, s11, 2"); a(f"s_add_u32 s11, s11, {FLG}")
        a(f"v_mov_b32 v{vF}, 1"); a(f"v_mov_b32 v{vZ}, 0")
        if st: stamp(a, 1); a("s_waitcnt lgkmcnt(0)")
    n = 0
    for t in range(RT):
        for k in range(2):
            c.extra(-3, 3 + 8 * n, f"buffer_load_dwordx4 v[{vSt+8*t+4*k}:{vSt+8*t+4*k+3}], v{vS}, s[44:47], s{53 if k == 0 else 55} offen offset:{t*1024}", cost=2, vm=("stt", t, k)); n += 1
    n = 0
    for t in range(RT):
        for b in range(2):
            c.extra(-2, 3 + 8 * n, f"buffer_load_dwordx4 v[{vXo+8*t+4*b}:{vXo+8*t+4*b+3}], v{vX}, s[44:47], s{48+t} offen offset:{b*1024}", cost=2, vm=("xo", t, b)); n += 1
    for j in range(4):
        for t in range(RT):
            n = j * 2 + t
            r = c.accr(j, t)
            c.extra(-1, c.slot_of(j, t) + 8, f"buffer_store_dwordx4 v[{r}:{r+3}], v{vX}, s[44:47], s{14 + n // 4} offen offset:{(n%4)*1024} sc1", cost=2, vm=("snd", n))
    c.emit(hook)
    if st: stamp(a, 2)
    a(f"s_waitcnt vmcnt(8)")
    ls = []
    for t in range(RT):
        r = Rec(); row_stats(r, vSt + 8 * t, vSt + 8 * t + 4, want_mean=False)
        r(f"v_mul_f32 v{vSt+8*t+4}, v{vSt+8*t+4}, v{vSt+8*t+4}")
        ls.append(r.l)
    for x in interleave(ls): a(x)
    a("s_waitcnt vmcnt(0)")
    a("s_mov_b64 exec, 1")
    a(f"buffer_store_dword v{vF}, v{vZ}, s[44:47], s11 offen sc1")
    a("s_mov_b32 s17, 0")
    a.label(f"P_{name}")
    a(f"buffer_load_dword v{t0}, v{vZ}, s[44:47], s10 offen sc1")
    a("s_waitcnt vmcnt(0)")
    a(f"v_readfirstlane_b32 s16, v{t0}")
    a("s_cmp_eq_u32 s16, 1")
    a(f"s_cbranch_scc1 PD_{name}")
    a("s_sleep 1")
    a("s_add_u32 s17, s17, 1")
    a("s_cmp_lt_u32 s17, 0x40000")
    a(f"s_cbranch_scc1 P_{name}")
    a.label(f"PD_{name}")
    a("s_mov_b64 exec, -1")
    for n in range(8):
        r = c.accr(n // 2, n % 2)
        a(f"buffer_load_dwordx4 v[{r}:{r+3}], v{vX}, s[44:47], s{12 + n // 4} offen offset:{(n%4)*1024} sc1")
    for n in range(8):
        r = c.accr(n // 2, n % 2); k = c.accr(4 + n // 2, n % 2)
        a(f"s_waitcnt vmcnt({7-n})")
        for h in range(2):
            a(f"v_pk_add_f32 v[{k+2*h}:{k+2*h+1}], v[{k+2*h}:{k+2*h+1}], v[{r+2*h}:{r+2*h+1}]")
    resid_epilogue(a, lambda j, t: c.accr(4 + j, t), RT, lambda t, b: vXo + 8 * t + 4 * b, lambda t: vSt + 8 * t + 4, tmp, vX, vRow, 44,
                   lambda t: 48 + t, 52, vStat, final, srd_out=56, s_out=lambda t: 50 + t, vOut=vOut, ones=ones)
    if st:
        stamp(a, 3); a("s_waitcnt vmcnt(0)"); stamp(a, 4)
        stamp_store(a, 5, tmp, 44, 34)
        barstamp_store(a, 84, 9, tmp, 44)
    a.label(f"E_{name}")
    a("s_endpgm")
    return kernel_wrap(name, a.text(), vgpr=124, agpr=c.agpr_end, sgpr=102), UN * c.stage_bytes
```

```python
MB = 1 << 20
XF = 0
PQ = 4 * MB
HF = 8 * MB
WF1 = 22 * MB
WF2 = 28 * MB
WF3 = 30 * MB
WF4 = 44 * MB
STA = 51 * MB
STB = STA + 256 * 1024
SQOFF = 128 * 1024
CSF = STB + 256 * 1024
KV = CSF + 64 * 1024
KVZ = 128 * 1024
KVSZ = 132 * 1024
FLG = KV + KVSZ
CSP = KV + 256 * 1024
CSQ = CSP + 448 * 1024
STAMP_OFF = 54 * MB
EXCH = 53 * MB
WS_USED = 61 * MB
```

```python
import sys
from common import *
from k0 import gen_k0
from k1b import gen_k1b
from k3 import gen_k3
from k4 import gen_k4
HDR = open("interleave_layers__linear_attn_block__glu_gated_bilinear__prompt.s.ref").read().split("; Override launch")[0]
def build(fn, st=False, k0kw={}, k1kw={}, k2kw={}, k3kw={}, k4kw={}, k3bkw={}, k3akw={}):
    ks = []; L = {}
    K1 = dict(gh=3, npro=4, rdmargin=6, xlead=3, per=6, pk=True, UN=6, sig=185, poll=225, rddelay=1); K1.update(k1kw)
    K3 = dict(TM=2, sm=True); K3.update(k3kw)
    K4 = dict(gh=1, cap=3, R=2, rdmargin=2, npro=6); K2 = dict(K4); K4.update(k4kw); K2.update(k2kw)
    def add(i, nm, r, sid):
        ks.append(r[0]); L[i] = (nm, (r[2] if len(r) > 2 else 256,1,1), (256,1,1), r[1])
    add(0, "k0_kernel", gen_k0("k0_kernel", nxt=("k1_kernel",), ngate=112, v2=True, stflag='sc1', **k0kw), 0)
    SID[0] = 0; add(1, "k1_kernel", gen_k1b("k1_kernel", st=st, nxt=("k2_kernel",), **K1), 0)
    SID[0] = 1; add(2, "k2_kernel", gen_k4("k2_kernel", False, st=st, attn=True, nxt=("k3a_kernel", "k3_kernel"), **K2), 1)
    SID[0] = 2; add(3, "k3_kernel", gen_k3("k3_kernel", st=st, nxt=("k4b_kernel",), **{**K3, 'stf': 'sc1', **k3bkw}), 2)
    SID[0] = 3; add(4, "k4a_kernel", gen_k4("k4a_kernel", False, st=st, nxt=("k1_kernel",), **K4), 3)
    SID[0] = 4; add(5, "k4b_kernel", gen_k4("k4b_kernel", True, st=st, **K4), 4)
    SID[0] = 5; add(7, "k3a_kernel", gen_k3("k3a_kernel", st=st, rep=True, nxt=("k4a_kernel",), **{**K3, **k3akw}), 5)
    ls = [L[i] for i in (0, 1, 2, 7, 4, 1, 2, 3, 5)]
    open(fn, "w").write(HDR + file_wrap(ls, ks))
if __name__ == "__main__":
    build("n.s")
    v = dict(UN=8, R=4, rdmargin=6, npro=6); build("na.s", k4kw=v, k2kw=v)
    v = dict(npro=2); build("nb.s", k4kw=v, k2kw=v)
    v = dict(R=4, rdmargin=6, npro=6, dma_span=0.5); build("nc.s", k4kw=v, k2kw=v)
    v = dict(lc=2); build("nd.s", k4kw=v, k2kw=v)
    v = dict(dma_span=0.3); build("ne.s", k4kw=v, k2kw=v)
```

```python
from g import *
from layout import *
def srd(a, s, lo, hi, nbytes):
    a(f"s_mov_b32 s{s}, {lo}"); a(f"s_mov_b32 s{s+1}, {hi}")
    a(f"s_mov_b32 s{s+2}, {nbytes}"); a(f"s_mov_b32 s{s+3}, 0x20000")
SID = [0]
def stamp(a, n):
    a(f"s_memtime s[{64+4*n}:{65+4*n}]")
    a(f"s_memrealtime s[{66+4*n}:{67+4*n}]")
def stamp_store(a, n, vtmp, srd_, wave_s, nw_log2=2):
    a("s_waitcnt lgkmcnt(0)")
    a(f"s_lshl_b32 s60, s2, {nw_log2}"); a(f"s_add_u32 s60, s60, s{wave_s}"); a("s_lshl_b32 s60, s60, 7"); a(f"s_add_u32 s60, s60, {STAMP_OFF + SID[0] * 0x80000}")
    a(f"v_mov_b32 v{vtmp+4}, 0")
    for i in range(n):
        for k in range(4): a(f"v_mov_b32 v{vtmp+k}, s{64+4*i+k}")
        a(f"buffer_store_dwordx4 v[{vtmp}:{vtmp+3}], v{vtmp+4}, s[{srd_}:{srd_+3}], s60 offen offset:{16*i}")
        a("s_nop 1")
def xlane_sum4(a, r, tmp):
    a(f"v_mov_b32 v{tmp}, v{r}")
    a("s_nop 1")
    a(f"v_permlane32_swap_b32 v{r}, v{tmp}")
    a(f"v_add_f32 v{r}, v{r}, v{tmp}")
    a(f"v_mov_b32 v{tmp}, v{r}")
    a("s_nop 1")
    a(f"v_permlane16_swap_b32 v{r}, v{tmp}")
    a(f"v_add_f32 v{r}, v{r}, v{tmp}")

def barstamp_store(a, base, n, vtmp, srd_):
    a("s_add_u32 s60, s60, 0x40000")
    for i in range(n):
        a(f"v_mov_b32 v{vtmp}, s{base+2*i}")
        a(f"buffer_store_dword v{vtmp}, v{vtmp+4}, s[{srd_}:{srd_+3}], s60 offen offset:{4*i}")
        a("s_nop 1")

def spread(c, k, m0, instrs, per=2, step=1, **kw):
    m = m0; first = True
    for i in range(0, len(instrs), per):
        kk, mm = k, m
        while mm >= c.M: mm -= c.M; kk += 1
        assert kk < 0 or k >= 0
        c.extra(kk, mm, instrs[i:i+per], **(kw if first else {}))
        first = False
        m += step
    return m

class Rec(A):
    def __call__(self, s): self.l.append(s)

def bf16_round(a, r):
    a(f"v_cvt_pk_bf16_f32 v{r}, v{r}, v{r}")
    a(f"v_and_b32 v{r}, 0xffff0000, v{r}")

def row_stats(a, bs, bq, want_mean=True, want_rstd=True):
    a(f"v_add_f32 v{bs}, v{bs}, v{bs+1}"); a(f"v_add_f32 v{bs+2}, v{bs+2}, v{bs+3}"); a(f"v_add_f32 v{bs}, v{bs}, v{bs+2}")
    xlane_sum4(a, bs, bs + 1)
    a(f"v_mul_f32 v{bs}, 0xba800000, v{bs}")
    if want_rstd:
        a(f"v_add_f32 v{bq}, v{bq}, v{bq+1}"); a(f"v_add_f32 v{bq+2}, v{bq+2}, v{bq+3}"); a(f"v_add_f32 v{bq}, v{bq}, v{bq+2}")
        xlane_sum4(a, bq, bq + 1)
        a(f"v_mul_f32 v{bq}, 0x3a800000, v{bq}")
        a(f"v_fma_f32 v{bq}, -v{bs}, v{bs}, v{bq}")
        a(f"v_max_f32 v{bq}, 0, v{bq}")
        bf16_round(a, bq)
        a(f"v_add_f32 v{bq}, 0x3727c5ac, v{bq}")
        bf16_round(a, bq)
        a(f"v_sqrt_f32 v{bq}, v{bq}")
        a("s_nop 0")
        bf16_round(a, bq)
        a(f"v_rcp_f32 v{bq}, v{bq}")
        a("s_nop 0")
    if want_mean:
        bf16_round(a, bs)

def interleave(lists):
    out = []
    n = max(len(l) for l in lists)
    for i in range(n):
        for l in lists:
            if i < len(l): out.append(l[i])
    return out

def resid_epilogue(a, accr, RT, xold, scale, tmp, vX, vRow, srd_ws, s_xnew, s_stat, vStat, final, srd_out=None, s_out=None, vOut=None, ones=None, stf=''):
    vs = [tmp + 8 + 2 * t for t in range(RT)]
    for t in range(RT):
        a(f"v_mov_b32 v{vs[t]}, 0"); a(f"v_mov_b32 v{vs[t]+1}, 0")
        for b in range(2):
            xo = xold(t, b)
            for h in range(2):
                r = accr(2 * b + h, t)
                for p in range(2):
                    a(f"v_lshlrev_b32 v{tmp+4*h+2*p}, 16, v{xo+2*h+p}")
                    a(f"v_and_b32 v{tmp+4*h+2*p+1}, 0xffff0000, v{xo+2*h+p}")
                for e in range(4):
                    if scale is None: a(f"v_add_f32 v{r+e}, v{r+e}, v{tmp+4*h+e}")
                    else: a(f"v_fma_f32 v{r+e}, v{r+e}, v{scale(t)}, v{tmp+4*h+e}")
            for h in range(2):
                r = accr(2 * b + h, t)
                for p in range(2):
                    a(f"v_cvt_pk_bf16_f32 v{xo+2*h+p}, v{r+2*p}, v{r+2*p+1}")
            if not final:
                a(f"buffer_store_dwordx4 v[{xo}:{xo+3}], v{vX}, s[{srd_ws}:{srd_ws+3}], s{s_xnew(t)} offen offset:{b*1024}{stf}")
                for p in range(4):
                    a(f"v_dot2_f32_bf16 v{vs[t]}, v{xo+p}, v{ones}, v{vs[t]}")
                for p in range(4):
                    a(f"v_dot2_f32_bf16 v{vs[t]+1}, v{xo+p}, v{xo+p}, v{vs[t]+1}")
            else:
                a("s_nop 1")
                a(f"v_permlane16_swap_b32 v{xo}, v{xo+2}")
                a(f"v_permlane16_swap_b32 v{xo+1}, v{xo+3}")
                a(f"buffer_store_dwordx4 v[{xo}:{xo+3}], v{vOut}, s[{srd_out}:{srd_out+3}], s{s_out(t)} offen offset:{b*64}")
    if not final:
        a("s_nop 2")
        ls = []
        for t in range(RT):
            for k in range(2):
                r = Rec(); xlane_sum4(r, vs[t] + k, tmp + 2 * t + k); ls.append(r.l)
        for x in interleave(ls): a(x)
        a(f"v_cmp_gt_u32 vcc, 16, v{vRow}")
        a("s_nop 1")
        a(f"v_cndmask_b32 v{tmp}, v{vs[0]+1}, v{vs[0]}, vcc")
        if RT == 2:
            a(f"v_cndmask_b32 v{tmp+1}, v{vs[1]+1}, v{vs[1]}, vcc")
            a(f"v_cmp_gt_u32 vcc, 512, v{vX}")
            a("s_nop 1")
            a(f"v_cndmask_b32 v{tmp}, v{tmp+1}, v{tmp}, vcc")
        a(f"buffer_store_dword v{tmp}, v{vStat}, s[{srd_ws}:{srd_ws+3}], s{s_stat} offen{stf}")

class Seq:
    def __init__(self, a):
        self.a = a; self.vm = {}; self.ld = {}; self.nv = 0; self.nl = 0; self.dv = 0; self.dl = 0
    def wait(self, needvm=(), needlds=(), alllds=False):
        w = []
        if needvm:
            i = max(self.vm[t] for t in needvm) + 1
            if i > self.dv:
                n = min(self.nv - i, 63); w.append(f"vmcnt({n})"); self.dv = self.nv - n
        if needlds or alllds:
            i = self.nl if alllds else max(self.ld[t] for t in needlds) + 1
            if i > self.dl:
                n = min(self.nl - i, 15); w.append(f"lgkmcnt({n})"); self.dl = self.nl - n
        if w: self.a("s_waitcnt " + " ".join(w))
    def __call__(self, txt, vm=None, lds=None, needvm=(), needlds=()):
        self.wait(needvm, needlds)
        self.a(txt)
        if vm is not None: self.vm[vm] = self.nv; self.nv += 1
        if lds is not None: self.ld[lds] = self.nl; self.nl += 1

def merge(main, fill, start=0, per=None):
    out = []
    n = len(main) - start
    k = 0
    for i, m in enumerate(main):
        out.append(m)
        if i >= start:
            tgt = (len(fill) * (i - start + 1) + n - 1) // n if per is None else min(len(fill), per * (i - start + 1))
            while k < tgt: out.append(fill[k]); k += 1
    out.extend(fill[k:])
    return out

_pfn = [0]
def code_prefetch(a, targets, vL, v0_, v1_, s0=10):
    a(f"s_lshr_b32 s{s0+2}, s2, 3"); a(f"s_and_b32 s{s0+2}, s{s0+2}, 31"); a(f"s_lshl_b32 s{s0+2}, s{s0+2}, 10")
    a(f"v_and_b32 v{v0_}, 7, v{vL}")
    a(f"v_lshlrev_b32 v{v0_}, 7, v{v0_}")
    a(f"v_add_u32 v{v0_}, s{s0+2}, v{v0_}")
    for t in targets:
        a(f"s_getpc_b64 s[{s0}:{s0+1}]")
        a(f"s_add_u32 s{s0}, s{s0}, {t}@rel32@lo+4")
        a(f"s_addc_u32 s{s0+1}, s{s0+1}, {t}@rel32@hi+12")
        a(f"v_min_u32 v{v1_}, END_{t}-{t}-4, v{v0_}")
        a(f"global_load_dword v{v1_}, v{v1_}, s[{s0}:{s0+1}]")
    return len(targets)

def lane_id(a, L):
    a(f"v_mbcnt_lo_u32_b32 v{L}, -1, 0")
    a(f"v_mbcnt_hi_u32_b32 v{L}, -1, v{L}")

def signal(a, s_flag, vL, v0_, v1_, stmp=18):
    a(f"v_min_u32 v{v0_}, 1, v{vL}"); a(f"v_lshlrev_b32 v{v0_}, 26, v{v0_}")
    a(f"v_mov_b32 v{v1_}, 1")
    a("s_cmp_eq_u32 s34, 0"); a(f"s_cselect_b32 s{stmp}, s{s_flag}, 0x7ff00000")
    a("s_waitcnt vmcnt(0)")
    a("s_barrier")
    a(f"buffer_atomic_add v{v1_}, v{v0_}, s[44:47], s{stmp} offen sc1")

def poll(a, lbl, s_flag, count, v0_, v1_):
    a(f"v_mov_b32 v{v0_}, 0")
    a("s_mov_b32 s17, 0")
    a.label(f"P{lbl}")
    a(f"buffer_load_dword v{v1_}, v{v0_}, s[44:47], s{s_flag} offen sc1")
    a("s_waitcnt vmcnt(0)")
    a(f"v_readfirstlane_b32 s16, v{v1_}")
    a(f"s_cmp_ge_u32 s16, {count}")
    a(f"s_cbranch_scc1 PE{lbl}")
    a("s_sleep 1")
    a("s_add_u32 s17, s17, 1")
    a("s_cmp_lt_u32 s17, 0x40000")
    a(f"s_cbranch_scc1 P{lbl}")
    a.label(f"PE{lbl}")

def row_stats2(a, b, want_mean=True, want_rstd=True):
    ks = [0, 1, 2, 3] if want_rstd else [0, 2]
    for k in ks: a(f"v_add_f32 v{b+k}, v{b+k}, v{b+4+k}")
    for k in ks: a(f"v_add_f32 v{b+8+k}, v{b+8+k}, v{b+12+k}")
    dst = {0: b, 1: b + 4, 2: b + 8, 3: b + 12}
    for k in ([1, 3] if want_rstd else []) + [0, 2]:
        a(f"v_add_f32 v{dst[k]}, v{b+k}, v{b+8+k}")
    ls = []
    for t in range(2):
        r = Rec(); bs = b + 8 * t; bq = bs + 4
        xlane_sum4(r, bs, bs + 1)
        r(f"v_mul_f32 v{bs}, 0xba800000, v{bs}")
        if want_rstd:
            xlane_sum4(r, bq, bq + 1)
            r(f"v_mul_f32 v{bq}, 0x3a800000, v{bq}")
            r(f"v_fma_f32 v{bq}, -v{bs}, v{bs}, v{bq}")
            r(f"v_max_f32 v{bq}, 0, v{bq}")
            bf16_round(r, bq)
            r(f"v_add_f32 v{bq}, 0x3727c5ac, v{bq}")
            bf16_round(r, bq)
            r(f"v_sqrt_f32 v{bq}, v{bq}")
            r("s_nop 0")
            bf16_round(r, bq)
            r(f"v_rcp_f32 v{bq}, v{bq}")
            r("s_nop 0")
        if want_mean: bf16_round(r, bs)
        ls.append(r.l)
    return ls

def epi_setup2(a, L, t0, t1, vRow, vStat, vOut, ones, stin_off, stout_off, final):
    a(f"v_and_b32 v{vRow}, 31, v{L}")
    a(f"v_and_b32 v{t0}, 15, v{L}")
    a(f"v_lshrrev_b32 v{t1}, 4, v{L}")
    a(f"v_lshlrev_b32 v{vStat}, 4, v{t0}")
    a(f"v_lshl_add_u32 v{vStat}, v{t1}, 2, v{vStat}")
    if final:
        a(f"v_and_b32 v{ones}, 1, v{t1}")
        a(f"v_lshlrev_b32 v{vOut}, 11, v{t0}")
        a(f"v_lshl_add_u32 v{vOut}, v{ones}, 5, v{vOut}")
        a(f"v_lshrrev_b32 v{t1}, 1, v{t1}")
        a(f"v_lshl_add_u32 v{vOut}, v{t1}, 4, v{vOut}")
    a(f"v_mov_b32 v{ones}, 0x3f803f80")
    a("s_lshl_b32 s54, s42, 15"); a("s_lshl_b32 s55, s38, 11")
    a("s_add_u32 s48, s54, s55")
    a("s_add_u32 s49, s48, 32768")
    if final:
        a("s_lshl_b32 s55, s38, 7"); a("s_add_u32 s50, s54, s55"); a("s_add_u32 s51, s50, 32768")
    a("s_lshl_b32 s54, s42, 11")
    a("s_lshl_b32 s55, s38, 8")
    a("s_add_u32 s52, s54, s55"); a(f"s_add_u32 s52, s52, {stout_off}")
    a(f"s_add_u32 s53, s54, {stin_off}")

POLL = dict(sleep=4, one=True)
def poll1(a, lbl, s_flag, count, v0_, v1_):
    if not POLL["one"]:
        return poll(a, lbl, s_flag, count, v0_, v1_)
    a("s_cmp_lg_u32 s34, 0")
    a(f"s_cbranch_scc1 PE{lbl}")
    a(f"v_mov_b32 v{v0_}, 0")
    a("s_mov_b32 s17, 0")
    a.label(f"P{lbl}")
    a(f"buffer_load_dword v{v1_}, v{v0_}, s[44:47], s{s_flag} offen sc1")
    a("s_waitcnt vmcnt(0)")
    a(f"v_readfirstlane_b32 s16, v{v1_}")
    a(f"s_cmp_ge_u32 s16, {count}")
    a(f"s_cbranch_scc1 PE{lbl}")
    a(f"s_sleep {POLL['sleep']}")
    a("s_add_u32 s17, s17, 1")
    a("s_cmp_lt_u32 s17, 0x40000")
    a(f"s_cbranch_scc1 P{lbl}")
    a.label(f"PE{lbl}")
    a("s_waitcnt vmcnt(0)")
    a("s_barrier")
```

```python
from g import *

class Core:
    def __init__(self, a, name, RT, NT, KSTEPS, R, vWr,
                 nontrans=(), UN=4, acc0=0, xa0=0, vX=None, vD=None,
                 bar_early=0, dma_span=0.9, xlead=None, gh=4, cap=2, npro=0, H=None, T=None, xstep=2048,
                 lgsafe=8, fine=2, accf=None, xf='a', wf='a', wa0=None, barstamp=None, rdmargin=9, skip='', init_acc=False, nwaves=4, ktab=None, m0_from=None, TM=1, tail_span=0.4, umap=None, XUN=None, XK=None, bs0=0, rddelay=5, xflag='', wpre=None, wdone=0):
        self.wdone = wdone
        self.xflag = xflag; self.wpre = wpre
        self.rddelay = rddelay
        self.bs0 = bs0
        self.umap = umap; self.XUN = XUN; self.XK = XK
        self.TM = TM; self.tail_span = tail_span
        self.m0_from = m0_from; self._nk = 10**9
        self.ktab = ktab
        self.sXo = 4; self.sWo = 6; self.sXi = 8; self.sWi = 9
        self.init_acc = init_acc
        self.skip = skip
        self.rdmargin = rdmargin
        self.a = a; self.name = name
        self.RT = RT; self.NT = NT; self.KSTEPS = KSTEPS; self.ND = ND = NT * 2 // nwaves
        self.stage_bytes = stage_bytes = NT * 2048; self.wstep = stage_bytes; self.xstep = xstep
        self.R = R; self.vWr = vWr; self.SPG = 65536 // stage_bytes; self.NG = (UN + self.SPG - 1) // self.SPG; self.NDG = (ND + 3) // 4
        self.nontrans = set(nontrans)
        self.UN = UN
        self.acc0 = acc0; self.xa0 = xa0
        self.xslot = 2 * RT * 4
        if self.XUN is None: self.XUN = UN
        self.wa0 = xa0 + self.XUN * self.xslot if wa0 is None else wa0
        self.vX = vX; self.vD = vD
        self.bar_early = bar_early; self.dma_span = dma_span
        self.xlead = xlead if xlead is not None else UN - 1
        self.wlead = UN - 1
        self.gh = gh; self.cap = cap
        self.H = H if H is not None else UN
        self.T = T if T is not None else UN
        assert (KSTEPS - self.H - self.T) % UN == 0 and KSTEPS >= self.H + self.T
        assert self.T >= UN - 1 or self.T == 0
        assert (UN * NT) % R == 0 or KSTEPS == self.H + self.T
        self.agpr_end = self.wa0 + 8 * R
        self.M = NT * RT * 2
        self.npro = npro
        self.lgsafe = lgsafe; self.fine = fine
        self.accf = accf; self.xf = xf; self.wf = wf; self.barstamp = barstamp
        self.sW = 44; self.sWoff = 24; self.sXoff = 25; self.sM0 = 26; self.sCnt = 27
        self.mb = max((NT - R) * RT * 2 + RT * 2 - 1 - bar_early, 0)
        self.extras = []

    def extra(self, k, m, txt, cost=None, vm=None, needvm=(), lds=None, needlds=()):
        if isinstance(txt, str): txt = [txt]
        self.extras.append(dict(k=k, m=m, txt=txt, cost=len(txt) if cost is None else cost, vm=vm, needvm=tuple(needvm), lds=lds, needlds=tuple(needlds)))

    def accr(self, j, t): return self.acc0 + (j * self.RT + t) * 4
    def acc(self, j, t):
        if self.accf:
            f, r = self.accf(j, t); return f"{f}[{r}:{r+3}]"
        r = self.accr(j, t); return f"v[{r}:{r+3}]"
    def xreg(self, i, s, t):
        r = self.xa0 + (i % self.XUN) * self.xslot + (t * 2 + s) * 4
        return f"{self.xf}[{r}:{r+3}]"
    def wreg(self, f, s, q=None):
        r = self.wa0 + (f % self.R) * 8 + 4 * s
        if q is None: return f"{self.wf}[{r}:{r+3}]"
        return f"{self.wf}[{r+2*q}:{r+2*q+1}]"

    def txt_vm(self, tag):
        kt = self.ktab
        if tag[0] == "x":
            _, i, t, s = tag
            txt = []
            so = self.sXo + i % 2 if kt else self.sXoff
            if t == 0 and s == 0 and i > 0 and not kt:
                txt.append(f"s_add_u32 s{self.sXoff}, s{self.sXoff}, {self.xstep}")
            txt.append(f"buffer_load_dwordx4 {self.xreg(i,s,t)}, v{self.vX + t}, s[{self.sW}:{self.sW+3}], s{so} offen offset:{s*1024}{self.xflag}")
            if t == 0 and s == 0 and kt:
                txt.append(f"s_add_u32 s{self.sXi}, s{self.sXi}, 1")
                txt.append(f"v_readlane_b32 s{self.sXo + (i+1) % 2}, v{kt[0]}, s{self.sXi}")
            return txt
        _, i, d = tag
        txt = []
        so = self.sWo + i % 2 if kt else self.sWoff
        if d % 4 == 0 or (self.m0_from is not None and i >= self._nk - self.m0_from):
            txt.append(f"s_add_u32 m0, s{self.sM0}, {(i % self.UN) * self.stage_bytes + 4096 * (d // 4)}")
            if d == 0 and kt:
                txt.append(f"s_add_u32 s{self.sWi}, s{self.sWi}, 1")
            elif d == 0 and i > 0:
                txt.append(f"s_add_u32 s{self.sWoff}, s{self.sWoff}, {self.wstep}")
            else:
                txt.append("s_nop 0")
        txt.append(f"buffer_load_dwordx4 v{self.vD + d // 4}, s[{self.sW}:{self.sW+3}], s{so} offen offset:{(d%4)*1024} lds")
        if d == 0 and kt:
            txt.append(f"v_readlane_b32 s{self.sWo + (i+1) % 2}, v{kt[1]}, s{self.sWi}")
            if self.ND < 4: txt.append("s_nop 1")
        return txt
    def txt_rd(self, tag):
        _, f, s = tag
        i, j = self.unit(f)
        stg = i % self.UN
        return [f"ds_read_b128 {self.wreg(f,s)}, v{self.vWr + stg // self.SPG} offset:{(stg % self.SPG) * self.stage_bytes + (j*2+s)*1024}"]

    def unit(self, f, nk=None):
        nk = self._nk if nk is None else nk
        e = f - (nk - self.TM) * self.NT
        if e < 0: return f // self.NT, f % self.NT
        return nk - self.TM + e % self.TM, e // self.TM
    def fin_slot(self, j, t):
        e = j * self.TM + self.TM - 1
        ts = list(range(self.RT))
        if e % 2: ts = ts[::-1]
        pos = e * 2 * self.RT + ts.index(t) * 2 + 1
        return pos
    def fin_order(self, j):
        e = j * self.TM + self.TM - 1
        ts = list(range(self.RT))
        return ts[::-1] if e % 2 else ts
    def extra_at(self, pos, txt, **kw):
        self.extra(-self.TM + pos // self.M, pos % self.M, txt, **kw)
    def mfma_seq(self):
        seq = []
        for j in range(self.NT):
            ts = list(range(self.RT))
            if j % 2: ts = ts[::-1]
            for n, t in enumerate(ts):
                ss = (0, 1) if n % 2 == 0 else (1, 0)
                for s in ss: seq.append((j, t, s))
        return seq
    def slot_of(self, j, t):
        return max(n for n, (jj, tt, s) in enumerate(self.mfma_seq()) if jj == j and tt == t)

    def steady_vm_slots(self):
        M, mb, ND, RT = self.M, self.mb, self.ND, self.RT
        res = []
        span = int(M * self.dma_span)
        for d in range(ND):
            res.append((mb + 1 + (d * span) // ND, ("w", self.wlead, d)))
        nx = 2 * RT
        for n in range(nx):
            res.append((((2 * n + 1) * M) // (2 * nx), ("x", self.xlead, n // 2, n % 2)))
        return res

    def build(self, nk):
        M, NT, RT, R = self.M, self.NT, self.RT, self.R
        tot = nk * M
        self._nk = nk
        W = []; X = []
        for i in range(-max(self.UN, self.xlead) - 1, nk):
            for p, tg in self.steady_vm_slots():
                tag = (tg[0], i + tg[1]) + tuple(tg[2:])
                if tag[1] < 0 or tag[1] >= nk: continue
                if tag[0] == "x" and self.XK is not None and tag[1] >= self.XK: continue
                if tag[0] == "w" and tag[1] > nk - self.TM:
                    p = self.mb + 1 + (tag[2] * int(M * self.tail_span)) // self.ND
                (W if tag[0] == "w" else X).append((i * M + p, tag))
        W.sort(key=lambda z: z[1][1:]); X.sort(key=lambda z: z[1][1:])
        wp = self.wpre or 1
        assert wp <= self.UN
        pro = [t for S, t in W if self.wdone <= t[1] < wp] + ([("gate",)] if self.wpre else []) + [t for S, t in X if t[1] == 0]
        W = [z for z in W if z[1][1] >= wp]; X = [z for z in X if z[1][1] > 0]
        def dl(tag):
            i = min(tag[1], nk - self.TM)
            return (i - 1) * M + self.mb if tag[0] == "w" else i * M
        for _ in range(self.npro):
            q = W if (dl(W[0][1]) <= dl(X[0][1]) and W[0][0] < 0) else X
            assert q[0][0] < 0
            pro.append(q.pop(0)[1])
        load = [0] * tot
        post = [[] for _ in range(tot)]
        for e in self.extras:
            k = e["k"] if e["k"] >= 0 else nk + e["k"]
            assert (0 <= e["k"] < self.H) or (-self.T <= e["k"] < 0), e
            post[k * M + e["m"]].append(("ex", e)); load[k * M + e["m"]] += e["cost"]
        var = lambda m: m < self.H * M or m >= (nk - self.T) * M
        last = -10**9; skipped = 0
        for m in range(tot):
            if m - last < (self.gh if m < self.H * M else 1): continue
            cand = [q for q in (W, X) if q and q[0][0] <= m]
            if not cand: continue
            if (load[m] > 0 or (m + 1) % (2 * RT) == 0) and (m % M) != M - 1 and M > 16 and skipped < 2:
                skipped += 1
                continue
            skipped = 0
            q = min(cand, key=lambda q: dl(q[0][1]))
            S, tag = q.pop(0)
            assert m < dl(tag), ("vm op misses deadline", tag, m)
            post[m].append(("vm", tag)); load[m] += 2 + (len(self.txt_vm(tag)) - 1)
            last = m
            if not var(m): assert m - S <= 3, ("backlog not cleared in head", tag, S, m)
        assert not W and not X
        pro_rd = [("lds", ("r", f, s)) for f in range(R) for s in range(2)]
        m_next = 0
        for f in range(nk * NT - R):
            e = f * 2 * RT + 2 * RT - 1
            m = max(e, m_next)
            kend = (e // M + 1) * M - 1
            lim = max(e, min(kend, e + (R - 1) * 2 * RT - self.rdmargin, e + self.rddelay))
            m = min(m, lim)
            for s in range(2):
                while load[m] >= self.cap - 1 and m < lim: m += 1
                post[m].append(("lds", ("r", f + R, s))); load[m] += 1
                if m < lim: m += 1
            m_next = m
        seq = self.mfma_seq()
        steps = []
        for i in range(nk):
            it = []
            seen = set()
            for n, (j, t, s) in enumerate(seq):
                if n == self.mb and i + 1 <= nk - self.TM: it.append(("bar", i))
                first = (i == 0 and (j, t) not in seen); seen.add((j, t))
                f = i * NT + j
                ii, jj = self.unit(f)
                if self.umap: ii, jj = self.umap(ii, jj)
                it.append(("mfma", ii, jj, t, s, first, f))
                it.extend(post[i * M + n])
            steps.append(it)
        pitems = [(("gate",) if t[0] == "gate" else ("vm", t)) for t in pro] + [("hook",), ("bar", -1)] + pro_rd
        return pitems, steps

    def emit(self, hook=None, gate=None):
        a = self.a
        UN, H, T = self.UN, self.H, self.T
        niter = (self.KSTEPS - H - T) // UN
        simit = min(niter, 3)
        nk = H + UN * simit + T
        pitems, steps = self.build(nk)
        def norm(item, base):
            if item[0] == "vm": t = item[1]; return ("vm", t[0], t[1] - base) + tuple(t[2:])
            if item[0] == "lds": t = item[1]; return ("lds", t[1] - base * self.NT) + tuple(t[2:])
            if item[0] == "bar": return ("bar",)
            return ("mfma",) + tuple(item[2:5])
        for i in range(H + UN, H + UN * simit):
            assert [norm(x, i) for x in steps[i]] == [norm(x, i - UN) for x in steps[i - UN]], ("not periodic", i)
        prog = [(("P", n), it) for n, it in enumerate(pitems)]
        for i in range(nk):
            for n, it in enumerate(steps[i]):
                if i < H: key = ("H", i, n)
                elif i < H + UN * simit: key = ("L", (i - H) % UN, n)
                else: key = ("T", i - (H + UN * simit), n)
                prog.append((key, it))
        vmq = {}; ldq = {}; nv = 0; nl = 0
        for i in range(self.wdone):
            for d in range(self.ND): vmq[("w", i, d)] = -1000
        need = {}
        mn = lambda x, y: y if x is None else (x if y is None else min(x, y))
        for key, item in prog:
            vmN = lgN = None
            if item[0] == "vm": vmq[item[1]] = nv; nv += 1
            elif item[0] == "lds": ldq[item[1]] = nl; nl += 1
            elif item[0] == "ex":
                e = item[1]
                if e["needvm"]: vmN = nv - 1 - max(vmq[t] for t in e["needvm"])
                if e["needlds"]: lgN = nl - 1 - max(ldq[t] for t in e["needlds"])
                if e["vm"] is not None: vmq[e["vm"]] = nv; nv += 1
                if e["lds"] is not None: ldq[e["lds"]] = nl; nl += 1
            elif item[0] == "bar":
                i = item[1]
                ks = [i + 1] if i + 1 < nk - self.TM else range(i + 1, nk)
                vmN = nv - 1 - max(vmq[("w", k_, d)] for d in range(self.ND) for k_ in ks)
            elif item[0] == "mfma":
                _, i, j, t, s, first, f = item
                if i < self.fine: vmN = nv - 1 - max(vmq[("x", i, t, 0)], vmq[("x", i, t, 1)])
                else: vmN = nv - 1 - max(vmq[("x", i, tt, ss)] for tt in range(self.RT) for ss in range(2))
                lgN = nl - 1 - max(ldq[("r", f, ss)] for ss in range(2))
            if vmN is not None or lgN is not None:
                o = need.get(key, (None, None))
                need[key] = (mn(o[0], vmN), mn(o[1], lgN))
        self.vmq = vmq; self.nv = nv
        st = dict(vm=10**9, lg=10**9)
        npro_vm = sum(1 for it in pitems if it[0] == "vm")
        def emit_items(items):
            for key, item in items:
                if key in need:
                    vmN, lgN = need[key]
                    w = []
                    if vmN is not None and vmN < st["vm"]:
                        vmN = min(vmN, 63)
                        w.append(f"vmcnt({vmN})"); st["vm"] = vmN
                    if lgN is not None and lgN < st["lg"]:
                        lgN = min(lgN, 15 if (key[0] == "H" and key[1] == 0) else self.lgsafe)
                        w.append(f"lgkmcnt({lgN})"); st["lg"] = lgN
                    if w: a("s_waitcnt " + " ".join(w))
                if item[0] == "vm":
                    if not (item[1][0] in self.skip and item[1][1] >= UN):
                        for tx in self.txt_vm(item[1]): a(tx)
                    st["vm"] += 1
                elif item[0] == "lds":
                    if not ('r' in self.skip and key[0] != 'P'):
                        for tx in self.txt_rd(item[1]): a(tx)
                    st["lg"] += 1
                elif item[0] == "ex":
                    for tx in item[1]["txt"]: a(tx)
                    if item[1]["vm"] is not None: st["vm"] += 1
                    if item[1]["lds"] is not None: st["lg"] += 1
                elif item[0] == "bar":
                    a("s_barrier")
                    if self.barstamp is not None:
                        n = {"P": 0, "H": 1, "L": None, "T": 1 + H}[key[0]]
                        if n is not None:
                            if key[0] != "P": n += key[1]
                            n -= self.bs0
                            if 0 <= n < 9: a(f"s_memtime s[{self.barstamp+2*n}:{self.barstamp+2*n+1}]")
                elif item[0] == "gate":
                    gate()
                elif item[0] == "hook":
                    if hook: hook(npro_vm)
                    st["vm"] = st["lg"] = 10**9
                elif item[0] == "mfma":
                    _, i, j, t, s, first, f = item
                    w = self.wreg(f, s); x = self.xreg(i, s, t)
                    A_, B_ = (x, w) if j in self.nontrans else (w, x)
                    c = "0" if (first and not self.init_acc) else self.acc(j, t)
                    a(f"v_mfma_f32_16x16x32_bf16 {self.acc(j,t)}, {A_}, {B_}, {c}")
        emit_items([p for p in prog if p[0][0] in ("P", "H")])
        if niter > 0:
            if niter > 1:
                a(f"s_mov_b32 s{self.sCnt}, {niter}")
                a.label(f"L_{self.name}")
                st["vm"] = st["lg"] = 10**9
            body = []
            for i in range(H, H + UN):
                for n, it in enumerate(steps[i]): body.append((("L", i - H, n), it))
            emit_items(body)
            if niter > 1:
                a(f"s_sub_u32 s{self.sCnt}, s{self.sCnt}, 1")
                a(f"s_cmp_lg_u32 s{self.sCnt}, 0")
                a(f"s_cbranch_scc1 L_{self.name}")
        emit_items([p for p in prog if p[0][0] == "T"])
    def wait_vm(self, tags):
        return self.nv - 1 - max(self.vmq[t] for t in tags)

    def setup_addr(self, L, s_wave, rbB):
        a = self.a
        a(f"v_lshlrev_b32 v{self.vX}, 4, v{L}")
        for t in range(1, self.RT): a(f"v_add_u32 v{self.vX+t}, {t*rbB}, v{self.vX}")
        a(f"s_mul_i32 s{self.sM0}, s{s_wave}, {self.ND*1024}")
        a(f"v_add_u32 v{self.vD}, s{self.sM0}, v{self.vX}")
        for g in range(1, self.NDG): a(f"v_add_u32 v{self.vD+g}, {4096*g}, v{self.vD}")
    def setup_rd(self):
        a = self.a
        for g in range(self.NG):
            if g == 0: a(f"v_mov_b32 v{self.vWr}, v{self.vX}")
            else: a(f"v_add_u32 v{self.vWr+g}, {g*self.SPG*self.stage_bytes}, v{self.vX}")

    def setup_ktab(self, L, G, s_rho, s_j0, t0, t1):
        a = self.a; vKX, vKW = self.ktab
        a(f"v_add_u32 v{t0}, s{s_j0}, v{L}")
        a(f"v_subrev_u32 v{t1}, {self.KSTEPS}, v{t0}")
        a(f"v_min_u32 v{t0}, v{t0}, v{t1}")
        a(f"v_add_u32 v{t1}, s{s_rho}, v{t0}")
        a(f"v_and_b32 v{t1}, {G-1}, v{t1}")
        a(f"v_and_b32 v{t0}, {0x100 - G}, v{t0}")
        a(f"v_or_b32 v{t0}, v{t0}, v{t1}")
        a(f"v_mul_u32_u24 v{vKX}, {self.xstep}, v{t0}")
        a(f"v_mul_u32_u24 v{vKW}, {self.wstep}, v{t0}")
        a(f"v_add_u32 v{vKX}, s{self.sXoff}, v{vKX}")
        a(f"v_add_u32 v{vKW}, s{self.sWoff}, v{vKW}")
        a(f"s_mov_b32 s{self.sXi}, 0"); a(f"s_mov_b32 s{self.sWi}, 0")
        a(f"v_readlane_b32 s{self.sXo}, v{vKX}, 0")
        a(f"v_readlane_b32 s{self.sWo}, v{vKW}, 0")
```

```python
from common import *

def plane_dma_lane(a, L, pitch, dst, t0, t1, t2):
    a(f"v_lshrrev_b32 v{t0}, 3, v{L}")
    a(f"v_bfe_u32 v{t1}, v{L}, 4, 2")
    a(f"v_lshlrev_b32 v{t1}, 1, v{t1}")
    a(f"v_and_b32 v{t2}, 7, v{L}")
    a(f"v_xor_b32 v{t1}, v{t1}, v{t2}")
    a(f"v_lshlrev_b32 v{t1}, 4, v{t1}")
    a(f"v_mul_u32_u24 v{t0}, {pitch}, v{t0}")
    a(f"v_add_u32 v{dst}, v{t0}, v{t1}")

def plane_read_bases(a, L, vWr, t0, t1, t2):
    a(f"v_lshrrev_b32 v{t0}, 2, v{L}")
    a(f"v_lshlrev_b32 v{t0}, 7, v{t0}")
    a(f"v_and_b32 v{t1}, 3, v{L}")
    a(f"v_lshl_add_u32 v{t0}, v{t1}, 3, v{t0}")
    a(f"v_bfe_u32 v{t1}, v{L}, 3, 2")
    for aa in range(4):
        a(f"v_xor_b32 v{t2}, {aa}, v{t1}")
        a(f"v_lshl_add_u32 v{vWr+aa}, v{t2}, 5, v{t0}")

def gen_k0(name, ldflag="nt", stflag="", st=False, ngate=48, nxt=(), tlb=0, v2=False, down=False, st2=False):
    a = A()
    N1, N3, N2 = 192, 4 * ngate, 64 + (224 if down else 0)
    NW = N1 + N3 + N2; NX = 128
    a(f"s_cmp_ge_u32 s2, {NW+NX}")
    a(f"s_cbranch_scc1 E_{name}")
    a("s_load_dwordx4 s[4:7], s[0:1], 0")
    a("s_load_dwordx2 s[40:41], s[0:1], 16")
    a("s_load_dwordx4 s[8:11], s[0:1], 32")
    a("s_load_dwordx2 s[42:43], s[0:1], 48")
    a("s_load_dwordx2 s[12:13], s[0:1], 72")
    a("v_and_b32 v1, 63, v0")
    a("v_lshrrev_b32 v2, 6, v0")
    a("s_nop 0")
    a("v_readfirstlane_b32 s14, v2")
    if nxt: code_prefetch(a, nxt, 1, 62, 63, s0=56)
    a(f"s_cmp_lt_u32 s2, {NX}")
    a(f"s_cbranch_scc1 X_{name}")
    a(f"s_sub_u32 s15, s2, {NX}")
    a("s_waitcnt lgkmcnt(0)")
    a(f"s_cmp_ge_u32 s15, {N1}")
    a(f"s_cbranch_scc1 C2_{name}")
    a("s_mul_i32 s36, s15, 1366"); a("s_lshr_b32 s36, s36, 16")
    a("s_mul_i32 s22, s36, 48"); a("s_sub_u32 s22, s15, s22")
    a("s_mov_b32 s16, s6"); a("s_mov_b32 s17, s7"); a("s_movk_i32 s21, 6144"); a(f"s_mov_b32 s18, {1024*6144}")
    a("s_and_b32 s23, s22, 15"); a(f"s_mul_i32 s23, s23, {16*24576}")
    a("s_lshr_b32 s24, s22, 4")
    if v2:
        a("s_lshl_b32 s25, s36, 2"); a("s_add_u32 s25, s25, s14")
        a("s_lshl_b32 s26, s25, 14"); a("s_sub_u32 s27, s24, 1"); a("s_lshl_b32 s27, s27, 13"); a("s_add_u32 s26, s26, s27")
        a("s_lshl_b32 s27, s25, 11"); a(f"s_add_u32 s27, s27, {16*16384}")
        a("s_cmp_eq_u32 s24, 0")
        a("s_cselect_b32 s26, s27, s26"); a("s_cselect_b32 s27, 16, 1"); a("s_lshl_b32 s27, s27, 11")
        a("s_add_u32 s30, s23, s26"); a(f"s_add_u32 s30, s30, {WF1}")
        for j in range(1, 4): a(f"s_add_u32 s{30+j}, s{29+j}, s27")
        a("s_mov_b32 s34, 0")
    else:
        a("s_lshl_b32 s24, s24, 13")
        a("s_add_u32 s30, s23, s24"); a(f"s_add_u32 s30, s30, {WF1}")
        for j in range(1, 4): a(f"s_add_u32 s{30+j}, s30, {j*2048}")
        a("s_movk_i32 s34, 24576")
    a("s_mov_b32 s35, 1")
    a(f"s_lshl_b32 s37, s15, 8"); a(f"s_add_u32 s37, s37, {CSQ}")
    a(f"s_branch G_{name}")
    a.label(f"C2_{name}")
    a(f"s_cmp_ge_u32 s15, {N1+N2}")
    a(f"s_cbranch_scc1 C3_{name}")
    a(f"s_sub_u32 s15, s15, {N1}")
    a("s_lshr_b32 s36, s15, 4"); a("s_and_b32 s22, s15, 15")
    a("s_movk_i32 s21, 2048"); a("s_movk_i32 s34, 8192"); a("s_mov_b32 s35, 0")
    a("s_cmp_ge_u32 s36, 4")
    a("s_cselect_b32 s16, s42, s40"); a("s_cselect_b32 s17, s43, s41")
    a(f"s_mov_b32 s18, {1024*2048}"); a(f"s_cselect_b32 s18, {3584*2048}, s18")
    a(f"s_mov_b32 s30, {WF2}"); a(f"s_cselect_b32 s30, {WF4}, s30")
    a("s_cselect_b32 s23, 56, 16"); a("s_cselect_b32 s24, 4, 0")
    a("s_sub_u32 s36, s36, s24")
    a("s_mul_i32 s23, s23, s22"); a("s_lshl_b32 s23, s23, 13"); a("s_add_u32 s30, s30, s23")
    for j in range(1, 4): a(f"s_add_u32 s{30+j}, s30, {j*2048}")
    a(f"s_branch G_{name}")
    a.label(f"C3_{name}")
    a(f"s_sub_u32 s15, s15, {N1+N2}")
    a(f"s_mul_i32 s36, s15, {(65536 + ngate - 1) // ngate}"); a("s_lshr_b32 s36, s36, 16")
    a(f"s_mul_i32 s22, s36, {ngate}"); a("s_sub_u32 s22, s15, s22")
    a("s_mov_b32 s38, s22")
    a("s_cmp_ge_u32 s22, 56")
    a("s_cselect_b32 s16, s10, s8"); a("s_cselect_b32 s17, s11, s9")
    a("s_cselect_b32 s23, 56, 0"); a("s_cselect_b32 s24, 2048, 0")
    a("s_sub_u32 s22, s22, s23"); a(f"s_add_u32 s24, s24, {WF3}")
    a("s_movk_i32 s21, 7168"); a(f"s_mov_b32 s18, {1024*7168}")
    for j in range(4):
        a(f"s_lshl_b32 s25, s22, 2"); a(f"s_add_u32 s25, s25, {j}")
        a("s_mul_i32 s26, s25, 9363"); a("s_lshr_b32 s26, s26, 16")
        a("s_mul_i32 s27, s26, 7"); a("s_sub_u32 s27, s25, s27")
        a("s_and_b32 s28, s26, 1"); a("s_mul_i32 s28, s28, 6"); a("s_add_u32 s27, s27, s28")
        a("s_sub_u32 s28, s27, 7"); a("s_min_u32 s27, s27, s28")
        a("s_lshl_b32 s27, s27, 12")
        a(f"s_mul_i32 s26, s26, {16*28672}")
        a(f"s_add_u32 s{30+j}, s26, s27"); a(f"s_add_u32 s{30+j}, s{30+j}, s24")
    a("s_movk_i32 s34, 28672")
    a("s_mov_b32 s35, 2")
    a.label(f"G_{name}")
    a("s_lshl_b32 s36, s36, 2"); a("s_add_u32 s36, s36, s14")
    a("s_mov_b32 s19, 0x20000")
    plane_dma_lane(a, 1, "s21", 3, 4, 5, 6)
    a("s_lshl_b32 s20, s22, 7")
    a("s_lshl_b32 s23, s21, 6"); a("s_mul_i32 s23, s23, s36"); a("s_add_u32 s20, s20, s23")
    a("s_lshl_b32 s24, s21, 3")
    a("s_lshl_b32 s26, s14, 13")
    for d in range(8):
        a(f"s_add_u32 m0, s26, {d*1024}")
        if d: a("s_add_u32 s20, s20, s24")
        else: a("s_nop 0")
        a(f"buffer_load_dwordx4 v3, s[16:19], s20 offen {ldflag} lds")
    srd(a, 44, "s12", "s13", WS_USED)
    a("s_mul_i32 s23, s34, s36")
    for j in range(4): a(f"s_add_u32 s{30+j}, s{30+j}, s23")
    plane_read_bases(a, 1, 8, 4, 5, 6)
    for aa in range(4): a(f"v_add_u32 v{8+aa}, s26, v{8+aa}")
    a("v_lshlrev_b32 v7, 4, v1")
    for e in range(4): a(f"v_mov_b32 v{12+e}, 0x3f803f80")
    a("v_cmp_gt_u32 s[50:51], 16, v1"); a("v_cmp_gt_u32 s[52:53], 32, v1"); a("v_cmp_gt_u32 s[54:55], 48, v1")
    a("s_waitcnt vmcnt(0)")
    for j in range(4):
        for s in range(2):
            for qq in range(2):
                r = 16 + j * 8 + s * 4 + qq * 2
                a(f"ds_read_b64_tr_b16 v[{r}:{r+1}], v{8+j} offset:{(32*s+16*qq)*128}")
    for j in range(4):
        for s in range(2):
            r = 16 + j * 8 + s * 4
            a(f"s_waitcnt lgkmcnt({14 - 2*(2*j+s)})")
            a(f"buffer_store_dwordx4 v[{r}:{r+3}], v7, s[44:47], s{30+j} offen offset:{s*1024} {stflag}")
            a(f"v_mfma_f32_16x16x32_bf16 v[{48+4*j}:{51+4*j}], v[12:15], v[{r}:{r+3}], {'0' if s == 0 else f'v[{48+4*j}:{51+4*j}]'}")
    a("s_cmp_eq_u32 s35, 0")
    a(f"s_cbranch_scc1 E_{name}")
    a("s_nop 6")
    a("v_cndmask_b32 v56, v60, v56, s[54:55]")
    a("v_cndmask_b32 v52, v56, v52, s[52:53]")
    a("v_cndmask_b32 v48, v52, v48, s[50:51]")
    a("v_lshlrev_b32 v2, 2, v1")
    a("s_cmp_eq_u32 s35, 1")
    a(f"s_cbranch_scc1 Q_{name}")
    a(f"s_mul_i32 s23, s36, {7168*4}"); a("s_lshl_b32 s24, s38, 8"); a("s_add_u32 s23, s23, s24"); a(f"s_add_u32 s23, s23, {CSP}")
    a("buffer_store_dword v48, v2, s[44:47], s23 offen")
    a("s_endpgm")
    a.label(f"Q_{name}")
    a("v_lshlrev_b32 v3, 2, v0")
    a("ds_write_b32 v3, v48 offset:32768")
    a("s_waitcnt lgkmcnt(0)")
    a("s_barrier")
    a("s_cmp_lg_u32 s14, 0")
    a(f"s_cbranch_scc1 E_{name}")
    for i in range(4): a(f"ds_read_b32 v{60+i}, v3 offset:{32768+i*256}")
    a("s_waitcnt lgkmcnt(0)")
    a("v_add_f32 v60, v60, v61"); a("v_add_f32 v62, v62, v63"); a("v_add_f32 v60, v60, v62")
    a("buffer_store_dword v60, v2, s[44:47], s37 offen")
    a("s_endpgm")
    a.label(f"X_{name}")
    a("s_mov_b32 s15, s2")
    a("v_and_b32 v3, 15, v1")
    a("v_lshrrev_b32 v4, 4, v1")
    a("v_lshlrev_b32 v5, 11, v3")
    a("v_and_b32 v6, 1, v4")
    a("v_lshl_add_u32 v5, v6, 5, v5")
    a("v_lshrrev_b32 v7, 1, v4")
    a("v_lshl_add_u32 v5, v7, 4, v5")
    a("s_lshl_b32 s20, s15, 15"); a("s_lshl_b32 s21, s14, 9"); a("s_add_u32 s20, s20, s21")
    a("s_waitcnt lgkmcnt(0)")
    srd(a, 16, "s4", "s5", 2048 * 2048)
    srd(a, 24, "s12", "s13", WS_USED)
    for b in range(8):
        a(f"buffer_load_dwordx4 v[{16+4*b}:{19+4*b}], v5, s[16:19], s20 offen offset:{b*64}")
    if tlb:
        a(f"v_mul_u32_u24 v61, {tlb // 256}, v0"); a("v_lshlrev_b32 v61, 8, v61")
        a("buffer_load_dword v61, v61, s[24:27], 0 offen")
    for e in range(4): a(f"v_mov_b32 v{8+e}, 0")
    a("v_lshlrev_b32 v12, 4, v0")
    a(f"s_mul_i32 s22, s15, {ZSZ//128}"); a(f"s_add_u32 s22, s22, {KV}")
    a(f"v_cmp_gt_u32 vcc, {ZSZ//2048}, v0")
    a("s_and_saveexec_b64 s[28:29], vcc")
    a(f"s_cbranch_execz Z_{name}")
    a("buffer_store_dwordx4 v[8:11], v12, s[24:27], s22 offen sc1")
    a.label(f"Z_{name}")
    a("s_mov_b64 exec, s[28:29]")
    a("v_lshlrev_b32 v12, 4, v1")
    a("v_mov_b32 v13, 0x3f803f80")
    a("s_lshl_b32 s21, s15, 15"); a("s_lshl_b32 s22, s14, 13"); a("s_add_u32 s21, s21, s22"); a(f"s_add_u32 s21, s21, {XF}")
    a("s_add_u32 s22, s21, 4096")
    for e in range(8): a(f"v_mov_b32 v{48+e}, 0")
    a("s_waitcnt vmcnt(0)")
    for b in range(8):
        r = 16 + 4 * b
        a(f"v_permlane16_swap_b32 v{r}, v{r+2}")
        a(f"v_permlane16_swap_b32 v{r+1}, v{r+3}")
        a(f"buffer_store_dwordx4 v[{r}:{r+3}], v12, s[24:27], s{21 + b // 4} offen offset:{(b%4)*1024}")
        for p in range(4):
            a(f"v_dot2_f32_bf16 v{48+b//2}, v{r+p}, v13, v{48+b//2}")
            a(f"v_dot2_f32_bf16 v{52+b//2}, v{r+p}, v{r+p}, v{52+b//2}")
    a("s_nop 2")
    ls = []
    for e in range(8):
        r = Rec(); xlane_sum4(r, 48 + e, 56 + e); ls.append(r.l)
    for x in interleave(ls):
        if x.startswith("s_nop"): continue
        a(x)
    if st2:
        a("v_cmp_gt_u32 s[50:51], 16, v1"); a("v_cmp_gt_u32 s[52:53], 32, v1"); a("v_cmp_gt_u32 s[54:55], 48, v1")
        a("v_lshlrev_b32 v5, 4, v3")
        a("v_lshl_add_u32 v5, v4, 8, v5")
        for b in (48, 52):
            a(f"v_cndmask_b32 v{b+2}, v{b+3}, v{b+2}, s[54:55]")
            a(f"v_cndmask_b32 v{b+1}, v{b+2}, v{b+1}, s[52:53]")
            a(f"v_cndmask_b32 v{b}, v{b+1}, v{b}, s[50:51]")
        a("v_mov_b32 v49, v52")
        a("s_lshr_b32 s21, s15, 1"); a("s_lshl_b32 s21, s21, 12"); a("s_lshl_b32 s22, s14, 10"); a("s_add_u32 s21, s21, s22")
        a("s_and_b32 s22, s15, 1"); a("s_lshl_b32 s22, s22, 3"); a("s_add_u32 s21, s21, s22"); a(f"s_add_u32 s21, s21, {STA}")
        a("buffer_store_dwordx2 v[48:49], v5, s[24:27], s21 offen")
    else:
        a("v_cmp_eq_u32 vcc, 0, v6")
        a("v_lshlrev_b32 v5, 6, v3")
        a("v_lshl_add_u32 v5, v6, 17, v5")
        for e in range(4): a(f"v_cndmask_b32 v{48+e}, v{52+e}, v{48+e}, vcc")
        a("s_lshl_b32 s21, s15, 10"); a("s_lshl_b32 s22, s14, 4"); a("s_add_u32 s21, s21, s22"); a(f"s_add_u32 s21, s21, {STA}")
        a("buffer_store_dwordx4 v[48:51], v5, s[24:27], s21 offen")
    a.label(f"E_{name}")
    a("s_endpgm")
    return kernel_wrap(name, a.text(), vgpr=64, sgpr=64), 32768 + 1024, NW + NX
```

```python
from common import *
from core import Core

def tile_map_16x16(a, lc=3):
    lx = 4 - lc
    a("s_and_b32 s35, s2, 7"); a("s_lshr_b32 s36, s2, 3")
    a(f"s_lshr_b32 s37, s35, {lx}"); a(f"s_lshl_b32 s37, s37, {5-lc}"); a(f"s_lshr_b32 s38, s36, {lc}"); a("s_add_u32 s37, s37, s38")
    a(f"s_and_b32 s38, s35, {(1<<lx)-1}"); a(f"s_lshl_b32 s38, s38, {lc}"); a(f"s_and_b32 s39, s36, {(1<<lc)-1}"); a("s_add_u32 s38, s38, s39")

def epi_setup(a, L, t0, t1, vRow, vStat, vS, vOut, ones, stin_off, stout_off, final, RT=2):
    a(f"v_and_b32 v{vRow}, 31, v{L}")
    a(f"v_and_b32 v{t0}, 15, v{L}")
    a(f"v_lshrrev_b32 v{t1}, 4, v{L}")
    a(f"v_lshlrev_b32 v{vS}, 6, v{t0}")
    a(f"v_lshl_add_u32 v{vS}, v{t1}, 4, v{vS}")
    if RT == 2:
        a(f"v_lshrrev_b32 v{vStat}, 5, v{L}")
        a(f"v_lshl_add_u32 v{vStat}, v{vStat}, 4, v{t0}")
        a(f"v_lshlrev_b32 v{vStat}, 6, v{vStat}")
    else:
        a(f"v_lshlrev_b32 v{vStat}, 6, v{t0}")
    a(f"v_and_b32 v{ones}, 1, v{t1}")
    a(f"v_lshl_add_u32 v{vStat}, v{ones}, 17, v{vStat}")
    if final:
        a(f"v_lshlrev_b32 v{vOut}, 11, v{t0}")
        a(f"v_lshl_add_u32 v{vOut}, v{ones}, 5, v{vOut}")
        a(f"v_lshrrev_b32 v{t1}, 1, v{t1}")
        a(f"v_lshl_add_u32 v{vOut}, v{t1}, 4, v{vOut}")
    a(f"v_mov_b32 v{ones}, 0x3f803f80")
    a("s_lshl_b32 s54, s42, 15")
    a("s_lshl_b32 s55, s38, 11")
    a("s_add_u32 s48, s54, s55")
    if XF: a(f"s_add_u32 s48, s48, {XF}")
    a("s_add_u32 s49, s48, 32768")
    if final:
        a("s_lshl_b32 s55, s38, 7"); a("s_add_u32 s50, s54, s55"); a("s_add_u32 s51, s50, 32768")
    a("s_lshl_b32 s54, s42, 10")
    a("s_lshl_b32 s55, s38, 2")
    a("s_add_u32 s52, s54, s55"); a(f"s_add_u32 s52, s52, {stout_off}")
    a(f"s_add_u32 s53, s54, {stin_off}")

def gen_k4(name, final, R=4, st=False, UN=4, lc=3, rot=None, nxt=(), attn=False, ph=None, **kw):
    a = A() if ph is None else ph
    if ph is not None: st = False; kw = dict(kw, xflag=' sc1')
    RT = 2; NT = 4
    vX = 32; vD = 34; ones = 35; vWr = 36; L = 40; t0, t1, t2 = 41, 42, 43
    vRow, vStat, vS, vOut = 44, 45, 46, 47
    vSt = 48
    vXo = 64
    tmp = 80
    KS = 16 if attn else 56
    c = Core(a, name, RT, NT, KS, R, vWr, vX=vX, vD=vD, UN=UN, barstamp=(84 if st else None), ktab=((38, 39) if rot else None), **kw)
    if ph is None:
        a("s_cmp_ge_u32 s2, 256")
        a(f"s_cbranch_scc1 E_{name}")
        if st: stamp(a, 0)
        a("s_load_dwordx2 s[32:33], s[0:1], 72")
        a(f"v_lshrrev_b32 v{t0}, 6, v0")
        a(f"v_and_b32 v{L}, 63, v0")
        a(f"v_readfirstlane_b32 s34, v{t0}")
    else:
        lane_id(a, L)
    if final: a("s_load_dwordx2 s[30:31], s[0:1], 56")
    tile_map_16x16(a, lc)
    rbB = KS * 2048
    c.setup_addr(L, 34, rbB)
    a("s_lshl_b32 s42, s37, 3"); a("s_lshl_b32 s43, s34, 1"); a("s_add_u32 s42, s42, s43")
    a(f"s_mul_i32 s{c.sXoff}, s42, {rbB}"); a(f"s_add_u32 s{c.sXoff}, s{c.sXoff}, {PQ if attn else HF}")
    a(f"s_mul_i32 s{c.sWoff}, s38, {KS*8192}"); a(f"s_add_u32 s{c.sWoff}, s{c.sWoff}, {WF2 if attn else WF4}")
    if rot:
        G, mc, mr, dr = rot
        a(f"s_and_b32 s40, s36, {(1<<lc)-1}"); a(f"s_lshr_b32 s41, s36, {lc}")
        a(f"s_mul_i32 s40, s40, {mc}"); a(f"s_mul_i32 s43, s41, {mr}"); a("s_add_u32 s40, s40, s43")
        a(f"s_mul_i32 s41, s41, {dr}")
        c.setup_ktab(L, G, 40, 41, t0, t1)
    if ph is None:
        a("s_waitcnt lgkmcnt(0)")
        srd(a, 44, "s32", "s33", WS_USED)
    def gate():
        hook0()
        a("s_lshr_b32 s19, s37, 1"); a("s_lshl_b32 s19, s19, 8"); a(f"s_add_u32 s19, s19, {FLG + 64}")
        poll(a, name, 19, 32, t0, t1)
    def hook(nvm):
        if ph is None: hook0()
    def hook0():
        a("s_waitcnt lgkmcnt(0)")
        c.setup_rd()
        if final: srd(a, 56, "s30", "s31", 2048 * 2048)
        epi_setup(a, L, t0, t1, vRow, vStat, vS, vOut, ones, STB, STB if attn else STA, final)
        a(f"s_add_u32 s55, s53, {SQOFF}")
        a(f"v_lshlrev_b32 v{t2}, 2, v{L}")
        if st: stamp(a, 1); a("s_waitcnt lgkmcnt(0)")
    n = 0
    for t in range(RT):
        for k in range(2):
            if attn: continue
            c.extra(-3 + n // 2, 3 + 8 * (n % 2), f"buffer_load_dwordx4 v[{vSt+8*t+4*k}:{vSt+8*t+4*k+3}], v{vS}, s[44:47], s{53 if k == 0 else 55} offen offset:{t*1024}", cost=2, vm=("stt", t, k)); n += 1
    n = 0
    for t in range(RT):
        for b in range(2):
            c.extra(-3 + n // 2, 6 + 8 * (n % 2), f"buffer_load_dwordx4 v[{vXo+8*t+4*b}:{vXo+8*t+4*b+3}], v{vX}, s[44:47], s{48+t} offen offset:{b*1024}", cost=2, vm=("xo", t, b)); n += 1
    if nxt:
        r = Rec(); code_prefetch(r, nxt, L, t0, t1)
        c.extra(-1, 2, r.l[:11], vm=("cpf",))
        if len(nxt) > 1: c.extra(-1, 6, r.l[11:], vm=("cpf2",))
    c.emit(hook, gate)
    if st: stamp(a, 2)
    if attn:
        a("s_cmp_lg_u32 s34, 3")
        a(f"s_cbranch_scc1 C0_{name}")
        a("s_cmp_ge_u32 s2, 112")
        a(f"s_cbranch_scc1 C0_{name}")
        a("s_lshl_b32 s40, s2, 8"); a(f"s_add_u32 s41, s40, {CSF + 3072*4}"); a(f"s_add_u32 s40, s40, {CSP}")
        for i in range(16):
            a(f"buffer_load_dword v{vSt+i}, v{t2}, s[44:47], s40 offen")
            if i < 15: a(f"s_add_u32 s40, s40, {7168*4}")
        a(f"s_waitcnt vmcnt({len(nxt)+16})")
        a(f"s_branch C1_{name}")
        a.label(f"C0_{name}")
        a(f"s_waitcnt vmcnt({len(nxt)})")
        a("s_nop 7")
        a.label(f"C1_{name}")
    else:
        a(f"s_waitcnt vmcnt({len(nxt)})")
    ls = [[]]
    for t in range(0 if attn else RT):
        r = Rec(); row_stats(r, vSt + 8 * t, vSt + 8 * t + 4, want_mean=False)
        r(f"v_mul_f32 v{vSt+8*t+4}, v{vSt+8*t+4}, v{vSt+8*t+4}")
        ls.append(r.l)
    for x in interleave(ls): a(x)
    resid_epilogue(a, c.accr, RT, lambda t, b: vXo + 8 * t + 4 * b, None if attn else (lambda t: vSt + 8 * t + 4), tmp, vX, vRow, 44,
                   lambda t: 48 + t, 52, vStat, final, srd_out=56, s_out=lambda t: 50 + t, vOut=vOut, ones=ones)
    if attn:
        a("s_cmp_lg_u32 s34, 3")
        a(f"s_cbranch_scc1 C_{name}")
        a("s_cmp_ge_u32 s2, 112")
        a(f"s_cbranch_scc1 C_{name}")
        a("s_waitcnt vmcnt(5)")
        for i in range(1, 16): a(f"v_add_f32 v{vSt}, v{vSt}, v{vSt+i}")
        a(f"buffer_store_dword v{vSt}, v{t2}, s[44:47], s41 offen")
        a.label(f"C_{name}")
    if st:
        stamp(a, 3); a("s_waitcnt vmcnt(0)"); stamp(a, 4)
        stamp_store(a, 5, tmp, 44, 34)
        barstamp_store(a, 84, 9, tmp, 44)
    if ph is not None: return UN * c.stage_bytes, c.agpr_end
    a.label(f"E_{name}")
    a("s_endpgm")
    return kernel_wrap(name, a.text(), vgpr=92, agpr=c.agpr_end, sgpr=102), UN * c.stage_bytes

def gen_k4s(name, final, R=4, st=False, UN=4, lr=2, **kw):
    a = A()
    RT = 2; NT = 8
    vX = 64; vD = 66; ones = 67; vWr = 68; L = 70; t0, t1, t2 = 71, 72, 73
    vRow, vStat, vS, vOut = 74, 75, 76, 77
    vF = 78; vZ = 79
    vSt = 80
    vXo = 96
    tmp = 112
    c = Core(a, name, RT, NT, 28, R, vWr, vX=vX, vD=vD, UN=UN, barstamp=(84 if st else None), **kw)
    a("s_cmp_ge_u32 s2, 256")
    a(f"s_cbranch_scc1 E_{name}")
    if st: stamp(a, 0)
    a("s_load_dwordx2 s[32:33], s[0:1], 72")
    if final: a("s_load_dwordx2 s[30:31], s[0:1], 56")
    a(f"v_lshrrev_b32 v{t0}, 6, v0")
    a(f"v_and_b32 v{L}, 63, v0")
    a(f"v_readfirstlane_b32 s34, v{t0}")
    lc = 5 - lr; lxc = 3 - lc
    a("s_and_b32 s40, s2, 1")
    a("s_bfe_u32 s35, s2, 0x20001"); a("s_lshr_b32 s36, s2, 3")
    a(f"s_lshr_b32 s37, s35, {lxc}"); a(f"s_lshl_b32 s37, s37, {lr}"); a(f"s_lshr_b32 s39, s36, {lc}"); a("s_add_u32 s37, s37, s39")
    a(f"s_and_b32 s41, s35, {(1<<lxc)-1}"); a(f"s_lshl_b32 s41, s41, {lc}"); a(f"s_and_b32 s39, s36, {(1<<lc)-1}"); a("s_add_u32 s41, s41, s39")
    a("s_lshl_b32 s38, s41, 1"); a("s_add_u32 s38, s38, s40")
    rbB = 3584 * 16 * 2
    c.setup_addr(L, 34, rbB)
    a("s_xor_b32 s39, s40, 1"); a("s_lshl_b32 s39, s39, 13")
    a(f"v_xor_b32 v{vD}, s39, v{vD}")
    a("s_lshl_b32 s42, s37, 3"); a("s_lshl_b32 s43, s34, 1"); a("s_add_u32 s42, s42, s43")
    a(f"s_mul_i32 s{c.sXoff}, s42, {rbB}"); a(f"s_mul_i32 s43, s40, {28*2048}"); a(f"s_add_u32 s{c.sXoff}, s{c.sXoff}, s43"); a(f"s_add_u32 s{c.sXoff}, s{c.sXoff}, {HF}")
    a(f"s_mul_i32 s{c.sWoff}, s38, {28*16384}"); a(f"s_add_u32 s{c.sWoff}, s{c.sWoff}, {WF4}")
    a("s_waitcnt lgkmcnt(0)")
    srd(a, 44, "s32", "s33", WS_USED)
    def hook(nvm):
        c.setup_rd()
        if final: srd(a, 56, "s30", "s31", 2048 * 2048)
        epi_setup(a, L, t0, t1, vRow, vStat, vS, vOut, ones, STB, STA, final)
        a(f"s_add_u32 s55, s53, {SQOFF}")
        a("s_lshl_b32 s10, s37, 4"); a("s_add_u32 s10, s10, s38"); a("s_lshl_b32 s10, s10, 2"); a("s_add_u32 s10, s10, s34")
        a("s_xor_b32 s11, s10, 4")
        a("s_lshl_b32 s12, s10, 13"); a(f"s_add_u32 s12, s12, {EXCH}"); a("s_add_u32 s13, s12, 4096")
        a("s_lshl_b32 s14, s11, 13"); a(f"s_add_u32 s14, s14, {EXCH}"); a("s_add_u32 s15, s14, 4096")
        a("s_lshl_b32 s10, s10, 2"); a(f"s_add_u32 s10, s10, {FLG}")
        a("s_lshl_b32 s11, s11, 2"); a(f"s_add_u32 s11, s11, {FLG}")
        a(f"v_mov_b32 v{vF}, 1"); a(f"v_mov_b32 v{vZ}, 0")
        if st: stamp(a, 1); a("s_waitcnt lgkmcnt(0)")
    n = 0
    for t in range(RT):
        for k in range(2):
            c.extra(-3, 3 + 8 * n, f"buffer_load_dwordx4 v[{vSt+8*t+4*k}:{vSt+8*t+4*k+3}], v{vS}, s[44:47], s{53 if k == 0 else 55} offen offset:{t*1024}", cost=2, vm=("stt", t, k)); n += 1
    n = 0
    for t in range(RT):
        for b in range(2):
            c.extra(-2, 3 + 8 * n, f"buffer_load_dwordx4 v[{vXo+8*t+4*b}:{vXo+8*t+4*b+3}], v{vX}, s[44:47], s{48+t} offen offset:{b*1024}", cost=2, vm=("xo", t, b)); n += 1
    for j in range(4):
        for t in range(RT):
            n = j * 2 + t
            r = c.accr(j, t)
            c.extra(-1, c.slot_of(j, t) + 8, f"buffer_store_dwordx4 v[{r}:{r+3}], v{vX}, s[44:47], s{14 + n // 4} offen offset:{(n%4)*1024} sc1", cost=2, vm=("snd", n))
    c.emit(hook)
    if st: stamp(a, 2)
    a(f"s_waitcnt vmcnt(8)")
    ls = []
    for t in range(RT):
        r = Rec(); row_stats(r, vSt + 8 * t, vSt + 8 * t + 4, want_mean=False)
        r(f"v_mul_f32 v{vSt+8*t+4}, v{vSt+8*t+4}, v{vSt+8*t+4}")
        ls.append(r.l)
    for x in interleave(ls): a(x)
    a("s_waitcnt vmcnt(0)")
    a("s_mov_b64 exec, 1")
    a(f"buffer_store_dword v{vF}, v{vZ}, s[44:47], s11 offen sc1")
    a("s_mov_b32 s17, 0")
    a.label(f"P_{name}")
    a(f"buffer_load_dword v{t0}, v{vZ}, s[44:47], s10 offen sc1")
    a("s_waitcnt vmcnt(0)")
    a(f"v_readfirstlane_b32 s16, v{t0}")
    a("s_cmp_eq_u32 s16, 1")
    a(f"s_cbranch_scc1 PD_{name}")
    a("s_sleep 1")
    a("s_add_u32 s17, s17, 1")
    a("s_cmp_lt_u32 s17, 0x40000")
    a(f"s_cbranch_scc1 P_{name}")
    a.label(f"PD_{name}")
    a("s_mov_b64 exec, -1")
    for n in range(8):
        r = c.accr(n // 2, n % 2)
        a(f"buffer_load_dwordx4 v[{r}:{r+3}], v{vX}, s[44:47], s{12 + n // 4} offen offset:{(n%4)*1024} sc1")
    for n in range(8):
        r = c.accr(n // 2, n % 2); k = c.accr(4 + n // 2, n % 2)
        a(f"s_waitcnt vmcnt({7-n})")
        for h in range(2):
            a(f"v_pk_add_f32 v[{k+2*h}:{k+2*h+1}], v[{k+2*h}:{k+2*h+1}], v[{r+2*h}:{r+2*h+1}]")
    resid_epilogue(a, lambda j, t: c.accr(4 + j, t), RT, lambda t, b: vXo + 8 * t + 4 * b, lambda t: vSt + 8 * t + 4, tmp, vX, vRow, 44,
                   lambda t: 48 + t, 52, vStat, final, srd_out=56, s_out=lambda t: 50 + t, vOut=vOut, ones=ones)
    if st:
        stamp(a, 3); a("s_waitcnt vmcnt(0)"); stamp(a, 4)
        stamp_store(a, 5, tmp, 44, 34)
        barstamp_store(a, 84, 9, tmp, 44)
    a.label(f"E_{name}")
    a("s_endpgm")
    return kernel_wrap(name, a.text(), vgpr=124, agpr=c.agpr_end, sgpr=102), UN * c.stage_bytes
```

```python
MB = 1 << 20
XF = 0
PQ = 4 * MB
HF = 8 * MB
WF1 = 22 * MB
WF2 = 28 * MB
WF3 = 30 * MB
WF4 = 44 * MB
STA = 51 * MB
STB = STA + 256 * 1024
SQOFF = 128 * 1024
CSF = STB + 256 * 1024
KV = CSF + 64 * 1024
KVZ = 128 * 1024
KVSZ = 132 * 1024
FLG = KV + 2 * KVSZ
ZSZ = 2 * KVSZ + 24 * 1024
def FL(lay, typ): return FLG + (lay * 6 + typ) * 2048
CSP = KV + 320 * 1024
CSQ = CSP + 448 * 1024
GO = CSQ + 64 * 1024
STAMP_OFF = 54 * MB
EXCH = 53 * MB
WS_USED = 61 * MB
```

```python
from common import *
from core import Core
from k1 import pk_bc
from k4 import epi_setup, tile_map_16x16
from k0 import gen_k0, plane_dma_lane, plane_read_bases

class Ctx:
    def __init__(self, a, st):
        self.a = a; self.st = st; self.n = 0; self.names = []
    def T(self, nm):
        if self.st and self.n < 19:
            self.a(f"s_memrealtime s[{64+2*self.n}:{65+2*self.n}]"); self.n += 1; self.names.append(nm)

def cpf(r, lab, vL, v0_, v1_, s0=10):
    code_prefetch(r, (lab,), vL, v0_, v1_, s0)

SC = " sc1"

def pre_ops(kind, n, vL):
    if kind == "a": ND, stage, vD, base, KS = 4, 16384, 130, WF1, 24
    elif kind == "u": ND, stage, vD, base, KS = 7, 28672, 228, WF3, 16
    else: ND, stage, vD, base, KS = 2, 8192, 250, WF4, 56
    g = ["s_and_b32 s12, s2, 7", "s_lshr_b32 s13, s2, 3"]
    if kind == "a": g += ["s_and_b32 s12, s12, 3", "s_lshl_b32 s12, s12, 2", "s_and_b32 s13, s13, 3"]
    elif kind == "u": g += ["s_and_b32 s12, s12, 3", "s_lshl_b32 s12, s12, 3", "s_and_b32 s13, s13, 7"]
    else: g += ["s_and_b32 s12, s12, 1", "s_lshl_b32 s12, s12, 3", "s_and_b32 s13, s13, 7"]
    g += ["s_add_u32 s12, s12, s13", f"s_mul_i32 s14, s12, {KS*stage}", f"s_add_u32 s14, s14, {base}",
          f"s_mul_i32 s15, s34, {ND*1024}", "s_add_u32 s14, s14, s15", f"v_lshlrev_b32 v{vD}, 4, v{vL}"]
    out = [g]
    for i in range(n):
        for d in range(ND):
            off = i * stage + d * 1024
            out.append([f"s_add_u32 m0, s15, {off}", f"s_add_u32 s13, s14, {off}", f"buffer_load_dwordx4 v{vD}, s[44:47], s13 offen lds"])
    return out

def weave(a, lines, groups, start=0, every=8):
    gi = 0
    for n, x in enumerate(lines):
        if n >= start and (n - start) % every == 0 and gi < len(groups):
            for y in groups[gi]: a(y)
            gi += 1
        a(x)
    for g in groups[gi:]:
        for y in g: a(y)

def phase_attn(cx, nm, lay, gated, sigout, nxt, R=4, per=6, e0=3, sig=185, pollp=225, npre=10, dsp=3, xl=3, wpre=1, wdone=0, pre=0, **kw):
    a = cx.a
    RT = 2; NT = 8; UN = 6
    STAGE = 16384
    AUX = UN * STAGE; RED = AUX + 2048; REDW = 8448
    LDS = 159744; KVL = 155648
    KVo = KV + lay * KVSZ
    wa0 = 96
    vX = 128; vD = 130; vWr = 131
    L = 133; t0, t1, t2 = 134, 135, 136
    vA = 137; vB = 138; vZw = 139; vOne = 140
    vSt = 142; vN4 = 158; vCs = 174; pt = 182; vKV = 190; tmp = 238
    vRed = 254; vRedG = 255
    def umap(stg, u):
        if stg < 16: return stg, u
        return 8 * ((stg - 16) % 2) + u, 8 + (stg - 16) // 2
    K = dict(gh=3, npro=4, rdmargin=6, xlead=3, rddelay=1); K.update(kw)
    c = Core(a, nm, RT, NT, 24, R, vWr, nontrans=range(0, 8), vX=vX, vD=vD, init_acc=True, xf='a', wf='v', xa0=0, wa0=wa0,
             UN=UN, XUN=16, XK=16, m0_from=8, umap=umap, H=12, T=12, xflag=SC, wpre=wpre, wdone=wdone, **K)
    lane_id(a, L)
    a("s_and_b32 s35, s2, 7"); a("s_lshr_b32 s36, s2, 3")
    a("s_lshr_b32 s37, s35, 2"); a("s_lshl_b32 s37, s37, 3"); a("s_lshr_b32 s38, s36, 2"); a("s_add_u32 s37, s37, s38")
    a("s_and_b32 s38, s35, 3"); a("s_lshl_b32 s38, s38, 2"); a("s_and_b32 s39, s36, 3"); a("s_add_u32 s38, s38, s39")
    rbB = 32768
    c.setup_addr(L, 34, rbB)
    a("s_lshl_b32 s42, s37, 3"); a("s_lshl_b32 s43, s34, 1"); a("s_add_u32 s42, s42, s43")
    a(f"s_lshl_b32 s{c.sXoff}, s42, 15")
    a(f"s_mul_i32 s{c.sWoff}, s38, {24*STAGE}"); a(f"s_add_u32 s{c.sWoff}, s{c.sWoff}, {WF1 + max(wdone-1,0)*STAGE}")
    a(f"v_lshlrev_b32 v{pt+2}, 2, v{L}")
    a("s_lshl_b32 s50, s38, 8"); a("s_lshl_b32 s51, s34, 12"); a("s_add_u32 s50, s50, s51"); a(f"s_add_u32 s50, s50, {CSQ}")
    cx.ready()
    for p in range(4):
        a(f"buffer_load_dword v{vCs+p}, v{pt+2}, s[44:47], s50 offen")
        if p < 3: a(f"s_add_u32 s50, s50, {3072*4}")
    a(f"v_and_b32 v{t0}, 15, v{L}")
    a(f"v_lshrrev_b32 v{t1}, 4, v{L}")
    a("s_lshl_b32 s48, s42, 11"); a(f"s_add_u32 s48, s48, {STA}")
    def ldstats():
        for i in range(4):
            a(f"buffer_load_dwordx4 v[{vSt+4*i}:{vSt+4*i+3}], v{vX}, s[44:47], s48 offen offset:{i*1024}{SC}")
    def cstab(nafter):
        a("s_lshl_b32 s51, s34, 8")
        a(f"v_add_u32 v{vA}, s51, v{pt+2}")
        a(f"s_add_u32 s51, s51, {AUX + 1024}")
        a(f"v_lshl_add_u32 v{pt+3}, v{t0}, 2, s51")
        a(f"v_lshl_add_u32 v{pt+4}, v{t1}, 4, s51")
        a(f"v_add_u32 v{pt+5}, {AUX}, v{vA}")
        a(f"v_lshlrev_b32 v{pt+6}, 2, v{t0}"); a(f"v_add_u32 v{pt+6}, {AUX}, v{pt+6}")
        a(f"v_lshlrev_b32 v{pt+7}, 4, v{t1}"); a(f"v_add_u32 v{pt+7}, {AUX}, v{pt+7}")
        c.setup_rd()
        a(f"s_waitcnt vmcnt({nafter})")
        a(f"v_add_f32 v{vCs}, v{vCs}, v{vCs+1}"); a(f"v_add_f32 v{vCs+2}, v{vCs+2}, v{vCs+3}"); a(f"v_add_f32 v{vCs}, v{vCs}, v{vCs+2}")
        a(f"ds_write_b32 v{pt+5}, v{vCs}")
    def csread():
        a("s_waitcnt lgkmcnt(0)")
        a("s_barrier")
        for j in range(8): a(f"ds_read_b32 v{vCs+j}, v{pt+6} offset:{256 + j*64}")
        for j in range(4):
            r = c.accr(8 + j, 0)
            a(f"ds_read_b128 v[{r}:{r+3}], v{pt+7} offset:{j*64}")
    if not gated: ldstats()
    def gate():
        if gated:
            cstab((wpre - wdone) * c.ND); csread()
            a("s_lshl_b32 s19, s37, 7"); a(f"s_add_u32 s19, s19, {FL(lay - 1, 4)}")
            poll1(a, nm + "g", 19, 16, t2, vB)
            cx.T(nm + ".gate")
            ldstats()
    def hook(nvm):
        nx = nvm - (wpre - wdone) * c.ND
        if not gated: cstab(nvm + 4)
        a(f"s_waitcnt vmcnt({nx if gated else nvm})")
        ls = []
        l2 = row_stats2(a, vSt)
        for t in range(RT):
            r = Rec(); r.l = l2[t]
            r(f"ds_write_b32 v{pt+3}, v{vSt+8*t} offset:{t*128}")
            r(f"ds_write_b32 v{pt+3}, v{vSt+8*t+4} offset:{t*128+64}")
            r(f"ds_read_b128 v[{vN4+8*t}:{vN4+8*t+3}], v{pt+4} offset:{t*128}")
            r(f"ds_read_b128 v[{vN4+8*t+4}:{vN4+8*t+7}], v{pt+4} offset:{t*128+64}")
            ls.append(r.l)
        for x in interleave(ls): a(x)
        if not gated: csread()
        a("s_waitcnt lgkmcnt(0)")
        for j in range(8):
            for t in range(2):
                for h in range(2):
                    a(pk_bc(c.accr(j, t) + 2 * h, vN4 + 8 * t + 2 * h, vCs + j))
        if cx.st: cx.T(nm + ".pro"); a("s_waitcnt lgkmcnt(0)")
    def w2addr(i): return 98304 + i * 8192 if i < 7 else (i - 7) * 8192
    def dma_txt(n):
        o = [f"s_add_u32 m0, s21, {w2addr(n//2)}"]
        o.append("s_add_u32 s20, s20, 8192" if (n % 2 == 0 and n) else "s_nop 0")
        o.append(f"buffer_load_dwordx4 v{pt+5}, s[44:47], s20 offen offset:{(n%2)*1024} lds")
        return o
    r = Rec()
    for j in range(4):
        for t in (1, 0):
            for e in range(4):
                r(f"v_mul_f32 v{c.accr(8+j,t)+e}, v{c.accr(8+j,0)+e}, v{vSt+8*t}")
    r("s_mov_b32 s52, 0x358637bd"); r("s_mov_b32 s53, 0x358637bd"); r("s_mov_b32 s54, 0x3fb8aa3b")
    for t in range(RT):
        for e in range(4): r(f"v_mul_f32 v{vN4+8*t+e}, s54, v{vN4+8*t+4+e}")
        r(f"v_mul_f32 v{vSt+8*t}, s54, v{vSt+8*t+4}")
    r(f"v_mov_b32 v{vOne}, 1.0"); r(f"v_mov_b32 v{vOne+1}, 1.0")
    for e in range(4): r(f"v_mov_b32 v{tmp+8+e}, 0x3f803f80")
    for e in range(4): r(f"v_mov_b32 v{tmp+12+e}, 0x358637bd")
    r(f"s_mul_i32 s55, s34, {REDW}"); r(f"s_add_u32 s55, s55, {RED}")
    r(f"v_add_u32 v{vRed}, s55, v{vX}")
    r(f"v_lshl_add_u32 v{vRedG}, v{t1}, 4, s55")
    r(f"v_add_u32 v{vB}, {RED}, v{vA}")
    r("s_lshl_b32 s56, s38, 13"); r(f"s_add_u32 s56, s56, {KVo}"); r("s_add_u32 s57, s56, 4096")
    r("s_lshl_b32 s59, s38, 7"); r(f"s_add_u32 s59, s59, {FL(lay, 0)}")
    r("s_lshl_b32 s58, s38, 8"); r(f"s_add_u32 s58, s58, {KVo + KVZ}")
    r("s_lshl_b32 s60, s42, 15"); r("s_lshl_b32 s61, s38, 11"); r("s_add_u32 s60, s60, s61"); r(f"s_add_u32 s60, s60, {PQ}")
    r("s_add_u32 s61, s60, 32768")
    r(f"v_min_u32 v{pt+2}, 1, v{L}"); r(f"v_lshlrev_b32 v{pt+2}, 26, v{pt+2}")
    r(f"v_mov_b32 v{pt+3}, 1"); r(f"v_mov_b32 v{t0}, 0")
    r("s_lshl_b32 s40, s34, 11"); r("s_add_u32 s40, s40, s56")
    r("s_lshl_b32 s41, s34, 10"); r(f"s_add_u32 s41, s41, {KVL}"); r(f"v_add_u32 v{vZw}, s41, v{vX}"); r(f"v_add_u32 v{pt+4}, {KVL}, v{vX}")
    r(f"v_lshlrev_b32 v{t1}, 4, v{t1}")
    r("s_lshl_b32 s20, s38, 17"); r(f"s_add_u32 s20, s20, {WF2}")
    r("s_lshl_b32 s21, s34, 11")
    r(f"v_add_u32 v{pt+5}, s21, v{vX}")
    r("s_lshl_b32 s22, s37, 7"); r(f"s_add_u32 s22, s22, {FL(lay, 1)}")
    r("s_lshl_b32 s23, s42, 15"); r(f"s_add_u32 s23, s23, {PQ}")
    r(f"v_add_u32 v{pt+6}, 65536, v{vX}"); r(f"v_add_u32 v{pt+7}, 131072, v{vX}")
    spread(c, 5, 1, r.l, per=1)
    c.extra(11, 1, ["s_cmp_eq_u32 s34, 0", "s_cselect_b32 s62, s58, 0x7ff00000", "s_cselect_b32 s63, s59, 0x7ff00000", "s_cselect_b32 s19, s22, 0x7ff00000"])
    def phi4k(r_, dst, rs, rsl, tb):
        o = []
        for h in range(2): o.append(f"v_pk_mul_f32 v[{tb+2*h}:{tb+2*h+1}], v[{r_+2*h}:{r_+2*h+1}], v[{rsl+2*h}:{rsl+2*h+1}]")
        for e in range(4): o.append(f"v_exp_f32_e64 v{tb+e}, v{tb+e} clamp")
        for h in range(2): o.append(f"v_pk_fma_f32 v[{r_+2*h}:{r_+2*h+1}], v[{r_+2*h}:{r_+2*h+1}], v[{rs+2*h}:{rs+2*h+1}], v[{vOne}:{vOne+1}]")
        for e in range(4): o.append(f"v_max_f32 v{r_+e}, v{r_+e}, v{tb+e}")
        for h in range(2): o.append(f"v_pk_add_f32 v[{r_+2*h}:{r_+2*h+1}], v[{r_+2*h}:{r_+2*h+1}], s[52:53]")
        for h in range(2): o.append(f"v_cvt_pk_bf16_f32 v{dst+h}, v{r_+2*h}, v{r_+2*h+1}")
        return o
    ev = []
    for j in range(4):
        for t in range(RT):
            ev += phi4k(c.accr(j, t), c.accr(j, 0) + 2 * t, vN4 + 8 * t + 4, vN4 + 8 * t, tmp + 4 * t)
    for j in range(4, 8):
        for t in range(RT):
            r_ = c.accr(j, t)
            for h in range(2): ev.append(f"v_pk_mul_f32 v[{r_+2*h}:{r_+2*h+1}], v[{r_+2*h}:{r_+2*h+1}], v[{vN4+8*t+4+2*h}:{vN4+8*t+5+2*h}]")
            for h in range(2): ev.append(f"v_cvt_pk_bf16_f32 v{c.accr(j,0)+2*t+h}, v{r_+2*h}, v{r_+2*h+1}")
    m = spread(c, -9, 16 + e0, ev[:128], per=per)
    m = max(m, c.M + 3)
    m = spread(c, -9, m, ev[128:], per=per) - c.M
    m += 1
    def X(pos, txt, **k2): c.extra(-8 + pos // c.M, pos % c.M, txt, **k2)
    for hl in range(2):
        for es in range(2):
            for ds in range(2):
                d = vKV + ((hl * 2 + es) * 2 + ds) * 4
                A_ = c.accr(hl * 2 + ds, 0); B_ = c.accr(4 + hl * 2 + es, 0)
                X(m, f"v_mfma_f32_16x16x32_bf16 v[{d}:{d+3}], v[{A_}:{A_+3}], v[{B_}:{B_+3}], 0", cost=-1); m += 1
        for ds in range(2):
            d = vKV + 32 + (hl * 2 + ds) * 4
            A_ = c.accr(hl * 2 + ds, 0)
            X(m, f"v_mfma_f32_16x16x32_bf16 v[{d}:{d+3}], v[{A_}:{A_+3}], v[{tmp+8}:{tmp+11}], 0", cost=-1); m += 1
    m -= 6
    for n in range(8):
        X(m, f"ds_write_b128 v{vRed}, v[{vKV+4*n}:{vKV+4*n+3}] offset:{n*1024}", lds=("rw", n), cost=2); m += 1
    m += 2
    for n in range(4):
        X(m, f"ds_write_b128 v{vRedG}, v[{vKV+32+4*n}:{vKV+32+4*n+3}] offset:{8192+n*64}", lds=("rw", 8 + n), cost=2); m += 1
    m += 4
    X(m, "s_barrier", needlds=[("rw", 11)]); m += 1
    for i in range(8):
        for w in range(2):
            X(m, f"ds_read2st64_b32 v[{vKV+4*i+2*w}:{vKV+4*i+2*w+1}], v{vB} offset0:{i*4+66*w} offset1:{i*4+66*w+33}", lds=("rr", i, w))
        m += 1
    for w in range(2):
        X(m, f"ds_read2st64_b32 v[{vKV+32+2*w}:{vKV+33+2*w}], v{vB} offset0:{32+66*w} offset1:{32+66*w+33}", lds=("rr", 8, w))
    m += 1
    for i in range(9):
        r_ = vKV + 4 * i
        X(m, [f"v_add_f32 v{r_}, v{r_}, v{r_+1}", f"v_add_f32 v{r_+2}, v{r_+2}, v{r_+3}", f"v_add_f32 v{r_}, v{r_}, v{r_+2}"], needlds=[("rr", i, 1)]); m += 1
        so = f"s{56 + i // 4} offen offset:{(i%4)*1024}" if i < 8 else "s62 offen"
        X(m, f"buffer_atomic_add_f32 v{r_}, v{vA}, s[44:47], {so}", vm=("at", i), cost=2); m += 1
    def phi4q(r_, dst, rs, rsl, tb):
        o = []
        for e in range(4): o.append(f"v_mul_f32 v{tb+e}, v{r_+e}, v{rsl}")
        for e in range(4): o.append(f"v_exp_f32_e64 v{tb+e}, v{tb+e} clamp")
        for e in range(4): o.append(f"v_fma_f32 v{r_+e}, v{r_+e}, v{rs}, 1.0")
        for e in range(4): o.append(f"v_max_f32 v{r_+e}, v{r_+e}, v{tb+e}")
        for e in range(4): o.append(f"v_add_f32 v{r_+e}, s52, v{r_+e}")
        for h in range(2): o.append(f"v_cvt_pk_bf16_f32 v{dst+h}, v{r_+2*h}, v{r_+2*h+1}")
        return o
    vQf = lambda hl, t: c.accr(8 + 2 * hl, t)
    qs = []
    for jq in range(4):
        l = []
        for t in (1, 0):
            l += phi4q(c.accr(8 + jq, t), vQf(jq // 2, t) + 2 * (jq % 2), vSt + 8 * t + 4, vSt + 8 * t, tmp + 4 * t)
        qs.append(l)
    mq = m
    for jq in range(3):
        mq = max(mq, 64 * (jq + 1) + 5)
        for x in qs[jq]:
            X(mq, x); mq += 1
    assert mq < 8 * c.M and sig > m
    X(sig, ["s_waitcnt vmcnt(0)", "s_barrier"])
    X(sig + 1, f"buffer_atomic_add v{pt+3}, v{pt+2}, s[44:47], s63 offen sc1", vm=("sig",), cost=2)
    X(pollp, f"buffer_load_dword v{t2}, v{t0}, s[44:47], s59 offen sc1", vm=("poll",), cost=2)
    pos = sig + 3
    for n in range(2 * npre):
        i2 = n // 2
        if i2 >= 7: pos = max(pos, (3 + (i2 - 7) // 2) * c.M + c.mb + 2)
        X(pos, dma_txt(n), vm=("w2", n), cost=3); pos += dsp
    c.emit(hook, gate)
    cx.T(nm + ".qkv")
    a("s_waitcnt vmcnt(0)")
    a(f"v_readfirstlane_b32 s16, v{t2}")
    a("s_cmp_ge_u32 s16, 16")
    a(f"s_cbranch_scc1 PE{nm}1")
    poll(a, nm + "1", 59, 16, t0, t2)
    vG = vKV; vZ = vKV + 8
    a(f"buffer_load_dwordx4 v[{vG}:{vG+3}], v{vX}, s[44:47], s40 offen sc1")
    a(f"buffer_load_dwordx4 v[{vG+4}:{vG+7}], v{vX}, s[44:47], s40 offen offset:1024 sc1")
    for n in range(4):
        a(f"buffer_load_dwordx4 v[{vZ+4*n}:{vZ+4*n+3}], v{t1}, s[44:47], s58 offen offset:{n*64} sc1")
    for x in qs[3]: a(x)
    a("s_waitcnt vmcnt(4)")
    for p in range(4): a(f"v_cvt_pk_bf16_f32 v{vG+p}, v{vG+2*p}, v{vG+2*p+1}")
    a(f"ds_write_b128 v{vZw}, v[{vG}:{vG+3}]")
    a("s_waitcnt vmcnt(0)")
    for hl in range(2):
        for p in range(4): a(f"v_cvt_pk_bf16_f32 v{vZ+8*hl+p}, v{vZ+8*hl+2*p}, v{vZ+8*hl+2*p+1}")
    a("s_waitcnt lgkmcnt(0)")
    a("s_barrier")
    vF = vKV + 24
    for n in range(4): a(f"ds_read_b128 v[{vF+4*n}:{vF+4*n+3}], v{pt+4} offset:{n*1024}")
    vN = 16
    for hl in range(2):
        for t in range(RT):
            d = vN + (hl * 2 + t) * 12 + 8; p = vQf(hl, t)
            a(f"v_mfma_f32_16x16x32_bf16 v[{d}:{d+3}], v[{vZ+8*hl}:{vZ+8*hl+3}], v[{p}:{p+3}], v[{tmp+12}:{tmp+15}]")
    for hl in range(2):
        for es in range(2):
            a(f"s_waitcnt lgkmcnt({3 - (hl*2+es)})")
            for t in range(RT):
                d = vN + (hl * 2 + t) * 12 + 4 * es; p = vQf(hl, t); f = vF + 4 * (hl * 2 + es)
                a(f"v_mfma_f32_16x16x32_bf16 v[{d}:{d+3}], v[{f}:{f+3}], v[{p}:{p+3}], 0")
    for n in range(4): a(f"v_rcp_f32 v{vN+12*n+8}, v{vN+12*n+8}")
    for hl in range(2):
        for t in range(RT):
            n = vN + (hl * 2 + t) * 12; d = 4 * (hl * 2 + t)
            for p in range(4): a(pk_bc(n + 2 * p, n + 2 * p, n + 8))
            for p in range(4): a(f"v_cvt_pk_bf16_f32 v{d+p}, v{n+2*p}, v{n+2*p+1}")
            a(f"buffer_store_dwordx4 v[{d}:{d+3}], v{vX}, s[44:47], s{60+t} offen offset:{hl*1024} sc1")
    vRow, vStat, vS2, vOut, ones = vN4, vN4 + 1, vN4 + 2, vN4 + 3, vN4 + 4
    vXo = vKV; tm2 = vKV + 16
    epi_setup2(a, L, vN4 + 6, vN4 + 7, vRow, vStat, vOut, ones, 0, STB, False)
    a("s_waitcnt vmcnt(0)")
    a("s_barrier")
    a(f"buffer_atomic_add v{pt+3}, v{pt+2}, s[44:47], s19 offen sc1")
    for n in range(2 * npre, 32):
        for x in dma_txt(n): a(x)
    for t in range(RT):
        for b in range(2):
            a(f"buffer_load_dwordx4 v[{vXo+8*t+4*b}:{vXo+8*t+4*b+3}], v{vX}, s[44:47], s{48+t} offen offset:{b*1024}{SC}")
    lb = lambda off: f"v{(vX, pt+6, pt+7)[off // 65536]} offset:{off % 65536}"
    for j in range(8): a(f"ds_read_b128 v[{32+4*j}:{35+4*j}], {lb(w2addr(0) + j * 1024)}")
    poll1(a, nm + "2", 22, 16, t0, t2)
    cx.T(nm + ".o")
    q = Seq(a)
    def ldx(i):
        o = []
        for t in range(RT):
            for s_ in range(2):
                pre = [("s_add_u32 s23, s23, 2048", {})] if (i and t == 0 and s_ == 0) else []
                o.append(pre + [(f"buffer_load_dwordx4 {c.xreg(i,s_,t)}, v{vX+t}, s[44:47], s23 offen offset:{s_*1024} sc1", dict(vm=("x", i, t, s_)))])
        return o
    def rdw(i):
        o = []
        for j in range(4):
            for s_ in range(2):
                r_ = 32 + (i % 2) * 32 + j * 8 + s_ * 4
                o.append([(f"ds_read_b128 v[{r_}:{r_+3}], {lb(w2addr(i) + (j * 2 + s_) * 1024)}", dict(lds=("w", i, j, s_)))])
        return o
    def run(groups):
        for gset in groups:
            for txt, k2 in gset: q(txt, **k2)
    for i in range(xl): run(ldx(i))
    a("s_waitcnt lgkmcnt(0)")
    for j in range(4):
        for s_ in range(2): q.ld[("w", 0, j, s_)] = -1
    acc2 = lambda j, t: (j * 2 + t) * 4
    for i in range(16):
        M_ = []
        for j in range(4):
            for n_, t in enumerate((0, 1) if j % 2 == 0 else (1, 0)):
                for s_ in ((0, 1) if n_ == 0 else (1, 0)):
                    w_ = 32 + (i % 2) * 32 + j * 8 + s_ * 4; r_ = acc2(j, t)
                    first = (i == 0 and s_ == (0 if n_ == 0 else 1))
                    M_.append([(f"v_mfma_f32_16x16x32_bf16 v[{r_}:{r_+3}], v[{w_}:{w_+3}], {c.xreg(i,s_,t)}, {'0' if first else f'v[{r_}:{r_+3}]'}",
                                dict(needvm=[("x", i, t, 0), ("x", i, t, 1)], needlds=[("w", i, j, 0), ("w", i, j, 1)]))])
        if i + 1 == npre: a("s_barrier")
        fill = interleave([rdw(i + 1), ldx(i + xl) if i + xl < 16 else []]) if i + 1 < 16 else []
        run(merge(M_, fill))
        if i == 13 and nxt:
            r = Rec(); cpf(r, nxt, L, vN4 + 6, vN4 + 7)
            for x in r.l:
                if x.startswith("global_load"): q(x, vm=("cpf",))
                else: a(x)
    r = Rec()
    resid_epilogue(r, acc2, RT, lambda t, b: vXo + 8 * t + 4 * b, None, tm2, vX, vRow, 44,
                   lambda t: 48 + t, 52, vStat, False, ones=ones, stf=(SC if sigout else ""))
    if pre:
        po = pre_ops("u", pre, L)
        for x in po[0]: a(x)
        a("s_barrier")
        weave(a, r.l, po[1:], every=max(1, len(r.l) // len(po)))
    else:
        a("s_nop 7")
        for x in r.l: a(x)
    if sigout:
        a("s_lshr_b32 s19, s37, 1"); a("s_lshl_b32 s19, s19, 7"); a(f"s_add_u32 s19, s19, {FL(lay, 2)}")
        signal(a, 19, L, t0, t1)
    cx.T(nm + ".end")
    return LDS

def phase_up(cx, nm, lay, gated, sigout, nxt, R=4, wpre=1, wdone=0, pre=0, pb=20, psp=6, stf=None, **kw):
    a = cx.a
    RT = 4; NT = 14
    STAGE = 28672
    AUX = 4 * STAGE
    LDS = AUX + 1024
    if stf is None: stf = SC if sigout else ""
    vX = 224; vD = 228; vWr = 230
    L = 232; t0, t1, t2 = 233, 234, 235
    vS = 236; vC = 237; vCw = 238
    vSum = 240
    vP = 128
    stl = lambda u, i: (u * 4 + i) * 16 + 4
    K = dict(TM=2); K.update(kw)
    c = Core(a, nm, RT, NT, 16, R, vWr, vX=vX, vD=vD, init_acc=True, xflag=SC, wpre=wpre, wdone=wdone, **K)
    lane_id(a, L)
    a("s_and_b32 s35, s2, 7"); a("s_lshr_b32 s36, s2, 3")
    a("s_lshr_b32 s37, s35, 2"); a("s_lshl_b32 s37, s37, 2"); a("s_lshr_b32 s38, s36, 3"); a("s_add_u32 s37, s37, s38")
    a("s_and_b32 s38, s35, 3"); a("s_lshl_b32 s38, s38, 3"); a("s_and_b32 s39, s36, 7"); a("s_add_u32 s38, s38, s39")
    a("s_and_b32 s53, s38, 1")
    a("s_lshl_b32 s42, s37, 4"); a("s_lshl_b32 s43, s34, 2"); a("s_add_u32 s42, s42, s43")
    a(f"v_lshrrev_b32 v{t0}, 5, v{L}")
    a("s_lshl_b32 s40, s34, 1"); a("s_add_u32 s40, s40, s53")
    a(f"v_add_u32 v{t0}, s40, v{t0}")
    a(f"v_subrev_u32 v{t2}, 7, v{t0}")
    a(f"v_min_u32 v{t0}, v{t0}, v{t2}")
    a(f"v_lshlrev_b32 v{t0}, 6, v{t0}")
    a(f"v_and_b32 v{t2}, 15, v{L}")
    a(f"v_lshl_add_u32 v{t0}, v{t2}, 2, v{t0}")
    a(f"v_bfe_u32 v{t1}, v{L}, 4, 1")
    a(f"v_mul_u32_u24 v{t1}, 14336, v{t1}")
    a(f"v_add_u32 v{vC}, v{t0}, v{t1}")
    a(f"s_mul_i32 s49, s38, 448"); a(f"s_add_u32 s49, s49, {CSP}")
    a(f"v_lshrrev_b32 v{t1}, 4, v{L}")
    a(f"s_lshl_b32 s48, s42, 11"); a(f"s_add_u32 s48, s48, {STB}"); a("s_add_u32 s41, s48, 4096")
    c.setup_addr(L, 34, 32768)
    a(f"s_lshl_b32 s{c.sXoff}, s42, 15")
    a(f"s_mul_i32 s{c.sWoff}, s38, {16*STAGE}"); a(f"s_add_u32 s{c.sWoff}, s{c.sWoff}, {WF3 + max(wdone-1,0)*STAGE}")
    cx.ready()
    for i in range(16):
        a(f"buffer_load_dword v{vP+i}, v{vC}, s[44:47], s49 offen")
        if i < 15: a(f"s_add_u32 s49, s49, {7168*4}")
    def ldstats():
        for u in range(2):
            for i in range(4):
                r = stl(u, i)
                a(f"buffer_load_dwordx4 v[{r}:{r+3}], v{vX}, s[44:47], s{48 if u == 0 else 41} offen offset:{i*1024}{SC}")
    def cstab(nafter):
        a("s_lshl_b32 s40, s34, 8"); a(f"s_add_u32 s40, s40, {AUX}")
        a(f"v_lshl_add_u32 v{vCw}, v{L}, 2, s40")
        a(f"v_lshlrev_b32 v{vC}, 4, v{t1}"); a(f"v_add_u32 v{vC}, {AUX}, v{vC}")
        c.setup_rd()
        a(f"s_mul_i32 s50, s42, {112*1024}"); a(f"s_add_u32 s50, s50, {HF}")
        a(f"s_mul_i32 s55, s38, 7")
        a("s_add_u32 s51, s55, s53"); a("s_lshr_b32 s51, s51, 1"); a("s_lshl_b32 s51, s51, 10"); a("s_add_u32 s51, s51, s50")
        a("s_lshr_b32 s52, s55, 1"); a("s_lshl_b32 s52, s52, 10"); a("s_add_u32 s52, s52, s50")
        a("s_cmp_eq_u32 s53, 0"); a("s_cselect_b32 s55, 3072, 8"); a("s_add_u32 s52, s52, s55")
        for t in range(1, RT):
            a(f"s_add_u32 s{54+2*t}, s51, {t*112*1024}"); a(f"s_add_u32 s{55+2*t}, s52, {t*112*1024}")
        a(f"s_waitcnt vmcnt({min(nafter, 63)})")
        for st_ in (8, 4, 2, 1):
            for i in range(st_): a(f"v_add_f32 v{vP+i}, v{vP+i}, v{vP+i+st_}")
        a(f"ds_write_b32 v{vCw}, v{vP}")
        a("s_waitcnt lgkmcnt(0)")
        a("s_barrier")
        for j in range(NT):
            r = c.accr(j, 0)
            a(f"ds_read_b128 v[{r}:{r+3}], v{vC} offset:{j*64}")
    if not gated: ldstats()
    def gate():
        if gated:
            cstab((wpre - wdone) * c.ND)
            a("s_lshl_b32 s19, s37, 7"); a(f"s_add_u32 s19, s19, {FL(lay, 2)}")
            poll1(a, nm + "g", 19, 32, t0, t2)
            cx.T(nm + ".gate")
            ldstats()
    def hook(nvm):
        nx = nvm - (wpre - wdone) * c.ND
        if not gated: cstab(nvm + 8)
        a(f"s_waitcnt vmcnt({nx if gated else nvm})")
        ls = []
        for t in range(RT):
            u, k = t // 2, 2 * (t % 2)
            r = Rec(); b = vSum + 4 * t
            r(f"v_add_f32 v{b}, v{stl(u,0)+k}, v{stl(u,1)+k}"); r(f"v_add_f32 v{b+1}, v{stl(u,2)+k}, v{stl(u,3)+k}"); r(f"v_add_f32 v{b}, v{b}, v{b+1}")
            xlane_sum4(r, b, b + 1)
            r(f"v_mul_f32 v{b}, 0xba800000, v{b}")
            bf16_round(r, b)
            ls.append(r.l)
        for x in interleave(ls):
            if not x.startswith("s_nop"): a(x)
        a("s_waitcnt lgkmcnt(0)")
        for j in range(NT):
            for t in (3, 2, 1, 0):
                for h in range(2):
                    a(pk_bc(c.accr(j, t) + 2 * h, c.accr(j, 0) + 2 * h, vSum + 4 * t))
        if cx.st: cx.T(nm + ".pro"); a("s_waitcnt lgkmcnt(0)")
    sP = lambda t: 51 if t == 0 else 54 + 2 * t
    sS = lambda t: 52 if t == 0 else 55 + 2 * t
    def piece(p, t):
        r = Rec()
        js = (2 * p, 2 * p + 1) if p < 3 else (6,)
        dst = c.accr(2 * js[0], t)
        for jj in js:
            rg = c.accr(2 * jj, t); ru = c.accr(2 * jj + 1, t)
            for e in range(4): r(f"v_mul_f32 v{ru+e}, v{rg+e}, v{ru+e}")
        for n, jj in enumerate(js):
            ru = c.accr(2 * jj + 1, t)
            for h in range(2): r(f"v_cvt_pk_bf16_f32 v{dst+2*n+h}, v{ru+2*h}, v{ru+2*h+1}")
        if p < 3: s_ = f"buffer_store_dwordx4 v[{dst}:{dst+3}], v{vX}, s[44:47], s{sP(t)} offen offset:{p*1024}{stf}"
        else: s_ = f"buffer_store_dwordx2 v[{dst}:{dst+1}], v{vX}, s[44:47], s{sS(t)} offen{stf}"
        return r.l, s_
    if nxt:
        r = Rec(); cpf(r, nxt, L, t0, t1)
        m = spread(c, -3, 60, r.l[:6], per=1)
        c.extra(-3, m, r.l[6:], vm=("cpf",))
    if pre:
        assert pre <= 7 and c.TM == 2
        po = pre_ops("d", pre, L)
        spread(c, -2, 2, po[0], per=1)
        c.extra_at(pb, "s_barrier")
        for n, g_ in enumerate(po[1:]): c.extra_at(pb + 2 + psp * n, g_, cost=3, vm=("pre", n))
    after = []
    tot = c.TM * c.M
    for p in range(3):
        order = c.fin_order(4 * p + 3)
        m = c.fin_slot(4 * p + 3, order[-1]) + 3
        room = min(tot - m, 32 * c.TM)
        for t in order:
            ins, s_ = piece(p, t)
            pp = 1 if room >= 56 else 2
            grp = [ins[i:i+pp] for i in range(0, len(ins), pp)]
            if m + len(grp) + 1 <= tot:
                for g_ in grp:
                    c.extra_at(m, g_); m += 1
                c.extra_at(m, s_, cost=2, vm=("st", p, t)); m += 1
            else:
                after += ins + [s_]
    c.emit(hook, gate)
    for x in after: a(x)
    if len(after) < 8: a("s_nop 7")
    for t in c.fin_order(13):
        ins, s_ = piece(3, t)
        for x in ins: a(x)
        a(s_)
    cx.T(nm + ".main")
    if sigout:
        a("s_lshl_b32 s19, s37, 7"); a(f"s_add_u32 s19, s19, {FL(lay, 3)}")
        signal(a, 19, L, t0, t1)
    cx.T(nm + ".end")
    return LDS

def phase_down(cx, nm, lay, gated, sigout, nxt, final, R=2, UN=8, wpre=1, wdone=0, pre=0, **kw):
    a = cx.a
    RT = 2; NT = 4; KS = 56
    vX = 32; vD = 34; ones = 35; vWr = 36; L = 40; t0, t1, t2 = 41, 42, 43
    vRow, vStat, vS, vOut = 44, 45, 46, 47
    vSt = 48; vXo = 64; tmp = 80
    K = dict(gh=1, cap=3, rdmargin=2, npro=4, xlead=3, XUN=4); K.update(kw)
    c = Core(a, nm, RT, NT, KS, R, vWr, vX=vX, vD=vD, UN=UN, xflag=SC, wpre=wpre, wdone=wdone, **K)
    lane_id(a, L)
    tile_map_16x16(a, 3)
    rbB = KS * 2048
    c.setup_addr(L, 34, rbB)
    a("s_lshl_b32 s42, s37, 3"); a("s_lshl_b32 s43, s34, 1"); a("s_add_u32 s42, s42, s43")
    a(f"s_mul_i32 s{c.sXoff}, s42, {rbB}"); a(f"s_add_u32 s{c.sXoff}, s{c.sXoff}, {HF}")
    a(f"s_mul_i32 s{c.sWoff}, s38, {KS*8192}"); a(f"s_add_u32 s{c.sWoff}, s{c.sWoff}, {WF4 + max(wdone-1,0)*8192}")
    cx.ready()
    def hook0():
        c.setup_rd()
        if final: srd(a, 56, "s30", "s31", 2048 * 2048)
        epi_setup2(a, L, t0, t1, vRow, vStat, vOut, ones, STB, STA, final)
    def gate():
        if gated:
            hook0()
            a("s_lshr_b32 s19, s37, 1"); a("s_lshl_b32 s19, s19, 7"); a(f"s_add_u32 s19, s19, {FL(lay, 3)}")
            poll1(a, nm + "g", 19, 32, t0, t1)
            if cx.st: cx.T(nm + ".gate"); a("s_waitcnt lgkmcnt(0)")
    def hook(nvm):
        if not gated: hook0()
    n = 0
    for i in range(4):
        c.extra(-3 + n // 2, 3 + 8 * (n % 2), f"buffer_load_dwordx4 v[{vSt+4*i}:{vSt+4*i+3}], v{vX}, s[44:47], s53 offen offset:{i*1024}{SC}", cost=2, vm=("stt", i)); n += 1
    n = 0
    for t in range(RT):
        for b in range(2):
            c.extra(-3 + n // 2, 6 + 8 * (n % 2), f"buffer_load_dwordx4 v[{vXo+8*t+4*b}:{vXo+8*t+4*b+3}], v{vX}, s[44:47], s{48+t} offen offset:{b*1024}{SC}", cost=2, vm=("xo", t, b)); n += 1
    if nxt:
        r = Rec(); cpf(r, nxt, L, t0, t1)
        c.extra(-5, 2, r.l, vm=("cpf",))
    c.emit(hook, gate)
    cx.T(nm + ".main")
    a("s_waitcnt vmcnt(0)")
    r = Rec()
    ls = row_stats2(r, vSt, want_mean=False)
    for t in range(RT): ls[t].append(f"v_mul_f32 v{vSt+8*t+4}, v{vSt+8*t+4}, v{vSt+8*t+4}")
    for x in interleave(ls): r(x)
    resid_epilogue(r, c.accr, RT, lambda t, b: vXo + 8 * t + 4 * b, lambda t: vSt + 8 * t + 4, tmp, vX, vRow, 44,
                   lambda t: 48 + t, 52, vStat, final, srd_out=56, s_out=lambda t: 50 + t, vOut=vOut, ones=ones, stf=(SC if sigout else ""))
    if pre:
        po = pre_ops("a", pre, L)
        for x in po[0]: a(x)
        a("s_barrier")
        weave(a, r.l, po[1:], every=max(1, len(r.l) // len(po)))
    else:
        for x in r.l: a(x)
    if sigout:
        a("s_lshl_b32 s19, s37, 7"); a(f"s_add_u32 s19, s19, {FL(lay, 4)}")
        signal(a, 19, L, t0, t1)
    cx.T(nm + ".end")
    return UN * c.stage_bytes

HDR = open("interleave_layers__linear_attn_block__glu_gated_bilinear__prompt.s.ref").read().split("; Override launch")[0]
PH = ["a0", "u0", "d0", "a1", "u1", "d1"]
def build(fn, cuts=(), st=False, A_={}, U_={}, D_={}, Ag={}, Ug={}, Dg={}, k0kw={}, PRE=dict(a=0, u=0, d=0)):
    cuts = set(cuts) | {"a0"}
    groups = []
    for p in PH:
        if p in cuts: groups.append([])
        groups[-1].append(p)
    ks = []; ls = []
    k, lds, n = gen_k0("k0_kernel", nxt=("PH_a0",), ngate=112, v2=True, stflag="sc1", down=True, st2=True, **k0kw)
    ks.append(k); ls.append(("k0_kernel", (n,1,1), (256,1,1), lds))
    names = {}
    for gi, g in enumerate(groups):
        kn = f"m{gi}_kernel"
        a = A(); cx = Ctx(a, st)
        a("s_cmp_ge_u32 s2, 256")
        a(f"s_cbranch_scc0 S_{kn}")
        a("s_endpgm")
        a.label(f"S_{kn}")
        cx.T("start")
        a("s_load_dwordx2 s[32:33], s[0:1], 72")
        if "d1" in g: a("s_load_dwordx2 s[30:31], s[0:1], 56")
        a("v_lshrrev_b32 v1, 6, v0")
        a("s_nop 0")
        a("v_readfirstlane_b32 s34, v1")
        state = dict(done=False)
        def ready():
            if not state["done"]:
                a("s_waitcnt lgkmcnt(0)")
                srd(a, 44, "s32", "s33", WS_USED)
                state["done"] = True
        cx.ready = ready
        LDS = 0
        for p in g:
            i = PH.index(p); lay = int(p[1])
            gated = p not in cuts
            nx = PH[i + 1] if i + 1 < len(PH) else None
            sigout = nx is not None and nx not in cuts
            nxl = f"PH_{nx}" if nx else None
            ex = {}
            if gated: ex["wdone"] = PRE[p[0]]
            if sigout: ex["pre"] = PRE[nx[0]]
            a.label(f"PH_{p}")
            if p[0] == "a": l = phase_attn(cx, p, lay, gated, sigout, nxl, **{**A_, **(Ag if gated else {}), **ex})
            elif p[0] == "u": l = phase_up(cx, p, lay, gated, sigout, nxl, **{**U_, **(Ug if gated else {}), **ex})
            else: l = phase_down(cx, p, lay, gated, sigout, nxl, lay == 1, **{**D_, **(Dg if gated else {}), **ex})
            a.label(f"END_PH_{p}")
            LDS = max(LDS, l)
        if st:
            a("s_waitcnt vmcnt(0)"); cx.T("fin")
            a("s_waitcnt lgkmcnt(0)")
            a("s_lshl_b32 s60, s2, 2"); a("s_add_u32 s60, s60, s34"); a("s_lshl_b32 s60, s60, 7"); a(f"s_add_u32 s60, s60, {STAMP_OFF + gi*0x80000}")
            a("v_mov_b32 v1, 0")
            for i in range(cx.n):
                a(f"v_mov_b32 v0, s{64+2*i}")
                a(f"buffer_store_dword v0, v1, s[44:47], s60 offen offset:{4*i}")
                a("s_nop 1")
            names[kn] = cx.names
        a("s_endpgm")
        ks.append(kernel_wrap(kn, a.text(), vgpr=256, agpr=256, sgpr=102))
        ls.append((kn, (256,1,1), (256,1,1), LDS))
    open(fn, "w").write(HDR + file_wrap(ls, ks))
    if st:
        import json; json.dump(names, open(fn + ".json", "w"))

if __name__ == "__main__":
    G0 = dict(Ag=dict(wpre=5), Ug=dict(wpre=3), Dg=dict(wpre=7))
    build("ma.s", **G0)
    build("mb.s", Ag=dict(wpre=6), Ug=dict(wpre=3), Dg=dict(wpre=12, UN=16, H=28, T=28))
    build("mc.s", Ag=dict(wpre=6), Ug=dict(wpre=3), Dg=dict(wpre=16, UN=16, H=28, T=28))
    build("md.s", Ag=dict(wpre=6), Ug=dict(wpre=2), Dg=dict(wpre=19, UN=19, H=28, T=28))
```

```python
from g import *

class Core:
    def __init__(self, a, name, RT, NT, KSTEPS, R, vWr,
                 nontrans=(), UN=4, acc0=0, xa0=0, vX=None, vD=None,
                 bar_early=0, dma_span=0.9, xlead=None, gh=4, cap=2, npro=0, H=None, T=None, xstep=2048,
                 lgsafe=8, fine=2, accf=None, xf='a', wf='a', wa0=None, barstamp=None, rdmargin=9, skip='', init_acc=False, nwaves=4, ktab=None, m0_from=None, TM=1, tail_span=0.4, umap=None, XUN=None, XK=None, bs0=0, rddelay=5, xflag='', wpre=None, wdone=0, m0_all=False, wflag=''):
        self.m0_all = m0_all; self.wflag = wflag
        self.wdone = wdone
        self.xflag = xflag; self.wpre = wpre
        self.rddelay = rddelay
        self.bs0 = bs0
        self.umap = umap; self.XUN = XUN; self.XK = XK
        self.TM = TM; self.tail_span = tail_span
        self.m0_from = m0_from; self._nk = 10**9
        self.ktab = ktab
        self.sXo = 4; self.sWo = 6; self.sXi = 8; self.sWi = 9
        self.init_acc = init_acc
        self.skip = skip
        self.rdmargin = rdmargin
        self.a = a; self.name = name
        self.RT = RT; self.NT = NT; self.KSTEPS = KSTEPS; self.ND = ND = NT * 2 // nwaves
        self.stage_bytes = stage_bytes = NT * 2048; self.wstep = stage_bytes; self.xstep = xstep
        self.R = R; self.vWr = vWr; self.SPG = 65536 // stage_bytes; self.NG = (UN + self.SPG - 1) // self.SPG; self.NDG = (ND + 3) // 4
        self.nontrans = set(nontrans)
        self.UN = UN
        self.acc0 = acc0; self.xa0 = xa0
        self.xslot = 2 * RT * 4
        if self.XUN is None: self.XUN = UN
        self.wa0 = xa0 + self.XUN * self.xslot if wa0 is None else wa0
        self.vX = vX; self.vD = vD
        self.bar_early = bar_early; self.dma_span = dma_span
        self.xlead = xlead if xlead is not None else UN - 1
        self.wlead = UN - 1
        self.gh = gh; self.cap = cap
        self.H = H if H is not None else UN
        self.T = T if T is not None else UN
        assert (KSTEPS - self.H - self.T) % UN == 0 and KSTEPS >= self.H + self.T
        assert self.T >= UN - 1 or self.T == 0
        assert (UN * NT) % R == 0 or KSTEPS == self.H + self.T
        self.agpr_end = self.wa0 + 8 * R
        self.M = NT * RT * 2
        self.npro = npro
        self.lgsafe = lgsafe; self.fine = fine
        self.accf = accf; self.xf = xf; self.wf = wf; self.barstamp = barstamp
        self.sW = 44; self.sWoff = 24; self.sXoff = 25; self.sM0 = 26; self.sCnt = 27
        self.mb = max((NT - R) * RT * 2 + RT * 2 - 1 - bar_early, 0)
        self.extras = []

    def extra(self, k, m, txt, cost=None, vm=None, needvm=(), lds=None, needlds=()):
        if isinstance(txt, str): txt = [txt]
        self.extras.append(dict(k=k, m=m, txt=txt, cost=len(txt) if cost is None else cost, vm=vm, needvm=tuple(needvm), lds=lds, needlds=tuple(needlds)))

    def accr(self, j, t): return self.acc0 + (j * self.RT + t) * 4
    def acc(self, j, t):
        if self.accf:
            f, r = self.accf(j, t); return f"{f}[{r}:{r+3}]"
        r = self.accr(j, t); return f"v[{r}:{r+3}]"
    def xreg(self, i, s, t):
        r = self.xa0 + (i % self.XUN) * self.xslot + (t * 2 + s) * 4
        return f"{self.xf}[{r}:{r+3}]"
    def wreg(self, f, s, q=None):
        r = self.wa0 + (f % self.R) * 8 + 4 * s
        if q is None: return f"{self.wf}[{r}:{r+3}]"
        return f"{self.wf}[{r+2*q}:{r+2*q+1}]"

    def txt_vm(self, tag):
        kt = self.ktab
        if tag[0] == "x":
            _, i, t, s = tag
            txt = []
            so = self.sXo + i % 2 if kt else self.sXoff
            if t == 0 and s == 0 and i > 0 and not kt:
                txt.append(f"s_add_u32 s{self.sXoff}, s{self.sXoff}, {self.xstep}")
            txt.append(f"buffer_load_dwordx4 {self.xreg(i,s,t)}, v{self.vX + t}, s[{self.sW}:{self.sW+3}], s{so} offen offset:{s*1024}{self.xflag}")
            if t == 0 and s == 0 and kt:
                txt.append(f"s_add_u32 s{self.sXi}, s{self.sXi}, 1")
                txt.append(f"v_readlane_b32 s{self.sXo + (i+1) % 2}, v{kt[0]}, s{self.sXi}")
            return txt
        _, i, d = tag
        txt = []
        so = self.sWo + i % 2 if kt else self.sWoff
        if d % 4 == 0 or self.m0_all or (self.m0_from is not None and i >= self._nk - self.m0_from):
            txt.append(f"s_add_u32 m0, s{self.sM0}, {(i % self.UN) * self.stage_bytes + 4096 * (d // 4)}")
            if d == 0 and kt:
                txt.append(f"s_add_u32 s{self.sWi}, s{self.sWi}, 1")
            elif d == 0 and i > 0:
                txt.append(f"s_add_u32 s{self.sWoff}, s{self.sWoff}, {self.wstep}")
            else:
                txt.append("s_nop 0")
        txt.append(f"buffer_load_dwordx4 v{self.vD + d // 4}, s[{self.sW}:{self.sW+3}], s{so} offen offset:{(d%4)*1024}{self.wflag} lds")
        if d == 0 and kt:
            txt.append(f"v_readlane_b32 s{self.sWo + (i+1) % 2}, v{kt[1]}, s{self.sWi}")
            if self.ND < 4: txt.append("s_nop 1")
        return txt
    def txt_rd(self, tag):
        _, f, s = tag
        i, j = self.unit(f)
        stg = i % self.UN
        return [f"ds_read_b128 {self.wreg(f,s)}, v{self.vWr + stg // self.SPG} offset:{(stg % self.SPG) * self.stage_bytes + (j*2+s)*1024}"]

    def unit(self, f, nk=None):
        nk = self._nk if nk is None else nk
        e = f - (nk - self.TM) * self.NT
        if e < 0: return f // self.NT, f % self.NT
        return nk - self.TM + e % self.TM, e // self.TM
    def fin_slot(self, j, t):
        e = j * self.TM + self.TM - 1
        ts = list(range(self.RT))
        if e % 2: ts = ts[::-1]
        pos = e * 2 * self.RT + ts.index(t) * 2 + 1
        return pos
    def fin_order(self, j):
        e = j * self.TM + self.TM - 1
        ts = list(range(self.RT))
        return ts[::-1] if e % 2 else ts
    def extra_at(self, pos, txt, **kw):
        self.extra(-self.TM + pos // self.M, pos % self.M, txt, **kw)
    def mfma_seq(self):
        seq = []
        for j in range(self.NT):
            ts = list(range(self.RT))
            if j % 2: ts = ts[::-1]
            for n, t in enumerate(ts):
                ss = (0, 1) if n % 2 == 0 else (1, 0)
                for s in ss: seq.append((j, t, s))
        return seq
    def slot_of(self, j, t):
        return max(n for n, (jj, tt, s) in enumerate(self.mfma_seq()) if jj == j and tt == t)

    def steady_vm_slots(self):
        M, mb, ND, RT = self.M, self.mb, self.ND, self.RT
        res = []
        span = int(M * self.dma_span)
        for d in range(ND):
            res.append((mb + 1 + (d * span) // ND, ("w", self.wlead, d)))
        nx = 2 * RT
        for n in range(nx):
            res.append((((2 * n + 1) * M) // (2 * nx), ("x", self.xlead, n // 2, n % 2)))
        return res

    def build(self, nk):
        M, NT, RT, R = self.M, self.NT, self.RT, self.R
        tot = nk * M
        self._nk = nk
        W = []; X = []
        for i in range(-max(self.UN, self.xlead) - 1, nk):
            for p, tg in self.steady_vm_slots():
                tag = (tg[0], i + tg[1]) + tuple(tg[2:])
                if tag[1] < 0 or tag[1] >= nk: continue
                if tag[0] == "x" and self.XK is not None and tag[1] >= self.XK: continue
                if tag[0] == "w" and tag[1] > nk - self.TM:
                    p = self.mb + 1 + (tag[2] * int(M * self.tail_span)) // self.ND
                (W if tag[0] == "w" else X).append((i * M + p, tag))
        W.sort(key=lambda z: z[1][1:]); X.sort(key=lambda z: z[1][1:])
        wp = self.wpre or 1
        assert wp <= self.UN
        pro = [t for S, t in W if self.wdone <= t[1] < wp] + ([("gate",)] if self.wpre else []) + [t for S, t in X if t[1] == 0]
        W = [z for z in W if z[1][1] >= wp]; X = [z for z in X if z[1][1] > 0]
        def dl(tag):
            i = min(tag[1], nk - self.TM)
            return (i - 1) * M + self.mb if tag[0] == "w" else i * M
        for _ in range(self.npro):
            q = W if (dl(W[0][1]) <= dl(X[0][1]) and W[0][0] < 0) else X
            assert q[0][0] < 0
            pro.append(q.pop(0)[1])
        load = [0] * tot
        post = [[] for _ in range(tot)]
        for e in self.extras:
            k = e["k"] if e["k"] >= 0 else nk + e["k"]
            assert (0 <= e["k"] < self.H) or (-self.T <= e["k"] < 0), e
            post[k * M + e["m"]].append(("ex", e)); load[k * M + e["m"]] += e["cost"]
        var = lambda m: m < self.H * M or m >= (nk - self.T) * M
        last = -10**9; skipped = 0
        for m in range(tot):
            if m - last < (self.gh if m < self.H * M else 1): continue
            cand = [q for q in (W, X) if q and q[0][0] <= m]
            if not cand: continue
            if (load[m] > 0 or (m + 1) % (2 * RT) == 0) and (m % M) != M - 1 and M > 16 and skipped < 2:
                skipped += 1
                continue
            skipped = 0
            q = min(cand, key=lambda q: dl(q[0][1]))
            S, tag = q.pop(0)
            assert m < dl(tag), ("vm op misses deadline", tag, m)
            post[m].append(("vm", tag)); load[m] += 2 + (len(self.txt_vm(tag)) - 1)
            last = m
            if not var(m): assert m - S <= 3, ("backlog not cleared in head", tag, S, m)
        assert not W and not X
        pro_rd = [("lds", ("r", f, s)) for f in range(R) for s in range(2)]
        m_next = 0
        for f in range(nk * NT - R):
            e = f * 2 * RT + 2 * RT - 1
            m = max(e, m_next)
            kend = (e // M + 1) * M - 1
            lim = max(e, min(kend, e + (R - 1) * 2 * RT - self.rdmargin, e + self.rddelay))
            m = min(m, lim)
            for s in range(2):
                while load[m] >= self.cap - 1 and m < lim: m += 1
                post[m].append(("lds", ("r", f + R, s))); load[m] += 1
                if m < lim: m += 1
            m_next = m
        seq = self.mfma_seq()
        steps = []
        for i in range(nk):
            it = []
            seen = set()
            for n, (j, t, s) in enumerate(seq):
                if n == self.mb and i + 1 <= nk - self.TM: it.append(("bar", i))
                first = (i == 0 and (j, t) not in seen); seen.add((j, t))
                f = i * NT + j
                ii, jj = self.unit(f)
                if self.umap: ii, jj = self.umap(ii, jj)
                it.append(("mfma", ii, jj, t, s, first, f))
                it.extend(post[i * M + n])
            steps.append(it)
        pitems = [(("gate",) if t[0] == "gate" else ("vm", t)) for t in pro] + [("hook",), ("bar", -1)] + pro_rd
        return pitems, steps

    def emit(self, hook=None, gate=None):
        a = self.a
        UN, H, T = self.UN, self.H, self.T
        niter = (self.KSTEPS - H - T) // UN
        simit = min(niter, 3)
        nk = H + UN * simit + T
        pitems, steps = self.build(nk)
        def norm(item, base):
            if item[0] == "vm": t = item[1]; return ("vm", t[0], t[1] - base) + tuple(t[2:])
            if item[0] == "lds": t = item[1]; return ("lds", t[1] - base * self.NT) + tuple(t[2:])
            if item[0] == "bar": return ("bar",)
            return ("mfma",) + tuple(item[2:5])
        for i in range(H + UN, H + UN * simit):
            assert [norm(x, i) for x in steps[i]] == [norm(x, i - UN) for x in steps[i - UN]], ("not periodic", i)
        prog = [(("P", n), it) for n, it in enumerate(pitems)]
        for i in range(nk):
            for n, it in enumerate(steps[i]):
                if i < H: key = ("H", i, n)
                elif i < H + UN * simit: key = ("L", (i - H) % UN, n)
                else: key = ("T", i - (H + UN * simit), n)
                prog.append((key, it))
        vmq = {}; ldq = {}; nv = 0; nl = 0
        for i in range(self.wdone):
            for d in range(self.ND): vmq[("w", i, d)] = -1000
        need = {}
        mn = lambda x, y: y if x is None else (x if y is None else min(x, y))
        for key, item in prog:
            vmN = lgN = None
            if item[0] == "vm": vmq[item[1]] = nv; nv += 1
            elif item[0] == "lds": ldq[item[1]] = nl; nl += 1
            elif item[0] == "ex":
                e = item[1]
                if e["needvm"]: vmN = nv - 1 - max(vmq[t] for t in e["needvm"])
                if e["needlds"]: lgN = nl - 1 - max(ldq[t] for t in e["needlds"])
                if e["vm"] is not None: vmq[e["vm"]] = nv; nv += 1
                if e["lds"] is not None: ldq[e["lds"]] = nl; nl += 1
            elif item[0] == "bar":
                i = item[1]
                ks = [i + 1] if i + 1 < nk - self.TM else range(i + 1, nk)
                vmN = nv - 1 - max(vmq[("w", k_, d)] for d in range(self.ND) for k_ in ks)
            elif item[0] == "mfma":
                _, i, j, t, s, first, f = item
                if i < self.fine: vmN = nv - 1 - max(vmq[("x", i, t, 0)], vmq[("x", i, t, 1)])
                else: vmN = nv - 1 - max(vmq[("x", i, tt, ss)] for tt in range(self.RT) for ss in range(2))
                lgN = nl - 1 - max(ldq[("r", f, ss)] for ss in range(2))
            if vmN is not None or lgN is not None:
                o = need.get(key, (None, None))
                need[key] = (mn(o[0], vmN), mn(o[1], lgN))
        self.vmq = vmq; self.nv = nv
        st = dict(vm=10**9, lg=10**9)
        npro_vm = sum(1 for it in pitems if it[0] == "vm")
        def emit_items(items):
            for key, item in items:
                if key in need:
                    vmN, lgN = need[key]
                    w = []
                    if vmN is not None and vmN < st["vm"]:
                        vmN = min(vmN, 63)
                        w.append(f"vmcnt({vmN})"); st["vm"] = vmN
                    if lgN is not None and lgN < st["lg"]:
                        lgN = min(lgN, 15 if (key[0] == "H" and key[1] == 0) else self.lgsafe)
                        w.append(f"lgkmcnt({lgN})"); st["lg"] = lgN
                    if w: a("s_waitcnt " + " ".join(w))
                if item[0] == "vm":
                    if not (item[1][0] in self.skip and item[1][1] >= UN):
                        for tx in self.txt_vm(item[1]): a(tx)
                    st["vm"] += 1
                elif item[0] == "lds":
                    if not ('r' in self.skip and key[0] != 'P'):
                        for tx in self.txt_rd(item[1]): a(tx)
                    st["lg"] += 1
                elif item[0] == "ex":
                    for tx in item[1]["txt"]: a(tx)
                    if item[1]["vm"] is not None: st["vm"] += 1
                    if item[1]["lds"] is not None: st["lg"] += 1
                elif item[0] == "bar":
                    a("s_barrier")
                    if self.barstamp is not None:
                        n = {"P": 0, "H": 1, "L": None, "T": 1 + H}[key[0]]
                        if n is not None:
                            if key[0] != "P": n += key[1]
                            n -= self.bs0
                            if 0 <= n < 9: a(f"s_memtime s[{self.barstamp+2*n}:{self.barstamp+2*n+1}]")
                elif item[0] == "gate":
                    gate()
                elif item[0] == "hook":
                    if hook: hook(npro_vm)
                    st["vm"] = st["lg"] = 10**9
                elif item[0] == "mfma":
                    _, i, j, t, s, first, f = item
                    w = self.wreg(f, s); x = self.xreg(i, s, t)
                    A_, B_ = (x, w) if j in self.nontrans else (w, x)
                    c = "0" if (first and not self.init_acc) else self.acc(j, t)
                    a(f"v_mfma_f32_16x16x32_bf16 {self.acc(j,t)}, {A_}, {B_}, {c}")
        emit_items([p for p in prog if p[0][0] in ("P", "H")])
        if niter > 0:
            if niter > 1:
                a(f"s_mov_b32 s{self.sCnt}, {niter}")
                a.label(f"L_{self.name}")
                st["vm"] = st["lg"] = 10**9
            body = []
            for i in range(H, H + UN):
                for n, it in enumerate(steps[i]): body.append((("L", i - H, n), it))
            emit_items(body)
            if niter > 1:
                a(f"s_sub_u32 s{self.sCnt}, s{self.sCnt}, 1")
                a(f"s_cmp_lg_u32 s{self.sCnt}, 0")
                a(f"s_cbranch_scc1 L_{self.name}")
        emit_items([p for p in prog if p[0][0] == "T"])
    def wait_vm(self, tags):
        return self.nv - 1 - max(self.vmq[t] for t in tags)

    def setup_addr(self, L, s_wave, rbB):
        a = self.a
        a(f"v_lshlrev_b32 v{self.vX}, 4, v{L}")
        for t in range(1, self.RT): a(f"v_add_u32 v{self.vX+t}, {t*rbB}, v{self.vX}")
        a(f"s_mul_i32 s{self.sM0}, s{s_wave}, {self.ND*1024}")
        a(f"v_add_u32 v{self.vD}, s{self.sM0}, v{self.vX}")
        for g in range(1, self.NDG): a(f"v_add_u32 v{self.vD+g}, {4096*g}, v{self.vD}")
    def setup_rd(self):
        a = self.a
        for g in range(self.NG):
            if g == 0: a(f"v_mov_b32 v{self.vWr}, v{self.vX}")
            else: a(f"v_add_u32 v{self.vWr+g}, {g*self.SPG*self.stage_bytes}, v{self.vX}")

    def setup_ktab(self, L, G, s_rho, s_j0, t0, t1):
        a = self.a; vKX, vKW = self.ktab
        a(f"v_add_u32 v{t0}, s{s_j0}, v{L}")
        a(f"v_subrev_u32 v{t1}, {self.KSTEPS}, v{t0}")
        a(f"v_min_u32 v{t0}, v{t0}, v{t1}")
        a(f"v_add_u32 v{t1}, s{s_rho}, v{t0}")
        a(f"v_and_b32 v{t1}, {G-1}, v{t1}")
        a(f"v_and_b32 v{t0}, {0x100 - G}, v{t0}")
        a(f"v_or_b32 v{t0}, v{t0}, v{t1}")
        a(f"v_mul_u32_u24 v{vKX}, {self.xstep}, v{t0}")
        a(f"v_mul_u32_u24 v{vKW}, {self.wstep}, v{t0}")
        a(f"v_add_u32 v{vKX}, s{self.sXoff}, v{vKX}")
        a(f"v_add_u32 v{vKW}, s{self.sWoff}, v{vKW}")
        a(f"s_mov_b32 s{self.sXi}, 0"); a(f"s_mov_b32 s{self.sWi}, 0")
        a(f"v_readlane_b32 s{self.sXo}, v{vKX}, 0")
        a(f"v_readlane_b32 s{self.sWo}, v{vKW}, 0")
```

```python
from common import *
from core import Core
from k1 import pk_bc
from k4 import epi_setup, tile_map_16x16
from k0 import gen_k0, plane_dma_lane, plane_read_bases

class Ctx:
    def __init__(self, a, st):
        self.a = a; self.st = st; self.n = 0; self.names = []
    def T(self, nm):
        if self.st and self.n < 10:
            self.a(f"s_memrealtime s[{64+2*self.n}:{65+2*self.n}]"); self.n += 1; self.names.append(nm)

def cpf(r, lab, vL, v0_, v1_, s0=10):
    code_prefetch(r, (lab,), vL, v0_, v1_, s0)

SC = " sc1"

def pre_ops(kind, n, vL):
    if kind == "a": ND, stage, vD, base, KS = 4, 16384, 130, WF1, 24
    elif kind == "u": ND, stage, vD, base, KS = 7, 28672, 228, WF3, 16
    else: ND, stage, vD, base, KS = 2, 8192, 250, WF4, 56
    g = ["s_and_b32 s12, s2, 7", "s_lshr_b32 s13, s2, 3"]
    if kind == "a": g += ["s_and_b32 s12, s12, 3", "s_lshl_b32 s12, s12, 2", "s_and_b32 s13, s13, 3"]
    elif kind == "u": g += ["s_and_b32 s12, s12, 3", "s_lshl_b32 s12, s12, 3", "s_and_b32 s13, s13, 7"]
    else: g += ["s_and_b32 s12, s12, 1", "s_lshl_b32 s12, s12, 3", "s_and_b32 s13, s13, 7"]
    g += ["s_add_u32 s12, s12, s13", f"s_mul_i32 s14, s12, {KS*stage}", f"s_add_u32 s14, s14, {base}",
          f"s_mul_i32 s15, s34, {ND*1024}", "s_add_u32 s14, s14, s15", f"v_lshlrev_b32 v{vD}, 4, v{vL}"]
    out = [g]
    for i in range(n):
        for d in range(ND):
            off = i * stage + d * 1024
            out.append([f"s_add_u32 m0, s15, {off}", f"s_add_u32 s13, s14, {off}", f"buffer_load_dwordx4 v{vD}, s[44:47], s13 offen lds"])
    return out

def weave(a, lines, groups, start=0, every=8):
    gi = 0
    for n, x in enumerate(lines):
        if n >= start and (n - start) % every == 0 and gi < len(groups):
            for y in groups[gi]: a(y)
            gi += 1
        a(x)
    for g in groups[gi:]:
        for y in g: a(y)

def phase_attn(cx, nm, lay, gated, sigout, nxt, R=4, per=6, e0=3, sig=185, pollp=225, npre=10, dsp=3, xl=3, wpre=1, wdone=0, pre=0, touch=False, csf='', **kw):
    a = cx.a
    RT = 2; NT = 8; UN = 6
    STAGE = 16384
    AUX = UN * STAGE; RED = AUX + 2048; REDW = 8448
    LDS = 159744; KVL = 155648
    KVo = KV + lay * KVSZ
    wa0 = 96
    vX = 128; vD = 130; vWr = 131
    L = 133; t0, t1, t2 = 134, 135, 136
    vA = 137; vB = 138; vZw = 139; vOne = 140
    vSt = 142; vN4 = 158; vCs = 174; pt = 182; vKV = 190; tmp = 238
    vRed = 254; vRedG = 255
    def umap(stg, u):
        if stg < 16: return stg, u
        return 8 * ((stg - 16) % 2) + u, 8 + (stg - 16) // 2
    K = dict(gh=3, npro=4, rdmargin=6, xlead=3, rddelay=1); K.update(kw)
    c = Core(a, nm, RT, NT, 24, R, vWr, nontrans=range(0, 8), vX=vX, vD=vD, init_acc=True, xf='a', wf='v', xa0=0, wa0=wa0,
             UN=UN, XUN=16, XK=16, m0_from=8, umap=umap, H=12, T=12, xflag=SC, wpre=wpre, wdone=wdone, **K)
    lane_id(a, L)
    a("s_and_b32 s35, s2, 7"); a("s_lshr_b32 s36, s2, 3")
    a("s_lshr_b32 s37, s35, 2"); a("s_lshl_b32 s37, s37, 3"); a("s_lshr_b32 s38, s36, 2"); a("s_add_u32 s37, s37, s38")
    a("s_and_b32 s38, s35, 3"); a("s_lshl_b32 s38, s38, 2"); a("s_and_b32 s39, s36, 3"); a("s_add_u32 s38, s38, s39")
    rbB = 32768
    c.setup_addr(L, 34, rbB)
    a("s_lshl_b32 s42, s37, 3"); a("s_lshl_b32 s43, s34, 1"); a("s_add_u32 s42, s42, s43")
    a(f"s_lshl_b32 s{c.sXoff}, s42, 15")
    a(f"s_mul_i32 s{c.sWoff}, s38, {24*STAGE}"); a(f"s_add_u32 s{c.sWoff}, s{c.sWoff}, {WF1 + max(wdone-1,0)*STAGE}")
    a(f"v_lshlrev_b32 v{pt+2}, 2, v{L}")
    a("s_lshl_b32 s50, s38, 8"); a("s_lshl_b32 s51, s34, 12"); a("s_add_u32 s50, s50, s51"); a(f"s_add_u32 s50, s50, {CSQ}")
    cx.ready()
    for p in range(4):
        a(f"buffer_load_dword v{vCs+p}, v{pt+2}, s[44:47], s50 offen{csf}")
        if p < 3: a(f"s_add_u32 s50, s50, {3072*4}")
    a(f"v_and_b32 v{t0}, 15, v{L}")
    a(f"v_lshrrev_b32 v{t1}, 4, v{L}")
    a("s_lshl_b32 s48, s42, 11"); a(f"s_add_u32 s48, s48, {STA}")
    def ldstats():
        for i in range(4):
            a(f"buffer_load_dwordx4 v[{vSt+4*i}:{vSt+4*i+3}], v{vX}, s[44:47], s48 offen offset:{i*1024}{SC}")
    def cstab(nafter):
        a("s_lshl_b32 s51, s34, 8")
        a(f"v_add_u32 v{vA}, s51, v{pt+2}")
        a(f"s_add_u32 s51, s51, {AUX + 1024}")
        a(f"v_lshl_add_u32 v{pt+3}, v{t0}, 2, s51")
        a(f"v_lshl_add_u32 v{pt+4}, v{t1}, 4, s51")
        a(f"v_add_u32 v{pt+5}, {AUX}, v{vA}")
        a(f"v_lshlrev_b32 v{pt+6}, 2, v{t0}"); a(f"v_add_u32 v{pt+6}, {AUX}, v{pt+6}")
        a(f"v_lshlrev_b32 v{pt+7}, 4, v{t1}"); a(f"v_add_u32 v{pt+7}, {AUX}, v{pt+7}")
        c.setup_rd()
        a(f"s_waitcnt vmcnt({nafter})")
        a(f"v_add_f32 v{vCs}, v{vCs}, v{vCs+1}"); a(f"v_add_f32 v{vCs+2}, v{vCs+2}, v{vCs+3}"); a(f"v_add_f32 v{vCs}, v{vCs}, v{vCs+2}")
        a(f"ds_write_b32 v{pt+5}, v{vCs}")
    def csread():
        a("s_waitcnt lgkmcnt(0)")
        a("s_barrier")
        for j in range(8): a(f"ds_read_b32 v{vCs+j}, v{pt+6} offset:{256 + j*64}")
        for j in range(4):
            r = c.accr(8 + j, 0)
            a(f"ds_read_b128 v[{r}:{r+3}], v{pt+7} offset:{j*64}")
    if not gated: ldstats()
    def gate():
        if gated:
            cstab((wpre - wdone) * c.ND); csread()
            a("s_lshl_b32 s19, s37, 7"); a(f"s_add_u32 s19, s19, {FL(lay - 1, 4)}")
            poll1(a, nm + "g", 19, 16, t2, vB)
            cx.T(nm + ".gate")
            ldstats()
    def hook(nvm):
        nx = nvm - (wpre - wdone) * c.ND
        if not gated: cstab(nvm + 4)
        a(f"s_waitcnt vmcnt({nx if gated else nvm})")
        ls = []
        l2 = row_stats2(a, vSt)
        for t in range(RT):
            r = Rec(); r.l = l2[t]
            r(f"ds_write_b32 v{pt+3}, v{vSt+8*t} offset:{t*128}")
            r(f"ds_write_b32 v{pt+3}, v{vSt+8*t+4} offset:{t*128+64}")
            r(f"ds_read_b128 v[{vN4+8*t}:{vN4+8*t+3}], v{pt+4} offset:{t*128}")
            r(f"ds_read_b128 v[{vN4+8*t+4}:{vN4+8*t+7}], v{pt+4} offset:{t*128+64}")
            ls.append(r.l)
        for x in interleave(ls): a(x)
        if not gated: csread()
        a("s_waitcnt lgkmcnt(0)")
        for j in range(8):
            for t in range(2):
                for h in range(2):
                    a(pk_bc(c.accr(j, t) + 2 * h, vN4 + 8 * t + 2 * h, vCs + j))
        if cx.st: cx.T(nm + ".pro"); a("s_waitcnt lgkmcnt(0)")
    def w2addr(i): return 98304 + i * 8192 if i < 7 else (i - 7) * 8192
    def dma_txt(n):
        o = [f"s_add_u32 m0, s21, {w2addr(n//2)}"]
        o.append("s_add_u32 s20, s20, 8192" if (n % 2 == 0 and n) else "s_nop 0")
        o.append(f"buffer_load_dwordx4 v{pt+5}, s[44:47], s20 offen offset:{(n%2)*1024}{csf} lds")
        return o
    r = Rec()
    for j in range(4):
        for t in (1, 0):
            for e in range(4):
                r(f"v_mul_f32 v{c.accr(8+j,t)+e}, v{c.accr(8+j,0)+e}, v{vSt+8*t}")
    r("s_mov_b32 s52, 0x358637bd"); r("s_mov_b32 s53, 0x358637bd"); r("s_mov_b32 s54, 0x3fb8aa3b")
    for t in range(RT):
        for e in range(4): r(f"v_mul_f32 v{vN4+8*t+e}, s54, v{vN4+8*t+4+e}")
        r(f"v_mul_f32 v{vSt+8*t}, s54, v{vSt+8*t+4}")
    r(f"v_mov_b32 v{vOne}, 1.0"); r(f"v_mov_b32 v{vOne+1}, 1.0")
    for e in range(4): r(f"v_mov_b32 v{tmp+8+e}, 0x3f803f80")
    for e in range(4): r(f"v_mov_b32 v{tmp+12+e}, 0x358637bd")
    r(f"s_mul_i32 s55, s34, {REDW}"); r(f"s_add_u32 s55, s55, {RED}")
    r(f"v_add_u32 v{vRed}, s55, v{vX}")
    r(f"v_lshl_add_u32 v{vRedG}, v{t1}, 4, s55")
    r(f"v_add_u32 v{vB}, {RED}, v{vA}")
    r("s_lshl_b32 s56, s38, 13"); r(f"s_add_u32 s56, s56, {KVo}"); r("s_add_u32 s57, s56, 4096")
    r("s_lshl_b32 s59, s38, 7"); r(f"s_add_u32 s59, s59, {FL(lay, 0)}")
    r("s_lshl_b32 s58, s38, 8"); r(f"s_add_u32 s58, s58, {KVo + KVZ}")
    r("s_lshl_b32 s60, s42, 15"); r("s_lshl_b32 s61, s38, 11"); r("s_add_u32 s60, s60, s61"); r(f"s_add_u32 s60, s60, {PQ}")
    r("s_add_u32 s61, s60, 32768")
    r(f"v_min_u32 v{pt+2}, 1, v{L}"); r(f"v_lshlrev_b32 v{pt+2}, 26, v{pt+2}")
    r(f"v_mov_b32 v{pt+3}, 1"); r(f"v_mov_b32 v{t0}, 0")
    r("s_lshl_b32 s40, s34, 11"); r("s_add_u32 s40, s40, s56")
    r("s_lshl_b32 s41, s34, 10"); r(f"s_add_u32 s41, s41, {KVL}"); r(f"v_add_u32 v{vZw}, s41, v{vX}"); r(f"v_add_u32 v{pt+4}, {KVL}, v{vX}")
    r(f"v_lshlrev_b32 v{t1}, 4, v{t1}")
    r("s_lshl_b32 s20, s38, 17"); r(f"s_add_u32 s20, s20, {WF2}")
    r("s_lshl_b32 s21, s34, 11")
    r(f"v_add_u32 v{pt+5}, s21, v{vX}")
    r("s_lshl_b32 s22, s37, 7"); r(f"s_add_u32 s22, s22, {FL(lay, 1)}")
    r("s_lshl_b32 s23, s42, 15"); r(f"s_add_u32 s23, s23, {PQ}")
    r(f"v_add_u32 v{pt+6}, 65536, v{vX}"); r(f"v_add_u32 v{pt+7}, 131072, v{vX}")
    spread(c, 5, 1, r.l, per=1)
    c.extra(11, 1, ["s_cmp_eq_u32 s34, 0", "s_cselect_b32 s62, s58, 0x7ff00000", "s_cselect_b32 s63, s59, 0x7ff00000", "s_cselect_b32 s19, s22, 0x7ff00000"])
    if touch:
        for n in range(4):
            c.extra(-10, 3 + 7 * n, f"buffer_store_dwordx4 v[{tmp+8}:{tmp+11}], v{vX}, s[44:47], s{60 + n % 2} offen offset:{(n//2)*1024} sc1", cost=2, vm=("tch", n))
    def phi4k(r_, dst, rs, rsl, tb):
        o = []
        for h in range(2): o.append(f"v_pk_mul_f32 v[{tb+2*h}:{tb+2*h+1}], v[{r_+2*h}:{r_+2*h+1}], v[{rsl+2*h}:{rsl+2*h+1}]")
        for e in range(4): o.append(f"v_exp_f32_e64 v{tb+e}, v{tb+e} clamp")
        for h in range(2): o.append(f"v_pk_fma_f32 v[{r_+2*h}:{r_+2*h+1}], v[{r_+2*h}:{r_+2*h+1}], v[{rs+2*h}:{rs+2*h+1}], v[{vOne}:{vOne+1}]")
        for e in range(4): o.append(f"v_max_f32 v{r_+e}, v{r_+e}, v{tb+e}")
        for h in range(2): o.append(f"v_pk_add_f32 v[{r_+2*h}:{r_+2*h+1}], v[{r_+2*h}:{r_+2*h+1}], s[52:53]")
        for h in range(2): o.append(f"v_cvt_pk_bf16_f32 v{dst+h}, v{r_+2*h}, v{r_+2*h+1}")
        return o
    ev = []
    for j in range(4):
        for t in range(RT):
            ev += phi4k(c.accr(j, t), c.accr(j, 0) + 2 * t, vN4 + 8 * t + 4, vN4 + 8 * t, tmp + 4 * t)
    for j in range(4, 8):
        for t in range(RT):
            r_ = c.accr(j, t)
            for h in range(2): ev.append(f"v_pk_mul_f32 v[{r_+2*h}:{r_+2*h+1}], v[{r_+2*h}:{r_+2*h+1}], v[{vN4+8*t+4+2*h}:{vN4+8*t+5+2*h}]")
            for h in range(2): ev.append(f"v_cvt_pk_bf16_f32 v{c.accr(j,0)+2*t+h}, v{r_+2*h}, v{r_+2*h+1}")
    m = spread(c, -9, 16 + e0, ev[:128], per=per)
    m = max(m, c.M + 3)
    m = spread(c, -9, m, ev[128:], per=per) - c.M
    m += 1
    def X(pos, txt, **k2): c.extra(-8 + pos // c.M, pos % c.M, txt, **k2)
    for hl in range(2):
        for es in range(2):
            for ds in range(2):
                d = vKV + ((hl * 2 + es) * 2 + ds) * 4
                A_ = c.accr(hl * 2 + ds, 0); B_ = c.accr(4 + hl * 2 + es, 0)
                X(m, f"v_mfma_f32_16x16x32_bf16 v[{d}:{d+3}], v[{A_}:{A_+3}], v[{B_}:{B_+3}], 0", cost=-1); m += 1
        for ds in range(2):
            d = vKV + 32 + (hl * 2 + ds) * 4
            A_ = c.accr(hl * 2 + ds, 0)
            X(m, f"v_mfma_f32_16x16x32_bf16 v[{d}:{d+3}], v[{A_}:{A_+3}], v[{tmp+8}:{tmp+11}], 0", cost=-1); m += 1
    m -= 6
    for n in range(8):
        X(m, f"ds_write_b128 v{vRed}, v[{vKV+4*n}:{vKV+4*n+3}] offset:{n*1024}", lds=("rw", n), cost=2); m += 1
    m += 2
    for n in range(4):
        X(m, f"ds_write_b128 v{vRedG}, v[{vKV+32+4*n}:{vKV+32+4*n+3}] offset:{8192+n*64}", lds=("rw", 8 + n), cost=2); m += 1
    m += 4
    X(m, "s_barrier", needlds=[("rw", 11)]); m += 1
    for i in range(8):
        for w in range(2):
            X(m, f"ds_read2st64_b32 v[{vKV+4*i+2*w}:{vKV+4*i+2*w+1}], v{vB} offset0:{i*4+66*w} offset1:{i*4+66*w+33}", lds=("rr", i, w))
        m += 1
    for w in range(2):
        X(m, f"ds_read2st64_b32 v[{vKV+32+2*w}:{vKV+33+2*w}], v{vB} offset0:{32+66*w} offset1:{32+66*w+33}", lds=("rr", 8, w))
    m += 1
    for i in range(9):
        r_ = vKV + 4 * i
        X(m, [f"v_add_f32 v{r_}, v{r_}, v{r_+1}", f"v_add_f32 v{r_+2}, v{r_+2}, v{r_+3}", f"v_add_f32 v{r_}, v{r_}, v{r_+2}"], needlds=[("rr", i, 1)]); m += 1
        so = f"s{56 + i // 4} offen offset:{(i%4)*1024}" if i < 8 else "s62 offen"
        X(m, f"buffer_atomic_add_f32 v{r_}, v{vA}, s[44:47], {so}", vm=("at", i), cost=2); m += 1
    def phi4q(r_, dst, rs, rsl, tb):
        o = []
        for e in range(4): o.append(f"v_mul_f32 v{tb+e}, v{r_+e}, v{rsl}")
        for e in range(4): o.append(f"v_exp_f32_e64 v{tb+e}, v{tb+e} clamp")
        for e in range(4): o.append(f"v_fma_f32 v{r_+e}, v{r_+e}, v{rs}, 1.0")
        for e in range(4): o.append(f"v_max_f32 v{r_+e}, v{r_+e}, v{tb+e}")
        for e in range(4): o.append(f"v_add_f32 v{r_+e}, s52, v{r_+e}")
        for h in range(2): o.append(f"v_cvt_pk_bf16_f32 v{dst+h}, v{r_+2*h}, v{r_+2*h+1}")
        return o
    vQf = lambda hl, t: c.accr(8 + 2 * hl, t)
    qs = []
    for jq in range(4):
        l = []
        for t in (1, 0):
            l += phi4q(c.accr(8 + jq, t), vQf(jq // 2, t) + 2 * (jq % 2), vSt + 8 * t + 4, vSt + 8 * t, tmp + 4 * t)
        qs.append(l)
    mq = m
    for jq in range(3):
        mq = max(mq, 64 * (jq + 1) + 5)
        for x in qs[jq]:
            X(mq, x); mq += 1
    assert mq < 8 * c.M and sig > m
    X(sig, ["s_waitcnt vmcnt(0)", "s_barrier"])
    X(sig + 1, f"buffer_atomic_add v{pt+3}, v{pt+2}, s[44:47], s63 offen sc1", vm=("sig",), cost=2)
    X(pollp, f"buffer_load_dword v{t2}, v{t0}, s[44:47], s59 offen sc1", vm=("poll",), cost=2)
    pos = sig + 3
    for n in range(2 * npre):
        i2 = n // 2
        if i2 >= 7: pos = max(pos, (3 + (i2 - 7) // 2) * c.M + c.mb + 2)
        X(pos, dma_txt(n), vm=("w2", n), cost=3); pos += dsp
    c.emit(hook, gate)
    cx.T(nm + ".qkv")
    a("s_waitcnt vmcnt(0)")
    a(f"v_readfirstlane_b32 s16, v{t2}")
    a("s_cmp_ge_u32 s16, 16")
    a(f"s_cbranch_scc1 PE{nm}1")
    poll(a, nm + "1", 59, 16, t0, t2)
    vG = vKV; vZ = vKV + 8
    a(f"buffer_load_dwordx4 v[{vG}:{vG+3}], v{vX}, s[44:47], s40 offen sc1")
    a(f"buffer_load_dwordx4 v[{vG+4}:{vG+7}], v{vX}, s[44:47], s40 offen offset:1024 sc1")
    for n in range(4):
        a(f"buffer_load_dwordx4 v[{vZ+4*n}:{vZ+4*n+3}], v{t1}, s[44:47], s58 offen offset:{n*64} sc1")
    for x in qs[3]: a(x)
    a("s_waitcnt vmcnt(4)")
    for p in range(4): a(f"v_cvt_pk_bf16_f32 v{vG+p}, v{vG+2*p}, v{vG+2*p+1}")
    a(f"ds_write_b128 v{vZw}, v[{vG}:{vG+3}]")
    a("s_waitcnt vmcnt(0)")
    for hl in range(2):
        for p in range(4): a(f"v_cvt_pk_bf16_f32 v{vZ+8*hl+p}, v{vZ+8*hl+2*p}, v{vZ+8*hl+2*p+1}")
    a("s_waitcnt lgkmcnt(0)")
    a("s_barrier")
    vF = vKV + 24
    for n in range(4): a(f"ds_read_b128 v[{vF+4*n}:{vF+4*n+3}], v{pt+4} offset:{n*1024}")
    vN = 16
    for hl in range(2):
        for t in range(RT):
            d = vN + (hl * 2 + t) * 12 + 8; p = vQf(hl, t)
            a(f"v_mfma_f32_16x16x32_bf16 v[{d}:{d+3}], v[{vZ+8*hl}:{vZ+8*hl+3}], v[{p}:{p+3}], v[{tmp+12}:{tmp+15}]")
    for hl in range(2):
        for es in range(2):
            a(f"s_waitcnt lgkmcnt({3 - (hl*2+es)})")
            for t in range(RT):
                d = vN + (hl * 2 + t) * 12 + 4 * es; p = vQf(hl, t); f = vF + 4 * (hl * 2 + es)
                a(f"v_mfma_f32_16x16x32_bf16 v[{d}:{d+3}], v[{f}:{f+3}], v[{p}:{p+3}], 0")
    for n in range(4): a(f"v_rcp_f32 v{vN+12*n+8}, v{vN+12*n+8}")
    for hl in range(2):
        for t in range(RT):
            n = vN + (hl * 2 + t) * 12; d = 4 * (hl * 2 + t)
            for p in range(4): a(pk_bc(n + 2 * p, n + 2 * p, n + 8))
            for p in range(4): a(f"v_cvt_pk_bf16_f32 v{d+p}, v{n+2*p}, v{n+2*p+1}")
            a(f"buffer_store_dwordx4 v[{d}:{d+3}], v{vX}, s[44:47], s{60+t} offen offset:{hl*1024} sc1")
    vRow, vStat, vS2, vOut, ones = vN4, vN4 + 1, vN4 + 2, vN4 + 3, vN4 + 4
    vXo = vKV; tm2 = vKV + 16
    epi_setup2(a, L, vN4 + 6, vN4 + 7, vRow, vStat, vOut, ones, 0, STB, False)
    a("s_waitcnt vmcnt(0)")
    a("s_barrier")
    a(f"buffer_atomic_add v{pt+3}, v{pt+2}, s[44:47], s19 offen sc1")
    for n in range(2 * npre, 32):
        for x in dma_txt(n): a(x)
    for t in range(RT):
        for b in range(2):
            a(f"buffer_load_dwordx4 v[{vXo+8*t+4*b}:{vXo+8*t+4*b+3}], v{vX}, s[44:47], s{48+t} offen offset:{b*1024}{SC}")
    lb = lambda off: f"v{(vX, pt+6, pt+7)[off // 65536]} offset:{off % 65536}"
    for j in range(8): a(f"ds_read_b128 v[{32+4*j}:{35+4*j}], {lb(w2addr(0) + j * 1024)}")
    poll1(a, nm + "2", 22, 16, t0, t2)
    cx.T(nm + ".o")
    q = Seq(a)
    def ldx(i):
        o = []
        for t in range(RT):
            for s_ in range(2):
                pre = [("s_add_u32 s23, s23, 2048", {})] if (i and t == 0 and s_ == 0) else []
                o.append(pre + [(f"buffer_load_dwordx4 {c.xreg(i,s_,t)}, v{vX+t}, s[44:47], s23 offen offset:{s_*1024} sc1", dict(vm=("x", i, t, s_)))])
        return o
    def rdw(i):
        o = []
        for j in range(4):
            for s_ in range(2):
                r_ = 32 + (i % 2) * 32 + j * 8 + s_ * 4
                o.append([(f"ds_read_b128 v[{r_}:{r_+3}], {lb(w2addr(i) + (j * 2 + s_) * 1024)}", dict(lds=("w", i, j, s_)))])
        return o
    def run(groups):
        for gset in groups:
            for txt, k2 in gset: q(txt, **k2)
    for i in range(xl): run(ldx(i))
    a("s_waitcnt lgkmcnt(0)")
    for j in range(4):
        for s_ in range(2): q.ld[("w", 0, j, s_)] = -1
    acc2 = lambda j, t: (j * 2 + t) * 4
    for i in range(16):
        M_ = []
        for j in range(4):
            for n_, t in enumerate((0, 1) if j % 2 == 0 else (1, 0)):
                for s_ in ((0, 1) if n_ == 0 else (1, 0)):
                    w_ = 32 + (i % 2) * 32 + j * 8 + s_ * 4; r_ = acc2(j, t)
                    first = (i == 0 and s_ == (0 if n_ == 0 else 1))
                    M_.append([(f"v_mfma_f32_16x16x32_bf16 v[{r_}:{r_+3}], v[{w_}:{w_+3}], {c.xreg(i,s_,t)}, {'0' if first else f'v[{r_}:{r_+3}]'}",
                                dict(needvm=[("x", i, t, 0), ("x", i, t, 1)], needlds=[("w", i, j, 0), ("w", i, j, 1)]))])
        if i + 1 == npre: a("s_barrier")
        fill = interleave([rdw(i + 1), ldx(i + xl) if i + xl < 16 else []]) if i + 1 < 16 else []
        run(merge(M_, fill))
        if i == 13 and nxt:
            r = Rec(); cpf(r, nxt, L, vN4 + 6, vN4 + 7)
            for x in r.l:
                if x.startswith("global_load"): q(x, vm=("cpf",))
                else: a(x)
    r = Rec()
    resid_epilogue(r, acc2, RT, lambda t, b: vXo + 8 * t + 4 * b, None, tm2, vX, vRow, 44,
                   lambda t: 48 + t, 52, vStat, False, ones=ones, stf=(SC if sigout else ""))
    if pre:
        po = pre_ops("u", pre, L)
        for x in po[0]: a(x)
        a("s_barrier")
        weave(a, r.l, po[1:], every=max(1, len(r.l) // len(po)))
    else:
        a("s_nop 7")
        for x in r.l: a(x)
    if sigout:
        a("s_lshr_b32 s19, s37, 1"); a("s_lshl_b32 s19, s19, 7"); a(f"s_add_u32 s19, s19, {FL(lay, 2)}")
        signal(a, 19, L, t0, t1)
    cx.T(nm + ".end")
    return LDS

def phase_up(cx, nm, lay, gated, sigout, nxt, R=4, wpre=1, wdone=0, pre=0, pb=20, psp=6, stf=None, rep=None, touch=None, csf='', **kw):
    a = cx.a
    RT = 4; NT = 14
    STAGE = 28672
    AUX = 4 * STAGE
    HSC = AUX + 1024
    LDS = HSC + (32768 if rep else 0)
    vRb = 236
    if stf is None: stf = SC if sigout else ""
    vX = 224; vD = 228; vWr = 230
    L = 232; t0, t1, t2 = 233, 234, 235
    vS = 236; vC = 237; vCw = 238
    vSum = 240
    vP = 128
    stl = lambda u, i: (u * 4 + i) * 16 + 4
    K = dict(TM=2); K.update(kw)
    if rep and rep[0] >= 0: K['m0_all'] = True
    c = Core(a, nm, RT, NT, 16, R, vWr, vX=vX, vD=vD, init_acc=True, xflag=SC, wpre=wpre, wdone=wdone, **K)
    lane_id(a, L)
    a("s_and_b32 s35, s2, 7"); a("s_lshr_b32 s36, s2, 3")
    a("s_lshr_b32 s37, s35, 2"); a("s_lshl_b32 s37, s37, 2"); a("s_lshr_b32 s38, s36, 3"); a("s_add_u32 s37, s37, s38")
    a("s_and_b32 s38, s35, 3"); a("s_lshl_b32 s38, s38, 3"); a("s_and_b32 s39, s36, 7"); a("s_add_u32 s38, s38, s39")
    a("s_and_b32 s53, s38, 1")
    a("s_lshl_b32 s42, s37, 4"); a("s_lshl_b32 s43, s34, 2"); a("s_add_u32 s42, s42, s43")
    a(f"v_lshrrev_b32 v{t0}, 5, v{L}")
    a("s_lshl_b32 s40, s34, 1"); a("s_add_u32 s40, s40, s53")
    a(f"v_add_u32 v{t0}, s40, v{t0}")
    a(f"v_subrev_u32 v{t2}, 7, v{t0}")
    a(f"v_min_u32 v{t0}, v{t0}, v{t2}")
    a(f"v_lshlrev_b32 v{t0}, 6, v{t0}")
    a(f"v_and_b32 v{t2}, 15, v{L}")
    a(f"v_lshl_add_u32 v{t0}, v{t2}, 2, v{t0}")
    a(f"v_bfe_u32 v{t1}, v{L}, 4, 1")
    a(f"v_mul_u32_u24 v{t1}, 14336, v{t1}")
    a(f"v_add_u32 v{vC}, v{t0}, v{t1}")
    a(f"s_mul_i32 s49, s38, 448"); a(f"s_add_u32 s49, s49, {CSP}")
    a(f"v_lshrrev_b32 v{t1}, 4, v{L}")
    a(f"s_lshl_b32 s48, s42, 11"); a(f"s_add_u32 s48, s48, {STB}"); a("s_add_u32 s41, s48, 4096")
    c.setup_addr(L, 34, 32768)
    a(f"s_lshl_b32 s{c.sXoff}, s42, 15")
    a(f"s_mul_i32 s{c.sWoff}, s38, {16*STAGE}"); a(f"s_add_u32 s{c.sWoff}, s{c.sWoff}, {WF3 + max(wdone-1,0)*STAGE}")
    cx.ready()
    for i in range(16):
        a(f"buffer_load_dword v{vP+i}, v{vC}, s[44:47], s49 offen{csf}")
        if i < 15: a(f"s_add_u32 s49, s49, {7168*4}")
    def ldstats():
        for u in range(2):
            for i in range(4):
                r = stl(u, i)
                a(f"buffer_load_dwordx4 v[{r}:{r+3}], v{vX}, s[44:47], s{48 if u == 0 else 41} offen offset:{i*1024}{SC}")
    def cstab(nafter):
        a("s_lshl_b32 s40, s34, 8"); a(f"s_add_u32 s40, s40, {AUX}")
        a(f"v_lshl_add_u32 v{vCw}, v{L}, 2, s40")
        a(f"v_lshlrev_b32 v{vC}, 4, v{t1}"); a(f"v_add_u32 v{vC}, {AUX}, v{vC}")
        c.setup_rd()
        a(f"s_mul_i32 s50, s42, {112*1024}"); a(f"s_add_u32 s50, s50, {HF}")
        a(f"s_mul_i32 s55, s38, 7")
        a("s_add_u32 s51, s55, s53"); a("s_lshr_b32 s51, s51, 1"); a("s_lshl_b32 s51, s51, 10"); a("s_add_u32 s51, s51, s50")
        a("s_lshr_b32 s52, s55, 1"); a("s_lshl_b32 s52, s52, 10"); a("s_add_u32 s52, s52, s50")
        a("s_cmp_eq_u32 s53, 0"); a("s_cselect_b32 s55, 3072, 8"); a("s_add_u32 s52, s52, s55")
        for t in range(1, RT):
            a(f"s_add_u32 s{54+2*t}, s51, {t*112*1024}"); a(f"s_add_u32 s{55+2*t}, s52, {t*112*1024}")
        a(f"s_waitcnt vmcnt({min(nafter, 63)})")
        for st_ in (8, 4, 2, 1):
            for i in range(st_): a(f"v_add_f32 v{vP+i}, v{vP+i}, v{vP+i+st_}")
        a(f"ds_write_b32 v{vCw}, v{vP}")
        a("s_waitcnt lgkmcnt(0)")
        a("s_barrier")
        for j in range(NT):
            r = c.accr(j, 0)
            a(f"ds_read_b128 v[{r}:{r+3}], v{vC} offset:{j*64}")
    if not gated: ldstats()
    def gate():
        if gated:
            cstab((wpre - wdone) * c.ND)
            a("s_lshl_b32 s19, s37, 7"); a(f"s_add_u32 s19, s19, {FL(lay, 2)}")
            poll1(a, nm + "g", 19, 32, t0, t2)
            cx.T(nm + ".gate")
            ldstats()
    def hook(nvm):
        nx = nvm - (wpre - wdone) * c.ND
        if not gated: cstab(nvm + 8)
        a(f"s_waitcnt vmcnt({nx if gated else nvm})")
        ls = []
        for t in range(RT):
            u, k = t // 2, 2 * (t % 2)
            r = Rec(); b = vSum + 4 * t
            r(f"v_add_f32 v{b}, v{stl(u,0)+k}, v{stl(u,1)+k}"); r(f"v_add_f32 v{b+1}, v{stl(u,2)+k}, v{stl(u,3)+k}"); r(f"v_add_f32 v{b}, v{b}, v{b+1}")
            xlane_sum4(r, b, b + 1)
            r(f"v_mul_f32 v{b}, 0xba800000, v{b}")
            bf16_round(r, b)
            ls.append(r.l)
        for x in interleave(ls):
            if not x.startswith("s_nop"): a(x)
        a("s_waitcnt lgkmcnt(0)")
        for j in range(NT):
            for t in (3, 2, 1, 0):
                for h in range(2):
                    a(pk_bc(c.accr(j, t) + 2 * h, c.accr(j, 0) + 2 * h, vSum + 4 * t))
        if cx.st: cx.T(nm + ".pro"); a("s_waitcnt lgkmcnt(0)")
    if rep:
        r = Rec()
        plane_dma_lane(r, L, 2048, vSum + 1, t0, t1, t2)
        plane_read_bases(r, L, vRb, t0, t1, t2)
        r("s_lshl_b32 s21, s34, 13"); r(f"s_add_u32 s21, s21, {HSC}")
        for aa in range(4): r(f"v_add_u32 v{vRb+aa}, s21, v{vRb+aa}")
        r("s_lshl_b32 s22, s2, 2"); r("s_add_u32 s22, s22, s34")
        r("s_lshr_b32 s23, s22, 4"); r("s_and_b32 s22, s22, 15")
        r("s_mov_b32 s4, s28"); r("s_mov_b32 s5, s29"); r(f"s_mov_b32 s6, {3584*2048}"); r("s_mov_b32 s7, 0x20000")
        r("s_lshl_b32 s20, s23, 17"); r("s_lshl_b32 s8, s22, 7"); r("s_add_u32 s20, s20, s8")
        r(f"s_mul_i32 s8, s22, {56*8192}"); r("s_lshl_b32 s9, s23, 13"); r("s_add_u32 s8, s8, s9"); r(f"s_add_u32 s8, s8, {WF4}")
        r("s_and_b32 s13, s2, 3"); r("s_lshl_b32 s13, s13, 7"); r(f"s_add_u32 s13, s13, {FL(0, 5)}")
        r(f"v_min_u32 v{vSum+2}, 1, v{L}"); r(f"v_lshlrev_b32 v{vSum+2}, 26, v{vSum+2}"); r(f"v_mov_b32 v{vSum+3}, 1")
        m = spread(c, 1, 2, r.l, per=1)
        c.extra(1, m, ["s_cmp_ge_u32 s23, 56", "s_cselect_b32 s8, 0x7ff00000, s8", "s_add_u32 s9, s8, 4096"])
        c.extra(1, m + 1, ["s_cmp_eq_u32 s34, 0", "s_cselect_b32 s13, s13, 0x7ff00000"])
        k0_, m0_, k1_, m1_ = rep
        aR = c.agpr_end
        m = m0_
        for d in range(8):
            c.extra(k0_ + m // c.M, m % c.M, [f"s_add_u32 m0, s21, {d*1024}", (f"s_add_u32 s20, s20, {8*2048}" if d else "s_nop 0"),
                             f"buffer_load_dwordx4 v{vSum+1}, s[4:7], s20 offen nt lds"], cost=3, vm=("rd", d))
            m += 2
        m = m1_
        for j in range(4):
            for s_ in range(2):
                for qq in range(2):
                    r_ = aR + j * 8 + s_ * 4 + qq * 2
                    c.extra(k1_, m, f"ds_read_b64_tr_b16 a[{r_}:{r_+1}], v{vRb+j} offset:{(32*s_+16*qq)*128}", lds=("rr", j, s_, qq), needvm=[("rd", 7)]); m += 1
        m += 2
        for j in range(4):
            for s_ in range(2):
                r_ = aR + j * 8 + s_ * 4
                c.extra(k1_, m, f"buffer_store_dwordx4 a[{r_}:{r_+3}], v{vX}, s[44:47], s{8 + j//2} offen offset:{((j%2)*2+s_)*1024} sc1", cost=2, vm=("rs", j, s_), needlds=[("rr", j, s_, 0), ("rr", j, s_, 1)]); m += 3
        c.extra_at(4, ["s_waitcnt vmcnt(0)", "s_barrier"])
        c.extra_at(5, f"buffer_atomic_add v{vSum+3}, v{vSum+2}, s[44:47], s13 offen sc1", cost=2, vm=("rsig",))
    sP = lambda t: 51 if t == 0 else 54 + 2 * t
    sS = lambda t: 52 if t == 0 else 55 + 2 * t
    def piece(p, t):
        r = Rec()
        js = (2 * p, 2 * p + 1) if p < 3 else (6,)
        dst = c.accr(2 * js[0], t)
        for jj in js:
            rg = c.accr(2 * jj, t); ru = c.accr(2 * jj + 1, t)
            for e in range(4): r(f"v_mul_f32 v{ru+e}, v{rg+e}, v{ru+e}")
        for n, jj in enumerate(js):
            ru = c.accr(2 * jj + 1, t)
            for h in range(2): r(f"v_cvt_pk_bf16_f32 v{dst+2*n+h}, v{ru+2*h}, v{ru+2*h+1}")
        if p < 3: s_ = f"buffer_store_dwordx4 v[{dst}:{dst+3}], v{vX}, s[44:47], s{sP(t)} offen offset:{p*1024}{stf}"
        else: s_ = f"buffer_store_dwordx2 v[{dst}:{dst+1}], v{vX}, s[44:47], s{sS(t)} offen{stf}"
        return r.l, s_
    if touch is not None:
        m = touch[1]
        for p in range(4):
            for t in range(RT):
                s_ = piece(p, t)[1]
                import re
                s_ = re.sub(r"v\[\d+:\d+\]", f"v[{vX}:{vX+3}]" if p < 3 else f"v[{vX}:{vX+1}]", s_, count=1)
                c.extra(touch[0] + m // c.M, m % c.M, s_, cost=2, vm=("tch", p, t)); m += touch[2]
    if nxt:
        r = Rec(); cpf(r, nxt, L, t0, t1)
        m = spread(c, -3, 60, r.l[:6], per=1)
        c.extra(-3, m, r.l[6:], vm=("cpf",))
    if pre:
        assert pre <= 7 and c.TM == 2
        po = pre_ops("d", pre, L)
        spread(c, -2, 2, po[0], per=1)
        c.extra_at(pb, "s_barrier")
        for n, g_ in enumerate(po[1:]): c.extra_at(pb + 2 + psp * n, g_, cost=3, vm=("pre", n))
    after = []
    tot = c.TM * c.M
    for p in range(3):
        order = c.fin_order(4 * p + 3)
        m = c.fin_slot(4 * p + 3, order[-1]) + 3
        room = min(tot - m, 32 * c.TM)
        for t in order:
            ins, s_ = piece(p, t)
            pp = 1 if room >= 56 else 2
            grp = [ins[i:i+pp] for i in range(0, len(ins), pp)]
            if m + len(grp) + 1 <= tot:
                for g_ in grp:
                    c.extra_at(m, g_); m += 1
                c.extra_at(m, s_, cost=2, vm=("st", p, t)); m += 1
            else:
                after += ins + [s_]
    c.emit(hook, gate)
    for x in after: a(x)
    if len(after) < 8: a("s_nop 7")
    for t in c.fin_order(13):
        ins, s_ = piece(3, t)
        for x in ins: a(x)
        a(s_)
    cx.T(nm + ".main")
    if sigout:
        a("s_lshl_b32 s19, s37, 7"); a(f"s_add_u32 s19, s19, {FL(lay, 3)}")
        signal(a, 19, L, t0, t1)
    cx.T(nm + ".end")
    return LDS

def phase_down(cx, nm, lay, gated, sigout, nxt, final, R=2, UN=8, wpre=1, wdone=0, pre=0, wwait=False, touch=False, **kw):
    a = cx.a
    RT = 2; NT = 4; KS = 56
    if wwait: kw = dict(kw, wflag=SC)
    vX = 32; vD = 34; ones = 35; vWr = 36; L = 40; t0, t1, t2 = 41, 42, 43
    vRow, vStat, vS, vOut = 44, 45, 46, 47
    vSt = 48; vXo = 64; tmp = 80
    K = dict(gh=1, cap=3, rdmargin=2, npro=4, xlead=3, XUN=4); K.update(kw)
    c = Core(a, nm, RT, NT, KS, R, vWr, vX=vX, vD=vD, UN=UN, xflag=SC, wpre=wpre, wdone=wdone, **K)
    lane_id(a, L)
    tile_map_16x16(a, 3)
    rbB = KS * 2048
    c.setup_addr(L, 34, rbB)
    a("s_lshl_b32 s42, s37, 3"); a("s_lshl_b32 s43, s34, 1"); a("s_add_u32 s42, s42, s43")
    a(f"s_mul_i32 s{c.sXoff}, s42, {rbB}"); a(f"s_add_u32 s{c.sXoff}, s{c.sXoff}, {HF}")
    a(f"s_mul_i32 s{c.sWoff}, s38, {KS*8192}"); a(f"s_add_u32 s{c.sWoff}, s{c.sWoff}, {WF4 + max(wdone-1,0)*8192}")
    cx.ready()
    if wwait:
        a("s_lshr_b32 s19, s38, 2"); a("s_lshl_b32 s19, s19, 7"); a(f"s_add_u32 s19, s19, {FL(0, 5)}")
        poll(a, nm + "w", 19, 64, t0, t1)
    def hook0():
        c.setup_rd()
        if final: srd(a, 56, "s30", "s31", 2048 * 2048)
        epi_setup2(a, L, t0, t1, vRow, vStat, vOut, ones, STB, STA, final)
    def gate():
        if gated:
            hook0()
            a("s_lshr_b32 s19, s37, 1"); a("s_lshl_b32 s19, s19, 7"); a(f"s_add_u32 s19, s19, {FL(lay, 3)}")
            poll1(a, nm + "g", 19, 32, t0, t1)
            if cx.st: cx.T(nm + ".gate"); a("s_waitcnt lgkmcnt(0)")
    def hook(nvm):
        if not gated: hook0()
    if touch:
        for n in range(4):
            c.extra(4 + n, 5, f"buffer_store_dwordx4 v[{vRow}:{vRow+3}], v{vOut}, s[56:59], s{50 + n % 2} offen offset:{(n//2)*64} sc1", cost=2, vm=("tch", n))
    n = 0
    for i in range(4):
        c.extra(-3 + n // 2, 3 + 8 * (n % 2), f"buffer_load_dwordx4 v[{vSt+4*i}:{vSt+4*i+3}], v{vX}, s[44:47], s53 offen offset:{i*1024}{SC}", cost=2, vm=("stt", i)); n += 1
    n = 0
    for t in range(RT):
        for b in range(2):
            c.extra(-3 + n // 2, 6 + 8 * (n % 2), f"buffer_load_dwordx4 v[{vXo+8*t+4*b}:{vXo+8*t+4*b+3}], v{vX}, s[44:47], s{48+t} offen offset:{b*1024}{SC}", cost=2, vm=("xo", t, b)); n += 1
    if nxt:
        r = Rec(); cpf(r, nxt, L, t0, t1)
        c.extra(-5, 2, r.l, vm=("cpf",))
    c.emit(hook, gate)
    cx.T(nm + ".main")
    a("s_waitcnt vmcnt(0)")
    r = Rec()
    ls = row_stats2(r, vSt, want_mean=False)
    for t in range(RT): ls[t].append(f"v_mul_f32 v{vSt+8*t+4}, v{vSt+8*t+4}, v{vSt+8*t+4}")
    for x in interleave(ls): r(x)
    resid_epilogue(r, c.accr, RT, lambda t, b: vXo + 8 * t + 4 * b, lambda t: vSt + 8 * t + 4, tmp, vX, vRow, 44,
                   lambda t: 48 + t, 52, vStat, final, srd_out=56, s_out=lambda t: 50 + t, vOut=vOut, ones=ones, stf=(SC if sigout else ""))
    if pre:
        po = pre_ops("a", pre, L)
        for x in po[0]: a(x)
        a("s_barrier")
        weave(a, r.l, po[1:], every=max(1, len(r.l) // len(po)))
    else:
        for x in r.l: a(x)
    if sigout:
        a("s_lshl_b32 s19, s37, 7"); a(f"s_add_u32 s19, s19, {FL(lay, 4)}")
        signal(a, 19, L, t0, t1)
    cx.T(nm + ".end")
    return UN * c.stage_bytes

def phase_prep(cx, nm, mode=0):
    a = cx.a
    L = 1; vD0 = 3; vD1 = 4; vRb = 8; vX = 7; vOne = 12; vL4 = 2
    lane_id(a, L)
    a("s_cmp_lt_u32 s2, 192")
    a("s_cselect_b32 s25, 6144, 0"); a("s_cselect_b32 s26, 0, 2048"); a("s_add_u32 s25, s25, s26")
    plane_dma_lane(a, L, "s25", vD0, 5, 6, 9)
    plane_dma_lane(a, L, 7168, vD1, 5, 6, 9)
    a("s_mul_i32 s36, s2, 1366"); a("s_lshr_b32 s36, s36, 16")
    a("s_mul_i32 s22, s36, 48"); a("s_sub_u32 s22, s2, s22")
    a("s_sub_u32 s26, s2, 192"); a("s_lshr_b32 s26, s26, 4"); a("s_and_b32 s27, s2, 15")
    a("s_cmp_lt_u32 s2, 192")
    a("s_cselect_b32 s36, s36, s26"); a("s_cselect_b32 s22, s22, s27")
    a("s_lshl_b32 s36, s36, 2"); a("s_add_u32 s36, s36, s34")
    a("s_lshl_b32 s23, s22, 7"); a("s_lshl_b32 s24, s25, 6"); a("s_mul_i32 s24, s24, s36"); a("s_add_u32 s23, s23, s24")
    a("s_lshl_b32 s24, s25, 3")
    a("s_mul_i32 s35, s34, 24576")
    cx.ready()
    a("s_cmp_lt_u32 s2, 192")
    a("s_cselect_b32 s48, s6, s8"); a("s_cselect_b32 s49, s7, s9"); a("s_lshl_b32 s50, s25, 10"); a("s_mov_b32 s51, 0x20000")
    q = Seq(a)
    for d in range(8):
        a(f"s_add_u32 m0, s35, {d*1024}")
        if d: a("s_add_u32 s23, s23, s24")
        else: a("s_nop 0")
        q(f"buffer_load_dwordx4 v{vD0}, s[48:51], s23 offen nt lds", vm=("b", 0, d))
    a("s_lshl_b32 s37, s2, 2"); a("s_add_u32 s37, s37, s34"); a("s_lshr_b32 s38, s37, 3"); a("s_and_b32 s39, s37, 7")
    a(f"v_and_b32 v5, 15, v{L}"); a(f"v_lshrrev_b32 v6, 4, v{L}")
    a("v_lshlrev_b32 v9, 11, v5"); a("v_and_b32 v10, 1, v6"); a("v_lshl_add_u32 v9, v10, 5, v9"); a("v_lshrrev_b32 v10, 1, v6"); a("v_lshl_add_u32 v9, v10, 4, v9")
    a("s_lshl_b32 s40, s38, 15"); a("s_lshl_b32 s41, s39, 8"); a("s_add_u32 s41, s41, s40")
    srd(a, 52, "s4", "s5", 2048 * 2048)
    for b in range(4):
        q(f"buffer_load_dwordx4 v[{64+4*b}:{67+4*b}], v9, s[52:55], s41 offen offset:{b*64}", vm=("x", b))
    a("v_and_b32 v10, 1, v6"); a("v_lshlrev_b32 v11, 4, v5"); a("v_lshl_add_u32 v11, v10, 8, v11")
    a("v_cmp_eq_u32 s[62:63], 0, v10")
    a("s_lshr_b32 s42, s2, 4")
    a("s_mov_b32 s58, 0"); a("s_mov_b32 s59, 0x20000")
    def gsetup(e, db):
        a("s_and_b32 s43, s2, 15"); a("s_mul_i32 s43, s43, 7"); a("s_add_u32 s43, s43, s34")
        if e: a("s_add_u32 s43, s43, 4")
        a("s_cmp_ge_u32 s43, 56")
        a("s_cselect_b32 s56, s14, s12"); a("s_cselect_b32 s57, s15, s13")
        a("s_cselect_b32 s26, 56, 0"); a("s_cselect_b32 s27, 2048, 0")
        a("s_sub_u32 s26, s43, s26")
        a("s_lshl_b32 s23, s26, 7"); a(f"s_mul_i32 s24, s42, {64*7168}"); a("s_add_u32 s23, s23, s24")
        a("s_mul_i32 s24, s42, 28672"); a("s_add_u32 s27, s27, s24"); a(f"s_add_u32 s27, s27, {WF3}")
        a(f"s_mov_b32 s58, {1024*7168}")
        if e:
            a("s_cmp_eq_u32 s34, 3"); a("s_cselect_b32 s58, 0, s58"); a("s_cselect_b32 s27, 0x7ff00000, s27")
        for d in range(8):
            a(f"s_add_u32 m0, s35, {(1+e)*8192 + d*1024}")
            if d: a(f"s_add_u32 s23, s23, {8*7168}")
            else: a("s_nop 0")
            q(f"buffer_load_dwordx4 v{vD1}, s[56:59], s23 offen nt lds", vm=("b", 1 + e, d))
        for j in range(4):
            a(f"s_lshl_b32 s16, s26, 2"); a(f"s_add_u32 s16, s16, {j}")
            a("s_mul_i32 s17, s16, 9363"); a("s_lshr_b32 s17, s17, 16")
            a("s_mul_i32 s18, s17, 7"); a("s_sub_u32 s18, s16, s18")
            a("s_and_b32 s19, s17, 1"); a("s_mul_i32 s19, s19, 6"); a("s_add_u32 s18, s18, s19")
            a("s_sub_u32 s19, s18, 7"); a("s_min_u32 s18, s18, s19")
            a("s_lshl_b32 s18, s18, 12")
            a(f"s_mul_i32 s17, s17, {16*28672}")
            a(f"s_add_u32 s{db+j}, s17, s18"); a(f"s_add_u32 s{db+j}, s{db+j}, s27")
        a(f"s_mul_i32 s{db+4}, s42, {7168*4}"); a("s_lshl_b32 s16, s43, 8"); a(f"s_add_u32 s{db+4}, s{db+4}, s16"); a(f"s_add_u32 s{db+4}, s{db+4}, {CSP}")
        if e:
            a("s_cmp_eq_u32 s34, 3"); a(f"s_cselect_b32 s{db+4}, 0x7ff00000, s{db+4}")
    a("s_and_b32 s16, s22, 15"); a(f"s_mul_i32 s17, s16, {24*16384}"); a("s_lshr_b32 s18, s22, 4")
    a("s_lshl_b32 s19, s36, 14"); a("s_sub_u32 s26, s18, 1"); a("s_lshl_b32 s26, s26, 13"); a("s_add_u32 s19, s19, s26")
    a("s_lshl_b32 s26, s36, 11"); a(f"s_add_u32 s26, s26, {16*16384}")
    a("s_cmp_eq_u32 s18, 0"); a("s_cselect_b32 s19, s26, s19"); a("s_cselect_b32 s27, 16, 1")
    a("s_add_u32 s17, s17, s19"); a(f"s_add_u32 s17, s17, {WF1}")
    a("s_lshl_b32 s19, s16, 17"); a("s_lshl_b32 s26, s36, 13"); a("s_add_u32 s19, s19, s26"); a(f"s_add_u32 s19, s19, {WF2}")
    a("s_cmp_lt_u32 s2, 192"); a("s_cselect_b32 s84, s17, s19"); a("s_cselect_b32 s27, s27, 1"); a("s_lshl_b32 s27, s27, 11")
    for j in range(1, 4): a(f"s_add_u32 s{84+j}, s{83+j}, s27")
    r = Rec(); cpf(r, "PH_a0", L, 24, 25, s0=16)
    for x in r.l:
        if x.startswith("global_load"): q(x, vm="cpf")
        else: a(x)
    gsetup(0, 89)
    plane_read_bases(a, L, vRb + 8, 5, 6, 9)
    for aa in range(4): a(f"v_add_u32 v{16+aa}, s35, v{16+aa}")
    a(f"v_lshlrev_b32 v{vX}, 4, v{L}"); a(f"v_lshlrev_b32 v{vL4}, 2, v{L}")
    for e in range(4): a(f"v_mov_b32 v{vOne+e}, 0x3f803f80")
    a(f"v_cmp_gt_u32 s[10:11], 16, v{L}"); a(f"v_cmp_gt_u32 s[60:61], 32, v{L}"); a(f"v_cmp_gt_u32 vcc, 48, v{L}")
    def block(b, db, rb):
        q.wait(needvm=[("b", b, 7)])
        for j in range(4):
            for s_ in range(2):
                for qq in range(2):
                    r = rb + j * 8 + s_ * 4 + qq * 2
                    q(f"ds_read_b64_tr_b16 v[{r}:{r+1}], v{16+j} offset:{b*8192 + (32*s_+16*qq)*128}", lds=("r", b, j, s_, qq))
        for j in range(4):
            for s_ in range(2):
                r = rb + j * 8 + s_ * 4; d = rb + 32 + 4 * j
                q(f"buffer_store_dwordx4 v[{r}:{r+3}], v{vX}, s[44:47], s{db+j} offen offset:{s_*1024} sc1", vm=("s", b, j, s_), needlds=[("r", b, j, s_, 1)])
                a(f"v_mfma_f32_16x16x32_bf16 v[{d}:{d+3}], v[{vOne}:{vOne+3}], v[{r}:{r+3}], {'0' if s_ == 0 else f'v[{d}:{d+3}]'}")
        a("s_nop 7")
        d = rb + 32
        a(f"v_cndmask_b32 v{d+8}, v{d+12}, v{d+8}, vcc")
        a(f"v_cndmask_b32 v{d+4}, v{d+8}, v{d+4}, s[60:61]")
        a(f"v_cndmask_b32 v{d}, v{d+4}, v{d}, s[10:11]")
        return d
    for e in range(4): a(f"v_mov_b32 v{20+e}, 0")
    a(f"s_mul_i32 s16, s37, {ZSZ//1024}"); a(f"s_add_u32 s16, s16, {KV}")
    a(f"s_mov_b32 exec_lo, {(1 << (ZSZ//16384)) - 1}"); a("s_mov_b32 exec_hi, 0")
    q(f"buffer_store_dwordx4 v[20:23], v{vX}, s[44:47], s16 offen sc1", vm="z")
    a("s_mov_b64 exec, -1")
    d = block(0, 84, 96)
    a("s_lshl_b32 s16, s34, 8"); a(f"s_add_u32 s16, s16, {4*24576}")
    a(f"v_add_u32 v24, s16, v{vL4}")
    q(f"ds_write_b32 v24, v{d}", lds="cs")
    for e in range(4): a(f"v_mov_b32 v{80+e}, 0")
    a("s_lshl_b32 s41, s39, 12"); a("s_add_u32 s41, s41, s40")
    q.wait(needvm=[("x", 3)])
    for b in range(4):
        r = 64 + 4 * b
        a(f"v_permlane16_swap_b32 v{r}, v{r+2}")
        a(f"v_permlane16_swap_b32 v{r+1}, v{r+3}")
        q(f"buffer_store_dwordx4 v[{r}:{r+3}], v{vX}, s[44:47], s41 offen offset:{b*1024} sc1", vm=("xs", b))
        for p_ in range(4):
            a(f"v_dot2_f32_bf16 v{80+2*(b//2)}, v{r+p_}, v{vOne}, v{80+2*(b//2)}")
            a(f"v_dot2_f32_bf16 v{81+2*(b//2)}, v{r+p_}, v{r+p_}, v{81+2*(b//2)}")
    a("s_nop 2")
    ls = []
    for e in range(4):
        r = Rec(); xlane_sum4(r, 80 + e, 84 + e); ls.append(r.l)
    for x in interleave(ls):
        if not x.startswith("s_nop"): a(x)
    a("v_cndmask_b32 v80, v82, v80, s[62:63]"); a("v_cndmask_b32 v81, v83, v81, s[62:63]")
    a("s_lshr_b32 s16, s38, 1"); a("s_lshl_b32 s16, s16, 12"); a("s_lshl_b32 s17, s39, 9"); a("s_add_u32 s16, s16, s17")
    a("s_and_b32 s17, s38, 1"); a("s_lshl_b32 s17, s17, 3"); a("s_add_u32 s16, s16, s17"); a(f"s_add_u32 s16, s16, {STA}")
    q("buffer_store_dwordx2 v[80:81], v11, s[44:47], s16 offen sc1", vm="sts")
    q.wait(alllds=True)
    a("s_barrier")
    a(f"v_add_u32 v24, {4*24576}, v{vL4}")
    for i in range(4): q(f"ds_read_b32 v{26+i}, v24 offset:{i*256}", lds=("cr", i))
    a(f"s_lshl_b32 s16, s2, 8"); a(f"s_add_u32 s16, s16, {CSQ}")
    a("s_cmp_lt_u32 s2, 192"); a("s_cselect_b32 s16, s16, 0x7ff00000")
    q.wait(alllds=True)
    a("v_add_f32 v26, v26, v27"); a("v_add_f32 v28, v28, v29"); a("v_add_f32 v26, v26, v28")
    q(f"buffer_store_dword v26, v{vL4}, s[44:47], s16 offen sc1", vm="css")
    if mode == 1: gsetup(1, 94)
    d = block(1, 89, 144)
    q(f"buffer_store_dword v{d}, v{vL4}, s[44:47], s93 offen sc1", vm="g1")
    srd(a, 52, "s20", "s21", 256)
    a(f"v_min_u32 v24, 1, v{L}"); a("v_lshlrev_b32 v24, 26, v24"); a("v_mov_b32 v25, 1")
    a("s_and_b32 s16, s2, 3"); a("s_lshl_b32 s16, s16, 6")
    a("s_cmp_eq_u32 s34, 0"); a("s_cselect_b32 s16, s16, 0x7ff00000")
    a("s_waitcnt vmcnt(0)")
    a("s_barrier")
    a("buffer_atomic_add v25, v24, s[52:55], s16 offen sc1")
    cx.T(nm + ".sig")
    if mode == 0:
        q = Seq(a)
        gsetup(1, 94)
    d = block(2, 94, 96)
    q(f"buffer_store_dword v{d}, v{vL4}, s[44:47], s98 offen sc1", vm="g2")
    a("s_cmp_lg_u32 s34, 0")
    a(f"s_cbranch_scc1 PE{nm}")
    a(f"v_and_b32 v24, 3, v{L}"); a("v_lshlrev_b32 v24, 6, v24")
    a("s_mov_b32 s17, 0")
    a.label(f"P{nm}")
    a("buffer_load_dword v25, v24, s[52:55], 0 offen sc1")
    a("s_waitcnt vmcnt(0)")
    a("v_cmp_gt_u32 vcc, 64, v25")
    a(f"s_cbranch_vccz PE{nm}")
    a("s_sleep 4")
    a("s_add_u32 s17, s17, 1"); a("s_cmp_lt_u32 s17, 0x40000")
    a(f"s_cbranch_scc1 P{nm}")
    a.label(f"PE{nm}")
    a("s_barrier")
    cx.T(nm + ".end")
    return 4 * 24576 + 1024

HDR = open("interleave_layers__linear_attn_block__glu_gated_bilinear__prompt.s.ref").read().split("; Override launch")[0]
PH = ["a0", "u0", "d0", "a1", "u1", "d1"]
def build(fn, cuts=(), st=False, A_={}, U_={}, D_={}, Ag={}, Ug={}, Dg={}, k0kw={}, PRE=dict(a=0, u=0, d=0), rep=None, TCH='', one=False, pmode=0):
    cuts = set(cuts) | {"a0"}
    groups = []
    for p in PH:
        if p in cuts: groups.append([])
        groups[-1].append(p)
    ks = []; ls = []
    if not one:
      k, lds, n = gen_k0("k0_kernel", nxt=("PH_a0",), ngate=112, v2=True, stflag="sc1", down=(rep is None), st2=True, **k0kw)
      ks.append(k); ls.append(("k0_kernel", (n,1,1), (256,1,1), lds))
    names = {}
    for gi, g in enumerate(groups):
        kn = f"m{gi}_kernel"
        a = A(); cx = Ctx(a, st)
        a("s_cmp_ge_u32 s2, 256")
        a(f"s_cbranch_scc0 S_{kn}")
        a("s_endpgm")
        a.label(f"S_{kn}")
        cx.T("start")
        a("s_load_dwordx2 s[32:33], s[0:1], 72")
        a("s_load_dwordx4 s[28:31], s[0:1], 48")
        if one and gi == 0:
            a("s_load_dwordx4 s[4:7], s[0:1], 0"); a("s_load_dwordx2 s[8:9], s[0:1], 16")
            a("s_load_dwordx4 s[12:15], s[0:1], 32"); a("s_load_dwordx2 s[20:21], s[0:1], 64")
        a("v_lshrrev_b32 v1, 6, v0")
        a("s_nop 0")
        a("v_readfirstlane_b32 s34, v1")
        state = dict(done=False)
        def ready():
            if not state["done"]:
                a("s_waitcnt lgkmcnt(0)")
                srd(a, 44, "s32", "s33", WS_USED)
                state["done"] = True
        cx.ready = ready
        LDS = 0
        if one and gi == 0: LDS = phase_prep(cx, "p0", pmode)
        for p in g:
            i = PH.index(p); lay = int(p[1])
            gated = p not in cuts
            nx = PH[i + 1] if i + 1 < len(PH) else None
            sigout = nx is not None and nx not in cuts
            nxl = f"PH_{nx}" if nx else None
            ex = {}
            if gated: ex["wdone"] = PRE[p[0]]
            if sigout: ex["pre"] = PRE[nx[0]]
            if rep and p == "u0": ex["rep"] = rep
            if rep and p == "d0": ex["wwait"] = True
            if p == "u0" and "h" in TCH: ex.update(touch=(3, 4, 60), H=12, T=4)
            if p == "a0" and "o" in TCH: ex["touch"] = True
            if p == "d1" and "y" in TCH: ex["touch"] = True
            if one and p in ("a0", "u0"): ex["wflag"] = SC; ex["csf"] = SC
            a.label(f"PH_{p}")
            if p[0] == "a": l = phase_attn(cx, p, lay, gated, sigout, nxl, **{**A_, **(Ag if gated else {}), **ex})
            elif p[0] == "u": l = phase_up(cx, p, lay, gated, sigout, nxl, **{**U_, **(Ug if gated else {}), **ex})
            else: l = phase_down(cx, p, lay, gated, sigout, nxl, lay == 1, **{**D_, **(Dg if gated else {}), **ex})
            a.label(f"END_PH_{p}")
            LDS = max(LDS, l)
        if st:
            a("s_waitcnt vmcnt(0)"); cx.T("fin")
            a("s_waitcnt lgkmcnt(0)")
            a("s_lshl_b32 s60, s2, 2"); a("s_add_u32 s60, s60, s34"); a("s_lshl_b32 s60, s60, 7"); a(f"s_add_u32 s60, s60, {STAMP_OFF + gi*0x80000}")
            a("v_mov_b32 v1, 0")
            for i in range(cx.n):
                a(f"v_mov_b32 v0, s{64+2*i}")
                a(f"buffer_store_dword v0, v1, s[44:47], s60 offen offset:{4*i}")
                a("s_nop 1")
            names[kn] = cx.names
        a("s_endpgm")
        ks.append(kernel_wrap(kn, a.text(), vgpr=256, agpr=256, sgpr=102))
        ls.append((kn, (256,1,1), (256,1,1), LDS))
    open(fn, "w").write(HDR + file_wrap(ls, ks))
    if st:
        import json; json.dump(names, open(fn + ".json", "w"))

if __name__ == "__main__":
    G0 = dict(Ag=dict(wpre=5), Ug=dict(wpre=3), Dg=dict(wpre=7), rep=(2, 90, -4, 4))
    build("ma.s", **G0)
    build("mo.s", one=True, **G0)
    build("mo_st.s", one=True, st=True, **G0)
    build("mp.s", one=True, pmode=1, **G0)
    build("mp_st.s", one=True, pmode=1, st=True, **G0)
```

```python
from g import *
from layout import *
def srd(a, s, lo, hi, nbytes):
    a(f"s_mov_b32 s{s}, {lo}"); a(f"s_mov_b32 s{s+1}, {hi}")
    a(f"s_mov_b32 s{s+2}, {nbytes}"); a(f"s_mov_b32 s{s+3}, 0x20000")
SID = [0]
def stamp(a, n):
    a(f"s_memtime s[{64+4*n}:{65+4*n}]")
    a(f"s_memrealtime s[{66+4*n}:{67+4*n}]")
def stamp_store(a, n, vtmp, srd_, wave_s, nw_log2=2):
    a("s_waitcnt lgkmcnt(0)")
    a(f"s_lshl_b32 s60, s2, {nw_log2}"); a(f"s_add_u32 s60, s60, s{wave_s}"); a("s_lshl_b32 s60, s60, 7"); a(f"s_add_u32 s60, s60, {STAMP_OFF + SID[0] * 0x80000}")
    a(f"v_mov_b32 v{vtmp+4}, 0")
    for i in range(n):
        for k in range(4): a(f"v_mov_b32 v{vtmp+k}, s{64+4*i+k}")
        a(f"buffer_store_dwordx4 v[{vtmp}:{vtmp+3}], v{vtmp+4}, s[{srd_}:{srd_+3}], s60 offen offset:{16*i}")
        a("s_nop 1")
def xlane_sum4(a, r, tmp):
    a(f"v_mov_b32 v{tmp}, v{r}")
    a("s_nop 1")
    a(f"v_permlane32_swap_b32 v{r}, v{tmp}")
    a(f"v_add_f32 v{r}, v{r}, v{tmp}")
    a(f"v_mov_b32 v{tmp}, v{r}")
    a("s_nop 1")
    a(f"v_permlane16_swap_b32 v{r}, v{tmp}")
    a(f"v_add_f32 v{r}, v{r}, v{tmp}")

def barstamp_store(a, base, n, vtmp, srd_):
    a("s_add_u32 s60, s60, 0x40000")
    for i in range(n):
        a(f"v_mov_b32 v{vtmp}, s{base+2*i}")
        a(f"buffer_store_dword v{vtmp}, v{vtmp+4}, s[{srd_}:{srd_+3}], s60 offen offset:{4*i}")
        a("s_nop 1")

def spread(c, k, m0, instrs, per=2, step=1, **kw):
    m = m0; first = True
    for i in range(0, len(instrs), per):
        kk, mm = k, m
        while mm >= c.M: mm -= c.M; kk += 1
        assert kk < 0 or k >= 0
        c.extra(kk, mm, instrs[i:i+per], **(kw if first else {}))
        first = False
        m += step
    return m

class Rec(A):
    def __call__(self, s): self.l.append(s)

def bf16_round(a, r):
    a(f"v_cvt_pk_bf16_f32 v{r}, v{r}, v{r}")
    a(f"v_and_b32 v{r}, 0xffff0000, v{r}")

def row_stats(a, bs, bq, want_mean=True, want_rstd=True):
    a(f"v_add_f32 v{bs}, v{bs}, v{bs+1}"); a(f"v_add_f32 v{bs+2}, v{bs+2}, v{bs+3}"); a(f"v_add_f32 v{bs}, v{bs}, v{bs+2}")
    xlane_sum4(a, bs, bs + 1)
    a(f"v_mul_f32 v{bs}, 0xba800000, v{bs}")
    if want_rstd:
        a(f"v_add_f32 v{bq}, v{bq}, v{bq+1}"); a(f"v_add_f32 v{bq+2}, v{bq+2}, v{bq+3}"); a(f"v_add_f32 v{bq}, v{bq}, v{bq+2}")
        xlane_sum4(a, bq, bq + 1)
        a(f"v_mul_f32 v{bq}, 0x3a800000, v{bq}")
        a(f"v_fma_f32 v{bq}, -v{bs}, v{bs}, v{bq}")
        a(f"v_max_f32 v{bq}, 0, v{bq}")
        bf16_round(a, bq)
        a(f"v_add_f32 v{bq}, 0x3727c5ac, v{bq}")
        bf16_round(a, bq)
        a(f"v_sqrt_f32 v{bq}, v{bq}")
        a("s_nop 0")
        bf16_round(a, bq)
        a(f"v_rcp_f32 v{bq}, v{bq}")
        a("s_nop 0")
    if want_mean:
        bf16_round(a, bs)

def interleave(lists):
    out = []
    n = max(len(l) for l in lists)
    for i in range(n):
        for l in lists:
            if i < len(l): out.append(l[i])
    return out

def resid_epilogue(a, accr, RT, xold, scale, tmp, vX, vRow, srd_ws, s_xnew, s_stat, vStat, final, srd_out=None, s_out=None, vOut=None, ones=None, stf='', pre=False):
    vs = [tmp + 8 + 2 * t for t in range(RT)]
    for t in range(RT):
        a(f"v_mov_b32 v{vs[t]}, 0"); a(f"v_mov_b32 v{vs[t]+1}, 0")
        for b in range(2):
            xo = xold(t, b)
            for h in range(2):
                r = accr(2 * b + h, t)
                if pre:
                    if scale is not None:
                        for e in range(4): a(f"v_mul_f32 v{r+e}, v{r+e}, v{scale(t)}")
                    continue
                for p in range(2):
                    a(f"v_lshlrev_b32 v{tmp+4*h+2*p}, 16, v{xo+2*h+p}")
                    a(f"v_and_b32 v{tmp+4*h+2*p+1}, 0xffff0000, v{xo+2*h+p}")
                for e in range(4):
                    if scale is None: a(f"v_add_f32 v{r+e}, v{r+e}, v{tmp+4*h+e}")
                    else: a(f"v_fma_f32 v{r+e}, v{r+e}, v{scale(t)}, v{tmp+4*h+e}")
            for h in range(2):
                r = accr(2 * b + h, t)
                for p in range(2):
                    a(f"v_cvt_pk_bf16_f32 v{xo+2*h+p}, v{r+2*p}, v{r+2*p+1}")
            if not final:
                a(f"buffer_store_dwordx4 v[{xo}:{xo+3}], v{vX}, s[{srd_ws}:{srd_ws+3}], s{s_xnew(t)} offen offset:{b*1024}{stf}")
                for p in range(4):
                    a(f"v_dot2_f32_bf16 v{vs[t]}, v{xo+p}, v{ones}, v{vs[t]}")
                for p in range(4):
                    a(f"v_dot2_f32_bf16 v{vs[t]+1}, v{xo+p}, v{xo+p}, v{vs[t]+1}")
            else:
                a("s_nop 1")
                a(f"v_permlane16_swap_b32 v{xo}, v{xo+2}")
                a(f"v_permlane16_swap_b32 v{xo+1}, v{xo+3}")
                a(f"buffer_store_dwordx4 v[{xo}:{xo+3}], v{vOut}, s[{srd_out}:{srd_out+3}], s{s_out(t)} offen offset:{b*64}")
    if not final:
        a("s_nop 2")
        ls = []
        for t in range(RT):
            for k in range(2):
                r = Rec(); xlane_sum4(r, vs[t] + k, tmp + 2 * t + k); ls.append(r.l)
        for x in interleave(ls): a(x)
        a(f"v_cmp_gt_u32 vcc, 16, v{vRow}")
        a("s_nop 1")
        a(f"v_cndmask_b32 v{tmp}, v{vs[0]+1}, v{vs[0]}, vcc")
        if RT == 2:
            a(f"v_cndmask_b32 v{tmp+1}, v{vs[1]+1}, v{vs[1]}, vcc")
            a(f"v_cmp_gt_u32 vcc, 512, v{vX}")
            a("s_nop 1")
            a(f"v_cndmask_b32 v{tmp}, v{tmp+1}, v{tmp}, vcc")
        a(f"buffer_store_dword v{tmp}, v{vStat}, s[{srd_ws}:{srd_ws+3}], s{s_stat} offen{stf}")

class Seq:
    def __init__(self, a):
        self.a = a; self.vm = {}; self.ld = {}; self.nv = 0; self.nl = 0; self.dv = 0; self.dl = 0
    def wait(self, needvm=(), needlds=(), alllds=False):
        w = []
        if needvm:
            i = max(self.vm[t] for t in needvm) + 1
            if i > self.dv:
                n = min(self.nv - i, 63); w.append(f"vmcnt({n})"); self.dv = self.nv - n
        if needlds or alllds:
            i = self.nl if alllds else max(self.ld[t] for t in needlds) + 1
            if i > self.dl:
                n = min(self.nl - i, 15); w.append(f"lgkmcnt({n})"); self.dl = self.nl - n
        if w: self.a("s_waitcnt " + " ".join(w))
    def __call__(self, txt, vm=None, lds=None, needvm=(), needlds=()):
        self.wait(needvm, needlds)
        self.a(txt)
        if vm is not None: self.vm[vm] = self.nv; self.nv += 1
        if lds is not None: self.ld[lds] = self.nl; self.nl += 1

def merge(main, fill, start=0, per=None):
    out = []
    n = len(main) - start
    k = 0
    for i, m in enumerate(main):
        out.append(m)
        if i >= start:
            tgt = (len(fill) * (i - start + 1) + n - 1) // n if per is None else min(len(fill), per * (i - start + 1))
            while k < tgt: out.append(fill[k]); k += 1
    out.extend(fill[k:])
    return out

_pfn = [0]
def code_prefetch(a, targets, vL, v0_, v1_, s0=10):
    a(f"s_lshr_b32 s{s0+2}, s2, 3"); a(f"s_and_b32 s{s0+2}, s{s0+2}, 31"); a(f"s_lshl_b32 s{s0+2}, s{s0+2}, 10")
    a(f"v_and_b32 v{v0_}, 7, v{vL}")
    a(f"v_lshlrev_b32 v{v0_}, 7, v{v0_}")
    a(f"v_add_u32 v{v0_}, s{s0+2}, v{v0_}")
    for t in targets:
        a(f"s_getpc_b64 s[{s0}:{s0+1}]")
        a(f"s_add_u32 s{s0}, s{s0}, {t}@rel32@lo+4")
        a(f"s_addc_u32 s{s0+1}, s{s0+1}, {t}@rel32@hi+12")
        a(f"v_min_u32 v{v1_}, END_{t}-{t}-4, v{v0_}")
        a(f"global_load_dword v{v1_}, v{v1_}, s[{s0}:{s0+1}]")
    return len(targets)

def lane_id(a, L):
    a(f"v_mbcnt_lo_u32_b32 v{L}, -1, 0")
    a(f"v_mbcnt_hi_u32_b32 v{L}, -1, v{L}")

def signal(a, s_flag, vL, v0_, v1_, stmp=18):
    a(f"v_min_u32 v{v0_}, 1, v{vL}"); a(f"v_lshlrev_b32 v{v0_}, 26, v{v0_}")
    a(f"v_mov_b32 v{v1_}, 1")
    a("s_cmp_eq_u32 s34, 0"); a(f"s_cselect_b32 s{stmp}, s{s_flag}, 0x7ff00000")
    a("s_waitcnt vmcnt(0)")
    a("s_barrier")
    a(f"buffer_atomic_add v{v1_}, v{v0_}, s[44:47], s{stmp} offen sc1")

def poll(a, lbl, s_flag, count, v0_, v1_):
    a(f"v_mov_b32 v{v0_}, 0")
    a("s_mov_b32 s17, 0")
    a.label(f"P{lbl}")
    a(f"buffer_load_dword v{v1_}, v{v0_}, s[44:47], s{s_flag} offen sc1")
    a("s_waitcnt vmcnt(0)")
    a(f"v_readfirstlane_b32 s16, v{v1_}")
    a(f"s_cmp_ge_u32 s16, {count}")
    a(f"s_cbranch_scc1 PE{lbl}")
    a("s_sleep 1")
    a("s_add_u32 s17, s17, 1")
    a("s_cmp_lt_u32 s17, 0x40000")
    a(f"s_cbranch_scc1 P{lbl}")
    a.label(f"PE{lbl}")

def row_stats2(a, b, want_mean=True, want_rstd=True, want_inv=False):
    ks = [0, 1, 2, 3] if want_rstd else [0, 2]
    for k in ks: a(f"v_add_f32 v{b+k}, v{b+k}, v{b+4+k}")
    for k in ks: a(f"v_add_f32 v{b+8+k}, v{b+8+k}, v{b+12+k}")
    dst = {0: b, 1: b + 4, 2: b + 8, 3: b + 12}
    for k in ([1, 3] if want_rstd else []) + [0, 2]:
        a(f"v_add_f32 v{dst[k]}, v{b+k}, v{b+8+k}")
    ls = []
    for t in range(2):
        r = Rec(); bs = b + 8 * t; bq = bs + 4
        xlane_sum4(r, bs, bs + 1)
        r(f"v_mul_f32 v{bs}, 0xba800000, v{bs}")
        if want_rstd:
            xlane_sum4(r, bq, bq + 1)
            r(f"v_mul_f32 v{bq}, 0x3a800000, v{bq}")
            r(f"v_fma_f32 v{bq}, -v{bs}, v{bs}, v{bq}")
            r(f"v_max_f32 v{bq}, 0, v{bq}")
            bf16_round(r, bq)
            r(f"v_add_f32 v{bq}, 0x3727c5ac, v{bq}")
            bf16_round(r, bq)
            r(f"v_sqrt_f32 v{bq}, v{bq}")
            r("s_nop 0")
            bf16_round(r, bq)
            if want_inv: r(f"v_mul_f32 v{bs+2}, v{bq}, v{bq}")
            r(f"v_rcp_f32 v{bq}, v{bq}")
            r("s_nop 0")
        if want_mean: bf16_round(r, bs)
        ls.append(r.l)
    return ls

def epi_setup2(a, L, t0, t1, vRow, vStat, vOut, ones, stin_off, stout_off, final):
    a(f"v_and_b32 v{vRow}, 31, v{L}")
    a(f"v_and_b32 v{t0}, 15, v{L}")
    a(f"v_lshrrev_b32 v{t1}, 4, v{L}")
    a(f"v_lshlrev_b32 v{vStat}, 4, v{t0}")
    a(f"v_lshl_add_u32 v{vStat}, v{t1}, 2, v{vStat}")
    if final:
        a(f"v_and_b32 v{ones}, 1, v{t1}")
        a(f"v_lshlrev_b32 v{vOut}, 11, v{t0}")
        a(f"v_lshl_add_u32 v{vOut}, v{ones}, 5, v{vOut}")
        a(f"v_lshrrev_b32 v{t1}, 1, v{t1}")
        a(f"v_lshl_add_u32 v{vOut}, v{t1}, 4, v{vOut}")
    a(f"v_mov_b32 v{ones}, 0x3f803f80")
    a("s_lshl_b32 s54, s42, 15"); a("s_lshl_b32 s55, s38, 11")
    a("s_add_u32 s48, s54, s55")
    a("s_add_u32 s49, s48, 32768")
    if final:
        a("s_lshl_b32 s55, s38, 7"); a("s_add_u32 s50, s54, s55"); a("s_add_u32 s51, s50, 32768")
    a("s_lshl_b32 s54, s42, 11")
    a("s_lshl_b32 s55, s38, 8")
    a("s_add_u32 s52, s54, s55"); a(f"s_add_u32 s52, s52, {stout_off}")
    a(f"s_add_u32 s53, s54, {stin_off}")

POLL = dict(sleep=4, one=True)
def poll1(a, lbl, s_flag, count, v0_, v1_):
    if not POLL["one"]:
        return poll(a, lbl, s_flag, count, v0_, v1_)
    a("s_cmp_lg_u32 s34, 0")
    a(f"s_cbranch_scc1 PE{lbl}")
    a(f"v_mov_b32 v{v0_}, 0")
    a("s_mov_b32 s17, 0")
    a.label(f"P{lbl}")
    a(f"buffer_load_dword v{v1_}, v{v0_}, s[44:47], s{s_flag} offen sc1")
    a("s_waitcnt vmcnt(0)")
    a(f"v_readfirstlane_b32 s16, v{v1_}")
    a(f"s_cmp_ge_u32 s16, {count}")
    a(f"s_cbranch_scc1 PE{lbl}")
    a(f"s_sleep {POLL['sleep']}")
    a("s_add_u32 s17, s17, 1")
    a("s_cmp_lt_u32 s17, 0x40000")
    a(f"s_cbranch_scc1 P{lbl}")
    a.label(f"PE{lbl}")
    a("s_waitcnt vmcnt(0)")
    a("s_barrier")
```

```python
from common import *
from core import Core
from k1 import pk_bc
from k4 import epi_setup, tile_map_16x16
from k0 import gen_k0, plane_dma_lane, plane_read_bases

class Ctx:
    def __init__(self, a, st):
        self.a = a; self.st = st; self.n = 0; self.names = []
    def J(self):
        if not getattr(self, "jit", 0): return
        a = self.a; self.jn = getattr(self, "jn", 0) + 1
        a("s_memrealtime s[100:101]"); a("s_waitcnt lgkmcnt(0)")
        a("s_lshl_b32 s99, s2, 2"); a("s_add_u32 s99, s99, s34"); a(f"s_mul_i32 s99, s99, {2654435761 % (1<<31)}"); a("s_xor_b32 s99, s99, s100")
        a("s_mul_i32 s99, s99, 1103515245"); a("s_lshr_b32 s99, s99, 27")
        a.label(f"J{self.jn}_{id(self)%9973}")
        a(f"s_sleep {self.jit}")
        a("s_sub_u32 s99, s99, 1"); a("s_cmp_gt_i32 s99, 0")
        a(f"s_cbranch_scc1 J{self.jn}_{id(self)%9973}")
    def T(self, nm):
        if nm != "start": self.J()
        if self.st and self.n < 10:
            self.a(f"s_memrealtime s[{64+2*self.n}:{65+2*self.n}]"); self.n += 1; self.names.append(nm)

def cpf(r, lab, vL, v0_, v1_, s0=10):
    code_prefetch(r, (lab,), vL, v0_, v1_, s0)

SC = " sc1"

def pre_ops(kind, n, vL):
    if kind == "a": ND, stage, vD, base, KS = 4, 16384, 130, WF1, 24
    elif kind == "u": ND, stage, vD, base, KS = 7, 28672, 228, WF3, 16
    else: ND, stage, vD, base, KS = 2, 8192, 250, WF4, 56
    g = ["s_and_b32 s12, s2, 7", "s_lshr_b32 s13, s2, 3"]
    if kind == "a": g += ["s_and_b32 s12, s12, 3", "s_lshl_b32 s12, s12, 2", "s_and_b32 s13, s13, 3"]
    elif kind == "u": g += ["s_and_b32 s12, s12, 3", "s_lshl_b32 s12, s12, 3", "s_and_b32 s13, s13, 7"]
    else: g += ["s_and_b32 s12, s12, 1", "s_lshl_b32 s12, s12, 3", "s_and_b32 s13, s13, 7"]
    g += ["s_add_u32 s12, s12, s13", f"s_mul_i32 s14, s12, {KS*stage}", f"s_add_u32 s14, s14, {base}",
          f"s_mul_i32 s15, s34, {ND*1024}", "s_add_u32 s14, s14, s15", f"v_lshlrev_b32 v{vD}, 4, v{vL}"]
    out = [g]
    for i in range(n):
        for d in range(ND):
            off = i * stage + d * 1024
            out.append([f"s_add_u32 m0, s15, {off}", f"s_add_u32 s13, s14, {off}", f"buffer_load_dwordx4 v{vD}, s[44:47], s13 offen lds"])
    return out

def weave(a, lines, groups, start=0, every=8):
    gi = 0
    for n, x in enumerate(lines):
        if n >= start and (n - start) % every == 0 and gi < len(groups):
            for y in groups[gi]: a(y)
            gi += 1
        a(x)
    for g in groups[gi:]:
        for y in g: a(y)

def phase_attn(cx, nm, lay, gated, sigout, nxt, R=4, per=6, e0=3, sig=185, pollp=225, npre=10, dsp=3, xl=3, wpre=1, wdone=0, pre=0, touch=False, csf='', early=False, remap=False, wb=None, **kw):
    a = cx.a
    RT = 2; NT = 8; UN = 6
    STAGE = 16384
    AUX = UN * STAGE; RED = AUX + 2048; REDW = 8448
    LDS = 159744; KVL = 155648
    KVo = KV + lay * KVSZ
    wa0 = 96
    vX = 128; vD = 130; vWr = 131
    L = 133; t0, t1, t2 = 134, 135, 136
    vA = 137; vB = 138; vZw = 139; vOne = 140
    vSt = 142; vN4 = 158; vCs = 174; pt = 182; vKV = 190; tmp = 238
    vRed = 254; vRedG = 255
    def umap(stg, u):
        if stg < 16: return stg, u
        return 8 * ((stg - 16) % 2) + u, 8 + (stg - 16) // 2
    K = dict(gh=3, npro=4, rdmargin=6, xlead=3, rddelay=1); K.update(kw)
    c = Core(a, nm, RT, NT, 24, R, vWr, nontrans=range(0, 8), vX=vX, vD=vD, init_acc=True, xf='a', wf='v', xa0=0, wa0=wa0,
             UN=UN, XUN=16, XK=16, m0_from=8, umap=umap, H=12, T=12, xflag=SC, wpre=wpre, wdone=wdone, **K)
    lane_id(a, L)
    a("s_and_b32 s35, s2, 7"); a("s_lshr_b32 s36, s2, 3")
    a("s_lshr_b32 s37, s35, 2"); a("s_lshl_b32 s37, s37, 3"); a("s_lshr_b32 s38, s36, 2"); a("s_add_u32 s37, s37, s38")
    a("s_and_b32 s38, s35, 3"); a("s_lshl_b32 s38, s38, 2"); a("s_and_b32 s39, s36, 3"); a("s_add_u32 s38, s38, s39")
    rbB = 32768
    c.setup_addr(L, 34, rbB)
    a("s_lshl_b32 s42, s37, 3"); a("s_lshl_b32 s43, s34, 1"); a("s_add_u32 s42, s42, s43")
    a(f"s_lshl_b32 s{c.sXoff}, s42, 15")
    a(f"s_mul_i32 s{c.sWoff}, s38, {24*STAGE}"); a(f"s_add_u32 s{c.sWoff}, s{c.sWoff}, {WF1 + max(wdone-1,0)*STAGE}")
    a(f"v_lshlrev_b32 v{pt+2}, 2, v{L}")
    a("s_lshl_b32 s50, s38, 8"); a("s_lshl_b32 s51, s34, 12"); a("s_add_u32 s50, s50, s51"); a(f"s_add_u32 s50, s50, {CSQ}")
    cx.ready()
    for p in range(4):
        a(f"buffer_load_dword v{vCs+p}, v{pt+2}, s[44:47], s50 offen{csf}")
        if p < 3: a(f"s_add_u32 s50, s50, {3072*4}")
    a(f"v_and_b32 v{t0}, 15, v{L}")
    a(f"v_lshrrev_b32 v{t1}, 4, v{L}")
    a("s_lshl_b32 s48, s42, 11"); a(f"s_add_u32 s48, s48, {STA}")
    def ldstats():
        for i in range(4):
            a(f"buffer_load_dwordx4 v[{vSt+4*i}:{vSt+4*i+3}], v{vX}, s[44:47], s48 offen offset:{i*1024}{SC}")
    def cstab(nafter):
        a("s_lshl_b32 s51, s34, 8")
        a(f"v_add_u32 v{vA}, s51, v{pt+2}")
        a(f"s_add_u32 s51, s51, {AUX + 1024}")
        a(f"v_lshl_add_u32 v{pt+3}, v{t0}, 2, s51")
        a(f"v_lshl_add_u32 v{pt+4}, v{t1}, 4, s51")
        a(f"v_add_u32 v{pt+5}, {AUX}, v{vA}")
        a(f"v_lshlrev_b32 v{pt+6}, 2, v{t0}"); a(f"v_add_u32 v{pt+6}, {AUX}, v{pt+6}")
        a(f"v_lshlrev_b32 v{pt+7}, 4, v{t1}"); a(f"v_add_u32 v{pt+7}, {AUX}, v{pt+7}")
        c.setup_rd()
        a(f"s_waitcnt vmcnt({nafter})")
        a(f"v_add_f32 v{vCs}, v{vCs}, v{vCs+1}"); a(f"v_add_f32 v{vCs+2}, v{vCs+2}, v{vCs+3}"); a(f"v_add_f32 v{vCs}, v{vCs}, v{vCs+2}")
        a(f"ds_write_b32 v{pt+5}, v{vCs}")
    def csread():
        a("s_waitcnt lgkmcnt(0)")
        a("s_barrier")
        for j in range(8): a(f"ds_read_b32 v{vCs+j}, v{pt+6} offset:{256 + j*64}")
        for j in range(4):
            r = c.accr(8 + j, 0)
            a(f"ds_read_b128 v[{r}:{r+3}], v{pt+7} offset:{j*64}")
    if not gated: ldstats()
    def gate():
        if gated:
            cstab((wpre - wdone) * c.ND); csread()
            a("s_lshl_b32 s19, s37, 7"); a(f"s_add_u32 s19, s19, {FL(lay - 1, 4)}")
            poll1(a, nm + "g", 19, 16, t2, vB)
            cx.T(nm + ".gate")
            ldstats()
    def hook(nvm):
        nx = nvm - (wpre - wdone) * c.ND
        if not gated: cstab(nvm + 4)
        a(f"s_waitcnt vmcnt({nx if gated else nvm})")
        ls = []
        l2 = row_stats2(a, vSt)
        for t in range(RT):
            r = Rec(); r.l = l2[t]
            r(f"ds_write_b32 v{pt+3}, v{vSt+8*t} offset:{t*128}")
            r(f"ds_write_b32 v{pt+3}, v{vSt+8*t+4} offset:{t*128+64}")
            r(f"ds_read_b128 v[{vN4+8*t}:{vN4+8*t+3}], v{pt+4} offset:{t*128}")
            r(f"ds_read_b128 v[{vN4+8*t+4}:{vN4+8*t+7}], v{pt+4} offset:{t*128+64}")
            ls.append(r.l)
        for x in interleave(ls): a(x)
        if not gated: csread()
        a("s_waitcnt lgkmcnt(0)")
        for j in range(8):
            for t in range(2):
                for h in range(2):
                    a(pk_bc(c.accr(j, t) + 2 * h, vN4 + 8 * t + 2 * h, vCs + j))
        if cx.st or cx.jit: cx.T(nm + ".pro"); a("s_waitcnt lgkmcnt(0)")
    def w2addr(i): return 98304 + i * 8192 if i < 7 else (i - 7) * 8192
    def dma_txt(n):
        o = [f"s_add_u32 m0, s21, {w2addr(n//2)}"]
        o.append("s_add_u32 s20, s20, 8192" if (n % 2 == 0 and n) else "s_nop 0")
        o.append(f"buffer_load_dwordx4 v{pt+5}, s[44:47], s20 offen offset:{(n%2)*1024}{csf} lds")
        return o
    r = Rec()
    for j in range(4):
        for t in (1, 0):
            for e in range(4):
                r(f"v_mul_f32 v{c.accr(8+j,t)+e}, v{c.accr(8+j,0)+e}, v{vSt+8*t}")
    r("s_mov_b32 s52, 0x358637bd"); r("s_mov_b32 s53, 0x358637bd"); r("s_mov_b32 s54, 0x3fb8aa3b")
    for t in range(RT):
        for e in range(4): r(f"v_mul_f32 v{vN4+8*t+e}, s54, v{vN4+8*t+4+e}")
        r(f"v_mul_f32 v{vSt+8*t}, s54, v{vSt+8*t+4}")
    r(f"v_mov_b32 v{vOne}, 1.0"); r(f"v_mov_b32 v{vOne+1}, 1.0")
    for e in range(4): r(f"v_mov_b32 v{tmp+8+e}, 0x3f803f80")
    for e in range(4): r(f"v_mov_b32 v{tmp+12+e}, 0x358637bd")
    r(f"s_mul_i32 s55, s34, {REDW}"); r(f"s_add_u32 s55, s55, {RED}")
    r(f"v_add_u32 v{vRed}, s55, v{vX}")
    r(f"v_lshl_add_u32 v{vRedG}, v{t1}, 4, s55")
    r(f"v_add_u32 v{vB}, {RED}, v{vA}")
    r("s_lshl_b32 s56, s38, 13"); r(f"s_add_u32 s56, s56, {KVo}"); r("s_add_u32 s57, s56, 4096")
    r("s_lshl_b32 s59, s38, 7"); r(f"s_add_u32 s59, s59, {FL(lay, 0)}")
    r("s_lshl_b32 s58, s38, 8"); r(f"s_add_u32 s58, s58, {KVo + KVZ}")
    r("s_lshl_b32 s60, s42, 15"); r("s_lshl_b32 s61, s38, 11"); r("s_add_u32 s60, s60, s61"); r(f"s_add_u32 s60, s60, {PQ}")
    r("s_add_u32 s61, s60, 32768")
    r(f"v_min_u32 v{pt+2}, 1, v{L}"); r(f"v_lshlrev_b32 v{pt+2}, 26, v{pt+2}")
    r(f"v_mov_b32 v{pt+3}, 1"); r(f"v_mov_b32 v{t0}, 0")
    r("s_lshl_b32 s40, s34, 11"); r("s_add_u32 s40, s40, s56")
    r("s_lshl_b32 s41, s34, 10"); r(f"s_add_u32 s41, s41, {KVL}"); r(f"v_add_u32 v{vZw}, s41, v{vX}"); r(f"v_add_u32 v{pt+4}, {KVL}, v{vX}")
    r(f"v_lshlrev_b32 v{t1}, 4, v{t1}")
    r("s_lshl_b32 s18, s37, 7"); r(f"s_add_u32 s18, s18, {FL(lay, 1)}")
    if remap:
        tile_map_16x16(r, 3)
        r("s_lshl_b32 s42, s37, 3"); r("s_lshl_b32 s43, s34, 1"); r("s_add_u32 s42, s42, s43")
    r("s_lshl_b32 s20, s38, 17"); r(f"s_add_u32 s20, s20, {WF2}")
    r("s_lshl_b32 s21, s34, 11")
    r(f"v_add_u32 v{pt+5}, s21, v{vX}")
    r("s_lshl_b32 s22, s37, 7"); r(f"s_add_u32 s22, s22, {FL(lay, 1)}")
    r("s_lshl_b32 s23, s42, 15"); r(f"s_add_u32 s23, s23, {PQ}")
    r(f"v_add_u32 v{pt+6}, 65536, v{vX}"); r(f"v_add_u32 v{pt+7}, 131072, v{vX}")
    spread(c, 5, 1, r.l, per=1)
    c.extra(11, 1, ["s_cmp_eq_u32 s34, 0", "s_cselect_b32 s62, s58, 0x7ff00000", "s_cselect_b32 s63, s59, 0x7ff00000", "s_cselect_b32 s19, s18, 0x7ff00000"])
    if touch:
        for n in range(4):
            c.extra(-10, 3 + 7 * n, f"buffer_store_dwordx4 v[{tmp+8}:{tmp+11}], v{vX}, s[44:47], s{60 + n % 2} offen offset:{(n//2)*1024} sc1", cost=2, vm=("tch", n))
    def phi4k(r_, dst, rs, rsl, tb):
        o = []
        for h in range(2): o.append(f"v_pk_mul_f32 v[{tb+2*h}:{tb+2*h+1}], v[{r_+2*h}:{r_+2*h+1}], v[{rsl+2*h}:{rsl+2*h+1}]")
        for e in range(4): o.append(f"v_exp_f32_e64 v{tb+e}, v{tb+e} clamp")
        for h in range(2): o.append(f"v_pk_fma_f32 v[{r_+2*h}:{r_+2*h+1}], v[{r_+2*h}:{r_+2*h+1}], v[{rs+2*h}:{rs+2*h+1}], v[{vOne}:{vOne+1}]")
        for e in range(4): o.append(f"v_max_f32 v{r_+e}, v{r_+e}, v{tb+e}")
        for h in range(2): o.append(f"v_pk_add_f32 v[{r_+2*h}:{r_+2*h+1}], v[{r_+2*h}:{r_+2*h+1}], s[52:53]")
        for h in range(2): o.append(f"v_cvt_pk_bf16_f32 v{dst+h}, v{r_+2*h}, v{r_+2*h+1}")
        return o
    ev = []
    for j in range(4):
        for t in range(RT):
            ev += phi4k(c.accr(j, t), c.accr(j, 0) + 2 * t, vN4 + 8 * t + 4, vN4 + 8 * t, tmp + 4 * t)
    for j in range(4, 8):
        for t in range(RT):
            r_ = c.accr(j, t)
            for h in range(2): ev.append(f"v_pk_mul_f32 v[{r_+2*h}:{r_+2*h+1}], v[{r_+2*h}:{r_+2*h+1}], v[{vN4+8*t+4+2*h}:{vN4+8*t+5+2*h}]")
            for h in range(2): ev.append(f"v_cvt_pk_bf16_f32 v{c.accr(j,0)+2*t+h}, v{r_+2*h}, v{r_+2*h+1}")
    m = spread(c, -9, 16 + e0, ev[:128], per=per)
    m = max(m, c.M + 3)
    m = spread(c, -9, m, ev[128:], per=per) - c.M
    m += 1
    def X(pos, txt, **k2): c.extra(-8 + pos // c.M, pos % c.M, txt, **k2)
    for hl in range(2):
        for es in range(2):
            for ds in range(2):
                d = vKV + ((hl * 2 + es) * 2 + ds) * 4
                A_ = c.accr(hl * 2 + ds, 0); B_ = c.accr(4 + hl * 2 + es, 0)
                X(m, f"v_mfma_f32_16x16x32_bf16 v[{d}:{d+3}], v[{A_}:{A_+3}], v[{B_}:{B_+3}], 0", cost=-1); m += 1
        for ds in range(2):
            d = vKV + 32 + (hl * 2 + ds) * 4
            A_ = c.accr(hl * 2 + ds, 0)
            X(m, f"v_mfma_f32_16x16x32_bf16 v[{d}:{d+3}], v[{A_}:{A_+3}], v[{tmp+8}:{tmp+11}], 0", cost=-1); m += 1
    m -= 6
    for n in range(8):
        X(m, f"ds_write_b128 v{vRed}, v[{vKV+4*n}:{vKV+4*n+3}] offset:{n*1024}", lds=("rw", n), cost=2); m += 1
    m += 2
    for n in range(4):
        X(m, f"ds_write_b128 v{vRedG}, v[{vKV+32+4*n}:{vKV+32+4*n+3}] offset:{8192+n*64}", lds=("rw", 8 + n), cost=2); m += 1
    m += 4
    X(m, "s_barrier", needlds=[("rw", 11)]); m += 1
    for i in range(8):
        for w in range(2):
            X(m, f"ds_read2st64_b32 v[{vKV+4*i+2*w}:{vKV+4*i+2*w+1}], v{vB} offset0:{i*4+66*w} offset1:{i*4+66*w+33}", lds=("rr", i, w))
        m += 1
    for w in range(2):
        X(m, f"ds_read2st64_b32 v[{vKV+32+2*w}:{vKV+33+2*w}], v{vB} offset0:{32+66*w} offset1:{32+66*w+33}", lds=("rr", 8, w))
    m += 1
    for i in range(9):
        r_ = vKV + 4 * i
        X(m, [f"v_add_f32 v{r_}, v{r_}, v{r_+1}", f"v_add_f32 v{r_+2}, v{r_+2}, v{r_+3}", f"v_add_f32 v{r_}, v{r_}, v{r_+2}"], needlds=[("rr", i, 1)]); m += 1
        so = f"s{56 + i // 4} offen offset:{(i%4)*1024}" if i < 8 else "s62 offen"
        X(m, f"buffer_atomic_add_f32 v{r_}, v{vA}, s[44:47], {so}", vm=("at", i), cost=2); m += 1
    def phi4q(r_, dst, rs, rsl, tb):
        o = []
        for e in range(4): o.append(f"v_mul_f32 v{tb+e}, v{r_+e}, v{rsl}")
        for e in range(4): o.append(f"v_exp_f32_e64 v{tb+e}, v{tb+e} clamp")
        for e in range(4): o.append(f"v_fma_f32 v{r_+e}, v{r_+e}, v{rs}, 1.0")
        for e in range(4): o.append(f"v_max_f32 v{r_+e}, v{r_+e}, v{tb+e}")
        for e in range(4): o.append(f"v_add_f32 v{r_+e}, s52, v{r_+e}")
        for h in range(2): o.append(f"v_cvt_pk_bf16_f32 v{dst+h}, v{r_+2*h}, v{r_+2*h+1}")
        return o
    vQf = lambda hl, t: c.accr(8 + 2 * hl, t)
    qs = []
    for jq in range(4):
        l = []
        for t in (1, 0):
            l += phi4q(c.accr(8 + jq, t), vQf(jq // 2, t) + 2 * (jq % 2), vSt + 8 * t + 4, vSt + 8 * t, tmp + 4 * t)
        qs.append(l)
    mq = m
    for jq in range(3):
        mq = max(mq, 64 * (jq + 1) + 5)
        for x in qs[jq]:
            X(mq, x); mq += 1
    assert mq < 8 * c.M and sig > m
    if wb is not None:
        X(wb, ["s_cmp_lg_u32 s34, 0", f"s_cbranch_scc1 WB{nm}", "buffer_wbl2 sc1", f"WB{nm}:"])
    X(sig, ["s_waitcnt vmcnt(0)", "s_barrier"])
    X(sig + 1, f"buffer_atomic_add v{pt+3}, v{pt+2}, s[44:47], s63 offen sc1", vm=("sig",), cost=2)
    X(pollp, f"buffer_load_dword v{t2}, v{t0}, s[44:47], s59 offen sc1", vm=("poll",), cost=2)
    pos = sig + 3
    for n in range(2 * npre):
        i2 = n // 2
        if i2 >= 7: pos = max(pos, (3 + (i2 - 7) // 2) * c.M + c.mb + 2)
        X(pos, dma_txt(n), vm=("w2", n), cost=3); pos += dsp
    c.emit(hook, gate)
    cx.T(nm + ".qkv")
    a("s_waitcnt vmcnt(0)")
    a(f"v_readfirstlane_b32 s16, v{t2}")
    a("s_cmp_ge_u32 s16, 16")
    a(f"s_cbranch_scc1 PE{nm}1")
    poll(a, nm + "1", 59, 16, t0, t2)
    vG = vKV; vZ = vKV + 8
    a(f"buffer_load_dwordx4 v[{vG}:{vG+3}], v{vX}, s[44:47], s40 offen sc1")
    a(f"buffer_load_dwordx4 v[{vG+4}:{vG+7}], v{vX}, s[44:47], s40 offen offset:1024 sc1")
    for n in range(4):
        a(f"buffer_load_dwordx4 v[{vZ+4*n}:{vZ+4*n+3}], v{t1}, s[44:47], s58 offen offset:{n*64} sc1")
    for x in qs[3]: a(x)
    a("s_waitcnt vmcnt(4)")
    for p in range(4): a(f"v_cvt_pk_bf16_f32 v{vG+p}, v{vG+2*p}, v{vG+2*p+1}")
    a(f"ds_write_b128 v{vZw}, v[{vG}:{vG+3}]")
    a("s_waitcnt vmcnt(0)")
    for hl in range(2):
        for p in range(4): a(f"v_cvt_pk_bf16_f32 v{vZ+8*hl+p}, v{vZ+8*hl+2*p}, v{vZ+8*hl+2*p+1}")
    a("s_waitcnt lgkmcnt(0)")
    a("s_barrier")
    vF = vKV + 24
    for n in range(4): a(f"ds_read_b128 v[{vF+4*n}:{vF+4*n+3}], v{pt+4} offset:{n*1024}")
    vN = 16
    for hl in range(2):
        for t in range(RT):
            d = vN + (hl * 2 + t) * 12 + 8; p = vQf(hl, t)
            a(f"v_mfma_f32_16x16x32_bf16 v[{d}:{d+3}], v[{vZ+8*hl}:{vZ+8*hl+3}], v[{p}:{p+3}], v[{tmp+12}:{tmp+15}]")
    for hl in range(2):
        for es in range(2):
            a(f"s_waitcnt lgkmcnt({3 - (hl*2+es)})")
            for t in range(RT):
                d = vN + (hl * 2 + t) * 12 + 4 * es; p = vQf(hl, t); f = vF + 4 * (hl * 2 + es)
                a(f"v_mfma_f32_16x16x32_bf16 v[{d}:{d+3}], v[{f}:{f+3}], v[{p}:{p+3}], 0")
    for n in range(4): a(f"v_rcp_f32 v{vN+12*n+8}, v{vN+12*n+8}")
    for hl in range(2):
        for t in range(RT):
            n = vN + (hl * 2 + t) * 12; d = 4 * (hl * 2 + t)
            for p in range(4): a(pk_bc(n + 2 * p, n + 2 * p, n + 8))
            for p in range(4): a(f"v_cvt_pk_bf16_f32 v{d+p}, v{n+2*p}, v{n+2*p+1}")
            a(f"buffer_store_dwordx4 v[{d}:{d+3}], v{vX}, s[44:47], s{60+t} offen offset:{hl*1024} sc1")
    vRow, vStat, vS2, vOut, ones = vN4, vN4 + 1, vN4 + 2, vN4 + 3, vN4 + 4
    vXo = vKV; tm2 = vKV + 16
    epi_setup2(a, L, vN4 + 6, vN4 + 7, vRow, vStat, vOut, ones, 0, STB, False)
    a("s_waitcnt vmcnt(0)")
    a("s_barrier")
    a(f"buffer_atomic_add v{pt+3}, v{pt+2}, s[44:47], s19 offen sc1")
    for n in range(2 * npre, 32):
        for x in dma_txt(n): a(x)
    for t in range(RT):
        for b in range(2):
            a(f"buffer_load_dwordx4 v[{vXo+8*t+4*b}:{vXo+8*t+4*b+3}], v{vX}, s[44:47], s{48+t} offen offset:{b*1024}{SC}")
    lb = lambda off: f"v{(vX, pt+6, pt+7)[off // 65536]} offset:{off % 65536}"
    for j in range(8): a(f"ds_read_b128 v[{32+4*j}:{35+4*j}], {lb(w2addr(0) + j * 1024)}")
    poll1(a, nm + "2", 22, 16, t0, t2)
    cx.T(nm + ".o")
    q = Seq(a)
    def ldx(i):
        o = []
        for t in range(RT):
            for s_ in range(2):
                pre = [("s_add_u32 s23, s23, 2048", {})] if (i and t == 0 and s_ == 0) else []
                o.append(pre + [(f"buffer_load_dwordx4 {c.xreg(i,s_,t)}, v{vX+t}, s[44:47], s23 offen offset:{s_*1024} sc1", dict(vm=("x", i, t, s_)))])
        return o
    def rdw(i):
        o = []
        for j in range(4):
            for s_ in range(2):
                r_ = 32 + (i % 2) * 32 + j * 8 + s_ * 4
                o.append([(f"ds_read_b128 v[{r_}:{r_+3}], {lb(w2addr(i) + (j * 2 + s_) * 1024)}", dict(lds=("w", i, j, s_)))])
        return o
    def run(groups):
        for gset in groups:
            for txt, k2 in gset: q(txt, **k2)
    for i in range(xl): run(ldx(i))
    if early:
        for j in range(4):
            for t in range(RT):
                xo = vXo + 8 * t + 4 * (j // 2) + 2 * (j % 2); ac = (j * 2 + t) * 4
                for p_ in range(2):
                    a(f"v_lshlrev_b32 v{ac+2*p_}, 16, v{xo+p_}"); a(f"v_and_b32 v{ac+2*p_+1}, 0xffff0000, v{xo+p_}")
    a("s_waitcnt lgkmcnt(0)")
    for j in range(4):
        for s_ in range(2): q.ld[("w", 0, j, s_)] = -1
    acc2 = lambda j, t: (j * 2 + t) * 4
    for i in range(16):
        M_ = []
        for j in range(4):
            for n_, t in enumerate((0, 1) if j % 2 == 0 else (1, 0)):
                for s_ in ((0, 1) if n_ == 0 else (1, 0)):
                    w_ = 32 + (i % 2) * 32 + j * 8 + s_ * 4; r_ = acc2(j, t)
                    first = (i == 0 and s_ == (0 if n_ == 0 else 1)) and not early
                    M_.append([(f"v_mfma_f32_16x16x32_bf16 v[{r_}:{r_+3}], v[{w_}:{w_+3}], {c.xreg(i,s_,t)}, {'0' if first else f'v[{r_}:{r_+3}]'}",
                                dict(needvm=[("x", i, t, 0), ("x", i, t, 1)], needlds=[("w", i, j, 0), ("w", i, j, 1)]))])
        if i + 1 == npre: a("s_barrier")
        fill = interleave([rdw(i + 1), ldx(i + xl) if i + xl < 16 else []]) if i + 1 < 16 else []
        run(merge(M_, fill))
        if i == 13 and nxt:
            r = Rec(); cpf(r, nxt, L, vN4 + 6, vN4 + 7)
            for x in r.l:
                if x.startswith("global_load"): q(x, vm=("cpf",))
                else: a(x)
    r = Rec()
    resid_epilogue(r, acc2, RT, lambda t, b: vXo + 8 * t + 4 * b, None, tm2, vX, vRow, 44,
                   lambda t: 48 + t, 52, vStat, False, ones=ones, stf=(SC if sigout else ""), pre=early)
    if pre:
        po = pre_ops("u", pre, L)
        for x in po[0]: a(x)
        a("s_barrier")
        weave(a, r.l, po[1:], every=max(1, len(r.l) // len(po)))
    else:
        a("s_nop 7")
        for x in r.l: a(x)
    if sigout:
        a("s_lshr_b32 s19, s37, 1"); a("s_lshl_b32 s19, s19, 7"); a(f"s_add_u32 s19, s19, {FL(lay, 2)}")
        signal(a, 19, L, t0, t1)
    cx.T(nm + ".end")
    return LDS

def phase_up(cx, nm, lay, gated, sigout, nxt, R=4, wpre=1, wdone=0, pre=0, pb=20, psp=6, stf=None, rep=None, touch=None, csf='', **kw):
    a = cx.a
    RT = 4; NT = 14
    STAGE = 28672
    AUX = 4 * STAGE
    HSC = AUX + 1024
    LDS = HSC + (32768 if rep else 0)
    vRb = 236
    if stf is None: stf = SC if sigout else ""
    vX = 224; vD = 228; vWr = 230
    L = 232; t0, t1, t2 = 233, 234, 235
    vS = 236; vC = 237; vCw = 238
    vSum = 240
    vP = 128
    stl = lambda u, i: (u * 4 + i) * 16 + 4
    K = dict(TM=2); K.update(kw)
    if rep and rep[0] >= 0: K['m0_all'] = True
    c = Core(a, nm, RT, NT, 16, R, vWr, vX=vX, vD=vD, init_acc=True, xflag=SC, wpre=wpre, wdone=wdone, **K)
    lane_id(a, L)
    a("s_and_b32 s35, s2, 7"); a("s_lshr_b32 s36, s2, 3")
    a("s_lshr_b32 s37, s35, 2"); a("s_lshl_b32 s37, s37, 2"); a("s_lshr_b32 s38, s36, 3"); a("s_add_u32 s37, s37, s38")
    a("s_and_b32 s38, s35, 3"); a("s_lshl_b32 s38, s38, 3"); a("s_and_b32 s39, s36, 7"); a("s_add_u32 s38, s38, s39")
    a("s_and_b32 s53, s38, 1")
    a("s_lshl_b32 s42, s37, 4"); a("s_lshl_b32 s43, s34, 2"); a("s_add_u32 s42, s42, s43")
    a(f"v_lshrrev_b32 v{t0}, 5, v{L}")
    a("s_lshl_b32 s40, s34, 1"); a("s_add_u32 s40, s40, s53")
    a(f"v_add_u32 v{t0}, s40, v{t0}")
    a(f"v_subrev_u32 v{t2}, 7, v{t0}")
    a(f"v_min_u32 v{t0}, v{t0}, v{t2}")
    a(f"v_lshlrev_b32 v{t0}, 6, v{t0}")
    a(f"v_and_b32 v{t2}, 15, v{L}")
    a(f"v_lshl_add_u32 v{t0}, v{t2}, 2, v{t0}")
    a(f"v_bfe_u32 v{t1}, v{L}, 4, 1")
    a(f"v_mul_u32_u24 v{t1}, 14336, v{t1}")
    a(f"v_add_u32 v{vC}, v{t0}, v{t1}")
    a(f"s_mul_i32 s49, s38, 448"); a(f"s_add_u32 s49, s49, {CSP}")
    a(f"v_lshrrev_b32 v{t1}, 4, v{L}")
    a(f"s_lshl_b32 s48, s42, 11"); a(f"s_add_u32 s48, s48, {STB}"); a("s_add_u32 s41, s48, 4096")
    c.setup_addr(L, 34, 32768)
    a(f"s_lshl_b32 s{c.sXoff}, s42, 15")
    a(f"s_mul_i32 s{c.sWoff}, s38, {16*STAGE}"); a(f"s_add_u32 s{c.sWoff}, s{c.sWoff}, {WF3 + max(wdone-1,0)*STAGE}")
    cx.ready()
    for i in range(16):
        a(f"buffer_load_dword v{vP+i}, v{vC}, s[44:47], s49 offen{csf}")
        if i < 15: a(f"s_add_u32 s49, s49, {7168*4}")
    def ldstats():
        for u in range(2):
            for i in range(4):
                r = stl(u, i)
                a(f"buffer_load_dwordx4 v[{r}:{r+3}], v{vX}, s[44:47], s{48 if u == 0 else 41} offen offset:{i*1024}{SC}")
    def cstab(nafter):
        a("s_lshl_b32 s40, s34, 8"); a(f"s_add_u32 s40, s40, {AUX}")
        a(f"v_lshl_add_u32 v{vCw}, v{L}, 2, s40")
        a(f"v_lshlrev_b32 v{vC}, 4, v{t1}"); a(f"v_add_u32 v{vC}, {AUX}, v{vC}")
        c.setup_rd()
        a(f"s_mul_i32 s50, s42, {112*1024}"); a(f"s_add_u32 s50, s50, {HF}")
        a(f"s_mul_i32 s55, s38, 7")
        a("s_add_u32 s51, s55, s53"); a("s_lshr_b32 s51, s51, 1"); a("s_lshl_b32 s51, s51, 10"); a("s_add_u32 s51, s51, s50")
        a("s_lshr_b32 s52, s55, 1"); a("s_lshl_b32 s52, s52, 10"); a("s_add_u32 s52, s52, s50")
        a("s_cmp_eq_u32 s53, 0"); a("s_cselect_b32 s55, 3072, 8"); a("s_add_u32 s52, s52, s55")
        for t in range(1, RT):
            a(f"s_add_u32 s{54+2*t}, s51, {t*112*1024}"); a(f"s_add_u32 s{55+2*t}, s52, {t*112*1024}")
        a(f"s_waitcnt vmcnt({min(nafter, 63)})")
        for st_ in (8, 4, 2, 1):
            for i in range(st_): a(f"v_add_f32 v{vP+i}, v{vP+i}, v{vP+i+st_}")
        a(f"ds_write_b32 v{vCw}, v{vP}")
        a("s_waitcnt lgkmcnt(0)")
        a("s_barrier")
        for j in range(NT):
            r = c.accr(j, 0)
            a(f"ds_read_b128 v[{r}:{r+3}], v{vC} offset:{j*64}")
    if not gated: ldstats()
    def gate():
        if gated:
            cstab((wpre - wdone) * c.ND)
            a("s_lshl_b32 s19, s37, 7"); a(f"s_add_u32 s19, s19, {FL(lay, 2)}")
            poll1(a, nm + "g", 19, 32, t0, t2)
            cx.T(nm + ".gate")
            ldstats()
    def hook(nvm):
        nx = nvm - (wpre - wdone) * c.ND
        if not gated: cstab(nvm + 8)
        a(f"s_waitcnt vmcnt({nx if gated else nvm})")
        ls = []
        for t in range(RT):
            u, k = t // 2, 2 * (t % 2)
            r = Rec(); b = vSum + 4 * t
            r(f"v_add_f32 v{b}, v{stl(u,0)+k}, v{stl(u,1)+k}"); r(f"v_add_f32 v{b+1}, v{stl(u,2)+k}, v{stl(u,3)+k}"); r(f"v_add_f32 v{b}, v{b}, v{b+1}")
            xlane_sum4(r, b, b + 1)
            r(f"v_mul_f32 v{b}, 0xba800000, v{b}")
            bf16_round(r, b)
            ls.append(r.l)
        for x in interleave(ls):
            if not x.startswith("s_nop"): a(x)
        a("s_waitcnt lgkmcnt(0)")
        for j in range(NT):
            for t in (3, 2, 1, 0):
                for h in range(2):
                    a(pk_bc(c.accr(j, t) + 2 * h, c.accr(j, 0) + 2 * h, vSum + 4 * t))
        if cx.st or cx.jit: cx.T(nm + ".pro"); a("s_waitcnt lgkmcnt(0)")
    if rep:
        r = Rec()
        plane_dma_lane(r, L, 2048, vSum + 1, t0, t1, t2)
        plane_read_bases(r, L, vRb, t0, t1, t2)
        r("s_lshl_b32 s21, s34, 13"); r(f"s_add_u32 s21, s21, {HSC}")
        for aa in range(4): r(f"v_add_u32 v{vRb+aa}, s21, v{vRb+aa}")
        r("s_lshl_b32 s22, s2, 2"); r("s_add_u32 s22, s22, s34")
        r("s_lshr_b32 s23, s22, 4"); r("s_and_b32 s22, s22, 15")
        r("s_mov_b32 s4, s28"); r("s_mov_b32 s5, s29"); r(f"s_mov_b32 s6, {3584*2048}"); r("s_mov_b32 s7, 0x20000")
        r("s_lshl_b32 s20, s23, 17"); r("s_lshl_b32 s8, s22, 7"); r("s_add_u32 s20, s20, s8")
        r(f"s_mul_i32 s8, s22, {56*8192}"); r("s_lshl_b32 s9, s23, 13"); r("s_add_u32 s8, s8, s9"); r(f"s_add_u32 s8, s8, {WF4}")
        r("s_and_b32 s13, s2, 3"); r("s_lshl_b32 s13, s13, 7"); r(f"s_add_u32 s13, s13, {FL(0, 5)}")
        r(f"v_min_u32 v{vSum+2}, 1, v{L}"); r(f"v_lshlrev_b32 v{vSum+2}, 26, v{vSum+2}"); r(f"v_mov_b32 v{vSum+3}, 1")
        m = spread(c, 1, 2, r.l, per=1)
        c.extra(1, m, ["s_cmp_ge_u32 s23, 56", "s_cselect_b32 s8, 0x7ff00000, s8", "s_add_u32 s9, s8, 4096"])
        c.extra(1, m + 1, ["s_cmp_eq_u32 s34, 0", "s_cselect_b32 s13, s13, 0x7ff00000"])
        k0_, m0_, k1_, m1_ = rep
        aR = c.agpr_end
        m = m0_
        for d in range(8):
            c.extra(k0_ + m // c.M, m % c.M, [f"s_add_u32 m0, s21, {d*1024}", (f"s_add_u32 s20, s20, {8*2048}" if d else "s_nop 0"),
                             f"buffer_load_dwordx4 v{vSum+1}, s[4:7], s20 offen nt lds"], cost=3, vm=("rd", d))
            m += 2
        m = m1_
        for j in range(4):
            for s_ in range(2):
                for qq in range(2):
                    r_ = aR + j * 8 + s_ * 4 + qq * 2
                    c.extra(k1_, m, f"ds_read_b64_tr_b16 a[{r_}:{r_+1}], v{vRb+j} offset:{(32*s_+16*qq)*128}", lds=("rr", j, s_, qq), needvm=[("rd", 7)]); m += 1
        m += 2
        for j in range(4):
            for s_ in range(2):
                r_ = aR + j * 8 + s_ * 4
                c.extra(k1_, m, f"buffer_store_dwordx4 a[{r_}:{r_+3}], v{vX}, s[44:47], s{8 + j//2} offen offset:{((j%2)*2+s_)*1024} sc1", cost=2, vm=("rs", j, s_), needlds=[("rr", j, s_, 0), ("rr", j, s_, 1)]); m += 3
        c.extra_at(4, ["s_waitcnt vmcnt(0)", "s_barrier"])
        c.extra_at(5, f"buffer_atomic_add v{vSum+3}, v{vSum+2}, s[44:47], s13 offen sc1", cost=2, vm=("rsig",))
    sP = lambda t: 51 if t == 0 else 54 + 2 * t
    sS = lambda t: 52 if t == 0 else 55 + 2 * t
    def piece(p, t):
        r = Rec()
        js = (2 * p, 2 * p + 1) if p < 3 else (6,)
        dst = c.accr(2 * js[0], t)
        for jj in js:
            rg = c.accr(2 * jj, t); ru = c.accr(2 * jj + 1, t)
            for e in range(4): r(f"v_mul_f32 v{ru+e}, v{rg+e}, v{ru+e}")
        for n, jj in enumerate(js):
            ru = c.accr(2 * jj + 1, t)
            for h in range(2): r(f"v_cvt_pk_bf16_f32 v{dst+2*n+h}, v{ru+2*h}, v{ru+2*h+1}")
        if p < 3: s_ = f"buffer_store_dwordx4 v[{dst}:{dst+3}], v{vX}, s[44:47], s{sP(t)} offen offset:{p*1024}{stf}"
        else: s_ = f"buffer_store_dwordx2 v[{dst}:{dst+1}], v{vX}, s[44:47], s{sS(t)} offen{stf}"
        return r.l, s_
    if touch is not None:
        m = touch[1]
        for p in range(4):
            for t in range(RT):
                s_ = piece(p, t)[1]
                import re
                s_ = re.sub(r"v\[\d+:\d+\]", f"v[{vX}:{vX+3}]" if p < 3 else f"v[{vX}:{vX+1}]", s_, count=1)
                c.extra(touch[0] + m // c.M, m % c.M, s_, cost=2, vm=("tch", p, t)); m += touch[2]
    if nxt:
        r = Rec(); cpf(r, nxt, L, t0, t1)
        m = spread(c, -3, 60, r.l[:6], per=1)
        c.extra(-3, m, r.l[6:], vm=("cpf",))
    if pre:
        assert pre <= 7 and c.TM == 2
        po = pre_ops("d", pre, L)
        spread(c, -2, 2, po[0], per=1)
        c.extra_at(pb, "s_barrier")
        for n, g_ in enumerate(po[1:]): c.extra_at(pb + 2 + psp * n, g_, cost=3, vm=("pre", n))
    after = []
    tot = c.TM * c.M
    for p in range(3):
        order = c.fin_order(4 * p + 3)
        m = c.fin_slot(4 * p + 3, order[-1]) + 3
        room = min(tot - m, 32 * c.TM)
        for t in order:
            ins, s_ = piece(p, t)
            pp = 1 if room >= 56 else 2
            grp = [ins[i:i+pp] for i in range(0, len(ins), pp)]
            if m + len(grp) + 1 <= tot:
                for g_ in grp:
                    c.extra_at(m, g_); m += 1
                c.extra_at(m, s_, cost=2, vm=("st", p, t)); m += 1
            else:
                after += ins + [s_]
    c.emit(hook, gate)
    for x in after: a(x)
    if len(after) < 8: a("s_nop 7")
    for t in c.fin_order(13):
        ins, s_ = piece(3, t)
        for x in ins: a(x)
        a(s_)
    cx.T(nm + ".main")
    if sigout:
        a("s_lshl_b32 s19, s37, 7"); a(f"s_add_u32 s19, s19, {FL(lay, 3)}")
        signal(a, 19, L, t0, t1)
    cx.T(nm + ".end")
    return LDS

def phase_down(cx, nm, lay, gated, sigout, nxt, final, R=2, UN=8, wpre=1, wdone=0, pre=0, wwait=False, touch=False, early=False, **kw):
    a = cx.a
    RT = 2; NT = 4; KS = 56
    if wwait: kw = dict(kw, wflag=SC)
    vX = 32; vD = 34; ones = 35; vWr = 36; L = 40; t0, t1, t2 = 41, 42, 43
    vRow, vStat, vS, vOut = 44, 45, 46, 47
    vSt = 48; vXo = 64; tmp = 80
    K = dict(gh=1, cap=3, rdmargin=2, npro=4, xlead=3, XUN=4); K.update(kw)
    c = Core(a, nm, RT, NT, KS, R, vWr, vX=vX, vD=vD, UN=UN, xflag=SC, wpre=wpre, wdone=wdone, **K)
    lane_id(a, L)
    tile_map_16x16(a, 3)
    rbB = KS * 2048
    c.setup_addr(L, 34, rbB)
    a("s_lshl_b32 s42, s37, 3"); a("s_lshl_b32 s43, s34, 1"); a("s_add_u32 s42, s42, s43")
    a(f"s_mul_i32 s{c.sXoff}, s42, {rbB}"); a(f"s_add_u32 s{c.sXoff}, s{c.sXoff}, {HF}")
    a(f"s_mul_i32 s{c.sWoff}, s38, {KS*8192}"); a(f"s_add_u32 s{c.sWoff}, s{c.sWoff}, {WF4 + max(wdone-1,0)*8192}")
    cx.ready()
    if wwait:
        a("s_lshr_b32 s19, s38, 2"); a("s_lshl_b32 s19, s19, 7"); a(f"s_add_u32 s19, s19, {FL(0, 5)}")
        poll(a, nm + "w", 19, 64, t0, t1)
    def hook0():
        c.setup_rd()
        if final: srd(a, 56, "s30", "s31", 2048 * 2048)
        epi_setup2(a, L, t0, t1, vRow, vStat, vOut, ones, STB, STA, final)
    def gate():
        if gated:
            hook0()
            a("s_lshr_b32 s19, s37, 1"); a("s_lshl_b32 s19, s19, 7"); a(f"s_add_u32 s19, s19, {FL(lay, 3)}")
            poll1(a, nm + "g", 19, 32, t0, t1)
            if cx.st or cx.jit: cx.T(nm + ".gate"); a("s_waitcnt lgkmcnt(0)")
    def hook(nvm):
        if not gated: hook0()
    if touch:
        for n in range(4):
            c.extra(4 + n, 5, f"buffer_store_dwordx4 v[{vRow}:{vRow+3}], v{vOut}, s[56:59], s{50 + n % 2} offen offset:{(n//2)*64} sc1", cost=2, vm=("tch", n))
    kb = 1 if early else -3
    n = 0
    for i in range(4):
        c.extra(kb + n // 2, 3 + 8 * (n % 2), f"buffer_load_dwordx4 v[{vSt+4*i}:{vSt+4*i+3}], v{vX}, s[44:47], s53 offen offset:{i*1024}{SC}", cost=2, vm=("stt", i)); n += 1
    n = 0
    for t in range(RT):
        for b in range(2):
            c.extra(kb + n // 2, 6 + 8 * (n % 2), f"buffer_load_dwordx4 v[{vXo+8*t+4*b}:{vXo+8*t+4*b+3}], v{vX}, s[44:47], s{48+t} offen offset:{b*1024}{SC}", cost=2, vm=("xo", t, b)); n += 1
    if early:
        r = Rec()
        ls = row_stats2(r, vSt, want_mean=False, want_inv=True)
        for t in range(RT): ls[t].append(f"v_mul_f32 v{vSt+8*t+4}, v{vSt+8*t+4}, v{vSt+8*t+4}")
        for x in interleave(ls): r(x)
        spread(c, 4, 8, r.l, per=3, needvm=[("stt", 3), ("xo", 1, 1)])
        assert 8 + (len(r.l) + 2) // 3 <= 2 * c.M + 6
        for j in range(NT):
            for t in range(RT):
                xo = vXo + 8 * t + 4 * (j // 2) + 2 * (j % 2); ac = c.accr(j, t); tb = tmp + 4 * (t % 2)
                l = [f"v_lshlrev_b32 v{tb}, 16, v{xo}", f"v_and_b32 v{tb+1}, 0xffff0000, v{xo}",
                     f"v_lshlrev_b32 v{tb+2}, 16, v{xo+1}", f"v_and_b32 v{tb+3}, 0xffff0000, v{xo+1}"]
                l2 = [f"v_fmac_f32 v{ac+e}, v{tb+e}, v{vSt+8*t+2}" for e in range(4)]
                m = c.slot_of(j, t) + 7
                c.extra(6 + m // c.M, m % c.M, l)
                c.extra(6 + (m + 1) // c.M, (m + 1) % c.M, l2)
    if nxt:
        r = Rec(); cpf(r, nxt, L, t0, t1)
        c.extra(-5, 2, r.l, vm=("cpf",))
    c.emit(hook, gate)
    cx.T(nm + ".main")
    r = Rec()
    if early: r("s_nop 7")
    else:
        a("s_waitcnt vmcnt(0)")
        ls = row_stats2(r, vSt, want_mean=False)
        for t in range(RT): ls[t].append(f"v_mul_f32 v{vSt+8*t+4}, v{vSt+8*t+4}, v{vSt+8*t+4}")
        for x in interleave(ls): r(x)
    resid_epilogue(r, c.accr, RT, lambda t, b: vXo + 8 * t + 4 * b, lambda t: vSt + 8 * t + 4, tmp, vX, vRow, 44,
                   lambda t: 48 + t, 52, vStat, final, srd_out=56, s_out=lambda t: 50 + t, vOut=vOut, ones=ones, stf=(SC if sigout else ""), pre=early)
    if pre:
        po = pre_ops("a", pre, L)
        for x in po[0]: a(x)
        a("s_barrier")
        weave(a, r.l, po[1:], every=max(1, len(r.l) // len(po)))
    else:
        for x in r.l: a(x)
    if sigout:
        a("s_lshl_b32 s19, s37, 7"); a(f"s_add_u32 s19, s19, {FL(lay, 4)}")
        signal(a, 19, L, t0, t1)
    cx.T(nm + ".end")
    return UN * c.stage_bytes

def phase_prep(cx, nm, mode=0, wb=False):
    a = cx.a
    L = 1; vD0 = 3; vD1 = 4; vRb = 8; vX = 7; vOne = 12; vL4 = 2
    lane_id(a, L)
    a("s_cmp_lt_u32 s2, 192")
    a("s_cselect_b32 s25, 6144, 0"); a("s_cselect_b32 s26, 0, 2048"); a("s_add_u32 s25, s25, s26")
    plane_dma_lane(a, L, "s25", vD0, 5, 6, 9)
    plane_dma_lane(a, L, 7168, vD1, 5, 6, 9)
    a("s_mul_i32 s36, s2, 1366"); a("s_lshr_b32 s36, s36, 16")
    a("s_mul_i32 s22, s36, 48"); a("s_sub_u32 s22, s2, s22")
    a("s_sub_u32 s26, s2, 192"); a("s_lshr_b32 s26, s26, 4"); a("s_and_b32 s27, s2, 15")
    a("s_cmp_lt_u32 s2, 192")
    a("s_cselect_b32 s36, s36, s26"); a("s_cselect_b32 s22, s22, s27")
    a("s_lshl_b32 s36, s36, 2"); a("s_add_u32 s36, s36, s34")
    a("s_lshl_b32 s23, s22, 7"); a("s_lshl_b32 s24, s25, 6"); a("s_mul_i32 s24, s24, s36"); a("s_add_u32 s23, s23, s24")
    a("s_lshl_b32 s24, s25, 3")
    a("s_mul_i32 s35, s34, 24576")
    cx.ready()
    a("s_cmp_lt_u32 s2, 192")
    a("s_cselect_b32 s48, s6, s8"); a("s_cselect_b32 s49, s7, s9"); a("s_lshl_b32 s50, s25, 10"); a("s_mov_b32 s51, 0x20000")
    q = Seq(a)
    for d in range(8):
        a(f"s_add_u32 m0, s35, {d*1024}")
        if d: a("s_add_u32 s23, s23, s24")
        else: a("s_nop 0")
        q(f"buffer_load_dwordx4 v{vD0}, s[48:51], s23 offen nt lds", vm=("b", 0, d))
    a("s_lshl_b32 s37, s2, 2"); a("s_add_u32 s37, s37, s34"); a("s_lshr_b32 s38, s37, 3"); a("s_and_b32 s39, s37, 7")
    a(f"v_and_b32 v5, 15, v{L}"); a(f"v_lshrrev_b32 v6, 4, v{L}")
    a("v_lshlrev_b32 v9, 11, v5"); a("v_and_b32 v10, 1, v6"); a("v_lshl_add_u32 v9, v10, 5, v9"); a("v_lshrrev_b32 v10, 1, v6"); a("v_lshl_add_u32 v9, v10, 4, v9")
    a("s_lshl_b32 s40, s38, 15"); a("s_lshl_b32 s41, s39, 8"); a("s_add_u32 s41, s41, s40")
    srd(a, 52, "s4", "s5", 2048 * 2048)
    for b in range(4):
        q(f"buffer_load_dwordx4 v[{64+4*b}:{67+4*b}], v9, s[52:55], s41 offen offset:{b*64} nt", vm=("x", b))
    a("v_and_b32 v10, 1, v6"); a("v_lshlrev_b32 v11, 4, v5"); a("v_lshl_add_u32 v11, v10, 8, v11")
    a("v_cmp_eq_u32 s[62:63], 0, v10")
    a("s_lshr_b32 s42, s2, 4")
    a("s_mov_b32 s58, 0"); a("s_mov_b32 s59, 0x20000")
    def gsetup(e, db):
        a("s_and_b32 s43, s2, 15"); a("s_mul_i32 s43, s43, 7"); a("s_add_u32 s43, s43, s34")
        if e: a("s_add_u32 s43, s43, 4")
        a("s_cmp_ge_u32 s43, 56")
        a("s_cselect_b32 s56, s14, s12"); a("s_cselect_b32 s57, s15, s13")
        a("s_cselect_b32 s26, 56, 0"); a("s_cselect_b32 s27, 2048, 0")
        a("s_sub_u32 s26, s43, s26")
        a("s_lshl_b32 s23, s26, 7"); a(f"s_mul_i32 s24, s42, {64*7168}"); a("s_add_u32 s23, s23, s24")
        a("s_mul_i32 s24, s42, 28672"); a("s_add_u32 s27, s27, s24"); a(f"s_add_u32 s27, s27, {WF3}")
        a(f"s_mov_b32 s58, {1024*7168}")
        if e:
            a("s_cmp_eq_u32 s34, 3"); a("s_cselect_b32 s58, 0, s58"); a("s_cselect_b32 s27, 0x7ff00000, s27")
        for d in range(8):
            a(f"s_add_u32 m0, s35, {(1+e)*8192 + d*1024}")
            if d: a(f"s_add_u32 s23, s23, {8*7168}")
            else: a("s_nop 0")
            q(f"buffer_load_dwordx4 v{vD1}, s[56:59], s23 offen nt lds", vm=("b", 1 + e, d))
        for j in range(4):
            a(f"s_lshl_b32 s16, s26, 2"); a(f"s_add_u32 s16, s16, {j}")
            a("s_mul_i32 s17, s16, 9363"); a("s_lshr_b32 s17, s17, 16")
            a("s_mul_i32 s18, s17, 7"); a("s_sub_u32 s18, s16, s18")
            a("s_and_b32 s19, s17, 1"); a("s_mul_i32 s19, s19, 6"); a("s_add_u32 s18, s18, s19")
            a("s_sub_u32 s19, s18, 7"); a("s_min_u32 s18, s18, s19")
            a("s_lshl_b32 s18, s18, 12")
            a(f"s_mul_i32 s17, s17, {16*28672}")
            a(f"s_add_u32 s{db+j}, s17, s18"); a(f"s_add_u32 s{db+j}, s{db+j}, s27")
        a(f"s_mul_i32 s{db+4}, s42, {7168*4}"); a("s_lshl_b32 s16, s43, 8"); a(f"s_add_u32 s{db+4}, s{db+4}, s16"); a(f"s_add_u32 s{db+4}, s{db+4}, {CSP}")
        if e:
            a("s_cmp_eq_u32 s34, 3"); a(f"s_cselect_b32 s{db+4}, 0x7ff00000, s{db+4}")
    a("s_and_b32 s16, s22, 15"); a(f"s_mul_i32 s17, s16, {24*16384}"); a("s_lshr_b32 s18, s22, 4")
    a("s_lshl_b32 s19, s36, 14"); a("s_sub_u32 s26, s18, 1"); a("s_lshl_b32 s26, s26, 13"); a("s_add_u32 s19, s19, s26")
    a("s_lshl_b32 s26, s36, 11"); a(f"s_add_u32 s26, s26, {16*16384}")
    a("s_cmp_eq_u32 s18, 0"); a("s_cselect_b32 s19, s26, s19"); a("s_cselect_b32 s27, 16, 1")
    a("s_add_u32 s17, s17, s19"); a(f"s_add_u32 s17, s17, {WF1}")
    a("s_lshl_b32 s19, s16, 17"); a("s_lshl_b32 s26, s36, 13"); a("s_add_u32 s19, s19, s26"); a(f"s_add_u32 s19, s19, {WF2}")
    a("s_cmp_lt_u32 s2, 192"); a("s_cselect_b32 s84, s17, s19"); a("s_cselect_b32 s27, s27, 1"); a("s_lshl_b32 s27, s27, 11")
    for j in range(1, 4): a(f"s_add_u32 s{84+j}, s{83+j}, s27")
    r = Rec(); cpf(r, "PH_a0", L, 24, 25, s0=16)
    for x in r.l:
        if x.startswith("global_load"): q(x, vm="cpf")
        else: a(x)
    gsetup(0, 89)
    plane_read_bases(a, L, vRb + 8, 5, 6, 9)
    for aa in range(4): a(f"v_add_u32 v{16+aa}, s35, v{16+aa}")
    a(f"v_lshlrev_b32 v{vX}, 4, v{L}"); a(f"v_lshlrev_b32 v{vL4}, 2, v{L}")
    for e in range(4): a(f"v_mov_b32 v{vOne+e}, 0x3f803f80")
    a(f"v_cmp_gt_u32 s[10:11], 16, v{L}"); a(f"v_cmp_gt_u32 s[60:61], 32, v{L}"); a(f"v_cmp_gt_u32 vcc, 48, v{L}")
    def block(b, db, rb):
        q.wait(needvm=[("b", b, 7)])
        for j in range(4):
            for s_ in range(2):
                for qq in range(2):
                    r = rb + j * 8 + s_ * 4 + qq * 2
                    q(f"ds_read_b64_tr_b16 v[{r}:{r+1}], v{16+j} offset:{b*8192 + (32*s_+16*qq)*128}", lds=("r", b, j, s_, qq))
        for j in range(4):
            for s_ in range(2):
                r = rb + j * 8 + s_ * 4; d = rb + 32 + 4 * j
                q(f"buffer_store_dwordx4 v[{r}:{r+3}], v{vX}, s[44:47], s{db+j} offen offset:{s_*1024}{'' if (wb and b > 0) else ' sc1'}", vm=("s", b, j, s_), needlds=[("r", b, j, s_, 1)])
                a(f"v_mfma_f32_16x16x32_bf16 v[{d}:{d+3}], v[{vOne}:{vOne+3}], v[{r}:{r+3}], {'0' if s_ == 0 else f'v[{d}:{d+3}]'}")
        a("s_nop 7")
        d = rb + 32
        a(f"v_cndmask_b32 v{d+8}, v{d+12}, v{d+8}, vcc")
        a(f"v_cndmask_b32 v{d+4}, v{d+8}, v{d+4}, s[60:61]")
        a(f"v_cndmask_b32 v{d}, v{d+4}, v{d}, s[10:11]")
        return d
    for e in range(4): a(f"v_mov_b32 v{20+e}, 0")
    a(f"s_mul_i32 s16, s37, {ZSZ//1024}"); a(f"s_add_u32 s16, s16, {KV}")
    a(f"s_mov_b32 exec_lo, {(1 << (ZSZ//16384)) - 1}"); a("s_mov_b32 exec_hi, 0")
    q(f"buffer_store_dwordx4 v[20:23], v{vX}, s[44:47], s16 offen sc1", vm="z")
    a("s_mov_b64 exec, -1")
    d = block(0, 84, 96)
    a("s_lshl_b32 s16, s34, 8"); a(f"s_add_u32 s16, s16, {4*24576}")
    a(f"v_add_u32 v24, s16, v{vL4}")
    q(f"ds_write_b32 v24, v{d}", lds="cs")
    for e in range(4): a(f"v_mov_b32 v{80+e}, 0")
    a("s_lshl_b32 s41, s39, 12"); a("s_add_u32 s41, s41, s40")
    q.wait(needvm=[("x", 3)])
    for b in range(4):
        r = 64 + 4 * b
        a(f"v_permlane16_swap_b32 v{r}, v{r+2}")
        a(f"v_permlane16_swap_b32 v{r+1}, v{r+3}")
        q(f"buffer_store_dwordx4 v[{r}:{r+3}], v{vX}, s[44:47], s41 offen offset:{b*1024} sc1", vm=("xs", b))
        for p_ in range(4):
            a(f"v_dot2_f32_bf16 v{80+2*(b//2)}, v{r+p_}, v{vOne}, v{80+2*(b//2)}")
            a(f"v_dot2_f32_bf16 v{81+2*(b//2)}, v{r+p_}, v{r+p_}, v{81+2*(b//2)}")
    a("s_nop 2")
    ls = []
    for e in range(4):
        r = Rec(); xlane_sum4(r, 80 + e, 84 + e); ls.append(r.l)
    for x in interleave(ls):
        if not x.startswith("s_nop"): a(x)
    a("v_cndmask_b32 v80, v82, v80, s[62:63]"); a("v_cndmask_b32 v81, v83, v81, s[62:63]")
    a("s_lshr_b32 s16, s38, 1"); a("s_lshl_b32 s16, s16, 12"); a("s_lshl_b32 s17, s39, 9"); a("s_add_u32 s16, s16, s17")
    a("s_and_b32 s17, s38, 1"); a("s_lshl_b32 s17, s17, 3"); a("s_add_u32 s16, s16, s17"); a(f"s_add_u32 s16, s16, {STA}")
    q("buffer_store_dwordx2 v[80:81], v11, s[44:47], s16 offen sc1", vm="sts")
    q.wait(alllds=True)
    a("s_barrier")
    a(f"v_add_u32 v24, {4*24576}, v{vL4}")
    for i in range(4): q(f"ds_read_b32 v{26+i}, v24 offset:{i*256}", lds=("cr", i))
    a(f"s_lshl_b32 s16, s2, 8"); a(f"s_add_u32 s16, s16, {CSQ}")
    a("s_cmp_lt_u32 s2, 192"); a("s_cselect_b32 s16, s16, 0x7ff00000")
    q.wait(alllds=True)
    a("v_add_f32 v26, v26, v27"); a("v_add_f32 v28, v28, v29"); a("v_add_f32 v26, v26, v28")
    q(f"buffer_store_dword v26, v{vL4}, s[44:47], s16 offen sc1", vm="css")
    if mode == 1: gsetup(1, 94)
    d = block(1, 89, 144)
    q(f"buffer_store_dword v{d}, v{vL4}, s[44:47], s93 offen sc1", vm="g1")
    srd(a, 52, "s20", "s21", 256)
    a(f"v_min_u32 v24, 1, v{L}"); a("v_lshlrev_b32 v24, 26, v24"); a("v_mov_b32 v25, 1")
    a("s_and_b32 s16, s2, 3"); a("s_lshl_b32 s16, s16, 6")
    a("s_cmp_eq_u32 s34, 0"); a("s_cselect_b32 s16, s16, 0x7ff00000")
    a("s_waitcnt vmcnt(0)")
    a("s_barrier")
    a("buffer_atomic_add v25, v24, s[52:55], s16 offen sc1")
    cx.T(nm + ".sig")
    if mode == 0:
        q = Seq(a)
        gsetup(1, 94)
    d = block(2, 94, 96)
    q(f"buffer_store_dword v{d}, v{vL4}, s[44:47], s98 offen sc1", vm="g2")
    a("s_cmp_lg_u32 s34, 0")
    a(f"s_cbranch_scc1 PE{nm}")
    a(f"v_and_b32 v24, 3, v{L}"); a("v_lshlrev_b32 v24, 6, v24")
    a("s_mov_b32 s17, 0")
    a.label(f"P{nm}")
    a("buffer_load_dword v25, v24, s[52:55], 0 offen sc1")
    a("s_waitcnt vmcnt(0)")
    a("v_cmp_gt_u32 vcc, 64, v25")
    a(f"s_cbranch_vccz PE{nm}")
    a("s_sleep 4")
    a("s_add_u32 s17, s17, 1"); a("s_cmp_lt_u32 s17, 0x40000")
    a(f"s_cbranch_scc1 P{nm}")
    a.label(f"PE{nm}")
    a("s_barrier")
    cx.T(nm + ".end")
    return 4 * 24576 + 1024

HDR = open("interleave_layers__linear_attn_block__glu_gated_bilinear__prompt.s.ref").read().split("; Override launch")[0]
PH = ["a0", "u0", "d0", "a1", "u1", "d1"]
def build(fn, cuts=(), st=False, A_={}, U_={}, D_={}, Ag={}, Ug={}, Dg={}, k0kw={}, PRE=dict(a=0, u=0, d=0), rep=None, TCH='', one=False, pmode=0, jit=0, wb=None):
    cuts = set(cuts) | {"a0"}
    groups = []
    for p in PH:
        if p in cuts: groups.append([])
        groups[-1].append(p)
    ks = []; ls = []
    if not one:
      k, lds, n = gen_k0("k0_kernel", nxt=("PH_a0",), ngate=112, v2=True, stflag="sc1", down=(rep is None), st2=True, **k0kw)
      ks.append(k); ls.append(("k0_kernel", (n,1,1), (256,1,1), lds))
    names = {}
    for gi, g in enumerate(groups):
        kn = f"m{gi}_kernel"
        a = A(); cx = Ctx(a, st); cx.jit = jit
        a("s_cmp_ge_u32 s2, 256")
        a(f"s_cbranch_scc0 S_{kn}")
        a("s_endpgm")
        a.label(f"S_{kn}")
        cx.T("start")
        a("s_load_dwordx2 s[32:33], s[0:1], 72")
        a("s_load_dwordx4 s[28:31], s[0:1], 48")
        if one and gi == 0:
            a("s_load_dwordx4 s[4:7], s[0:1], 0"); a("s_load_dwordx2 s[8:9], s[0:1], 16")
            a("s_load_dwordx4 s[12:15], s[0:1], 32"); a("s_load_dwordx2 s[20:21], s[0:1], 64")
        a("v_lshrrev_b32 v1, 6, v0")
        a("s_nop 0")
        a("v_readfirstlane_b32 s34, v1")
        state = dict(done=False)
        def ready():
            if not state["done"]:
                a("s_waitcnt lgkmcnt(0)")
                srd(a, 44, "s32", "s33", WS_USED)
                state["done"] = True
        cx.ready = ready
        LDS = 0
        if one and gi == 0: LDS = phase_prep(cx, "p0", pmode, wb is not None)
        for p in g:
            i = PH.index(p); lay = int(p[1])
            gated = p not in cuts
            nx = PH[i + 1] if i + 1 < len(PH) else None
            sigout = nx is not None and nx not in cuts
            nxl = f"PH_{nx}" if nx else None
            ex = {}
            if gated: ex["wdone"] = PRE[p[0]]
            if sigout: ex["pre"] = PRE[nx[0]]
            if rep and p == "u0": ex["rep"] = rep
            if rep and p == "d0": ex["wwait"] = True
            if p == "u0" and "h" in TCH: ex.update(touch=(3, 4, 60), H=12, T=4)
            if p == "a0" and "o" in TCH: ex["touch"] = True
            if p == "d1" and "y" in TCH: ex["touch"] = True
            if one and p[0] in "au": ex["wflag"] = SC; ex["csf"] = SC
            if one and p == "d1": ex["wflag"] = SC
            if wb is not None and p == "a0": ex["wb"] = wb
            a.label(f"PH_{p}")
            if p[0] == "a": l = phase_attn(cx, p, lay, gated, sigout, nxl, **{**A_, **(Ag if gated else {}), **ex})
            elif p[0] == "u": l = phase_up(cx, p, lay, gated, sigout, nxl, **{**U_, **(Ug if gated else {}), **ex})
            else: l = phase_down(cx, p, lay, gated, sigout, nxl, lay == 1, **{**D_, **(Dg if gated else {}), **ex})
            a.label(f"END_PH_{p}")
            LDS = max(LDS, l)
        if st:
            a("s_waitcnt vmcnt(0)"); cx.T("fin")
            a("s_waitcnt lgkmcnt(0)")
            a("s_lshl_b32 s60, s2, 2"); a("s_add_u32 s60, s60, s34"); a("s_lshl_b32 s60, s60, 7"); a(f"s_add_u32 s60, s60, {STAMP_OFF + gi*0x80000}")
            a("v_mov_b32 v1, 0")
            for i in range(cx.n):
                a(f"v_mov_b32 v0, s{64+2*i}")
                a(f"buffer_store_dword v0, v1, s[44:47], s60 offen offset:{4*i}")
                a("s_nop 1")
            names[kn] = cx.names
        a("s_endpgm")
        ks.append(kernel_wrap(kn, a.text(), vgpr=256, agpr=256, sgpr=102))
        ls.append((kn, (256,1,1), (256,1,1), LDS))
    open(fn, "w").write(HDR + file_wrap(ls, ks))
    if st:
        import json; json.dump(names, open(fn + ".json", "w"))

if __name__ == "__main__":
    G0 = dict(Ag=dict(wpre=5), Ug=dict(wpre=3), Dg=dict(wpre=7), rep=(2, 90, -4, 4), one=True, A_=dict(remap=True))
    build("mo.s", **G0)
    build("mp.s", wb=110, **G0)
    build("mp_st.s", wb=110, st=True, **G0)
    build("mq.s", wb=72, **G0)
```

```python
from common import *
from core import Core
from k1 import pk_bc
from k4 import epi_setup, tile_map_16x16
from k0 import gen_k0, plane_dma_lane, plane_read_bases

class Ctx:
    def __init__(self, a, st):
        self.a = a; self.st = st; self.n = 0; self.names = []
    def J(self):
        if not getattr(self, "jit", 0): return
        a = self.a; self.jn = getattr(self, "jn", 0) + 1
        a("s_memrealtime s[100:101]"); a("s_waitcnt lgkmcnt(0)")
        a("s_lshl_b32 s99, s2, 2"); a("s_add_u32 s99, s99, s34"); a(f"s_mul_i32 s99, s99, {2654435761 % (1<<31)}"); a("s_xor_b32 s99, s99, s100")
        a("s_mul_i32 s99, s99, 1103515245"); a("s_lshr_b32 s99, s99, 27")
        a.label(f"J{self.jn}_{id(self)%9973}")
        a(f"s_sleep {self.jit}")
        a("s_sub_u32 s99, s99, 1"); a("s_cmp_gt_i32 s99, 0")
        a(f"s_cbranch_scc1 J{self.jn}_{id(self)%9973}")
    def T(self, nm):
        if nm != "start": self.J()
        if self.st and self.n < 10:
            self.a(f"s_memrealtime s[{64+2*self.n}:{65+2*self.n}]"); self.n += 1; self.names.append(nm)

def cpf(r, lab, vL, v0_, v1_, s0=10):
    code_prefetch(r, (lab,), vL, v0_, v1_, s0)

SC = " sc1"

def pre_ops(kind, n, vL):
    if kind == "a": ND, stage, vD, base, KS = 4, 16384, 130, WF1, 24
    elif kind == "u": ND, stage, vD, base, KS = 7, 28672, 228, WF3, 16
    else: ND, stage, vD, base, KS = 2, 8192, 250, WF4, 56
    g = ["s_and_b32 s12, s2, 7", "s_lshr_b32 s13, s2, 3"]
    if kind == "a": g += ["s_and_b32 s12, s12, 3", "s_lshl_b32 s12, s12, 2", "s_and_b32 s13, s13, 3"]
    elif kind == "u": g += ["s_and_b32 s12, s12, 3", "s_lshl_b32 s12, s12, 3", "s_and_b32 s13, s13, 7"]
    else: g += ["s_and_b32 s12, s12, 1", "s_lshl_b32 s12, s12, 3", "s_and_b32 s13, s13, 7"]
    g += ["s_add_u32 s12, s12, s13", f"s_mul_i32 s14, s12, {KS*stage}", f"s_add_u32 s14, s14, {base}",
          f"s_mul_i32 s15, s34, {ND*1024}", "s_add_u32 s14, s14, s15", f"v_lshlrev_b32 v{vD}, 4, v{vL}"]
    out = [g]
    for i in range(n):
        for d in range(ND):
            off = i * stage + d * 1024
            out.append([f"s_add_u32 m0, s15, {off}", f"s_add_u32 s13, s14, {off}", f"buffer_load_dwordx4 v{vD}, s[44:47], s13 offen lds"])
    return out

def weave(a, lines, groups, start=0, every=8):
    gi = 0
    for n, x in enumerate(lines):
        if n >= start and (n - start) % every == 0 and gi < len(groups):
            for y in groups[gi]: a(y)
            gi += 1
        a(x)
    for g in groups[gi:]:
        for y in g: a(y)

def phase_attn(cx, nm, lay, gated, sigout, nxt, R=4, per=6, e0=3, sig=185, pollp=225, npre=10, dsp=3, xl=3, wpre=1, wdone=0, pre=0, touch=False, csf='', early=False, remap=False, wb=None, **kw):
    a = cx.a
    RT = 2; NT = 8; UN = 6
    STAGE = 16384
    AUX = UN * STAGE; RED = AUX + 2048; REDW = 8448
    LDS = 159744; KVL = 155648
    KVo = KV + lay * KVSZ
    wa0 = 96
    vX = 128; vD = 130; vWr = 131
    L = 133; t0, t1, t2 = 134, 135, 136
    vA = 137; vB = 138; vZw = 139; vOne = 140
    vSt = 142; vN4 = 158; vCs = 174; pt = 182; vKV = 190; tmp = 238
    vRed = 254; vRedG = 255
    def umap(stg, u):
        if stg < 16: return stg, u
        return 8 * ((stg - 16) % 2) + u, 8 + (stg - 16) // 2
    K = dict(gh=3, npro=4, rdmargin=6, xlead=3, rddelay=1); K.update(kw)
    c = Core(a, nm, RT, NT, 24, R, vWr, nontrans=range(0, 8), vX=vX, vD=vD, init_acc=True, xf='a', wf='v', xa0=0, wa0=wa0,
             UN=UN, XUN=16, XK=16, m0_from=8, umap=umap, H=12, T=12, xflag=SC, wpre=wpre, wdone=wdone, **K)
    lane_id(a, L)
    a("s_and_b32 s35, s2, 7"); a("s_lshr_b32 s36, s2, 3")
    a("s_lshr_b32 s37, s35, 2"); a("s_lshl_b32 s37, s37, 3"); a("s_lshr_b32 s38, s36, 2"); a("s_add_u32 s37, s37, s38")
    a("s_and_b32 s38, s35, 3"); a("s_lshl_b32 s38, s38, 2"); a("s_and_b32 s39, s36, 3"); a("s_add_u32 s38, s38, s39")
    rbB = 32768
    c.setup_addr(L, 34, rbB)
    a("s_lshl_b32 s42, s37, 3"); a("s_lshl_b32 s43, s34, 1"); a("s_add_u32 s42, s42, s43")
    a(f"s_lshl_b32 s{c.sXoff}, s42, 15")
    a(f"s_mul_i32 s{c.sWoff}, s38, {24*STAGE}"); a(f"s_add_u32 s{c.sWoff}, s{c.sWoff}, {WF1 + max(wdone-1,0)*STAGE}")
    a(f"v_lshlrev_b32 v{pt+2}, 2, v{L}")
    a("s_lshl_b32 s50, s38, 8"); a("s_lshl_b32 s51, s34, 12"); a("s_add_u32 s50, s50, s51"); a(f"s_add_u32 s50, s50, {CSQ}")
    cx.ready()
    for p in range(4):
        a(f"buffer_load_dword v{vCs+p}, v{pt+2}, s[44:47], s50 offen{csf}")
        if p < 3: a(f"s_add_u32 s50, s50, {3072*4}")
    a(f"v_and_b32 v{t0}, 15, v{L}")
    a(f"v_lshrrev_b32 v{t1}, 4, v{L}")
    a("s_lshl_b32 s48, s42, 11"); a(f"s_add_u32 s48, s48, {STA}")
    def ldstats():
        for i in range(4):
            a(f"buffer_load_dwordx4 v[{vSt+4*i}:{vSt+4*i+3}], v{vX}, s[44:47], s48 offen offset:{i*1024}{SC}")
    def cstab(nafter):
        a("s_lshl_b32 s51, s34, 8")
        a(f"v_add_u32 v{vA}, s51, v{pt+2}")
        a(f"s_add_u32 s51, s51, {AUX + 1024}")
        a(f"v_lshl_add_u32 v{pt+3}, v{t0}, 2, s51")
        a(f"v_lshl_add_u32 v{pt+4}, v{t1}, 4, s51")
        a(f"v_add_u32 v{pt+5}, {AUX}, v{vA}")
        a(f"v_lshlrev_b32 v{pt+6}, 2, v{t0}"); a(f"v_add_u32 v{pt+6}, {AUX}, v{pt+6}")
        a(f"v_lshlrev_b32 v{pt+7}, 4, v{t1}"); a(f"v_add_u32 v{pt+7}, {AUX}, v{pt+7}")
        c.setup_rd()
        a(f"s_waitcnt vmcnt({nafter})")
        a(f"v_add_f32 v{vCs}, v{vCs}, v{vCs+1}"); a(f"v_add_f32 v{vCs+2}, v{vCs+2}, v{vCs+3}"); a(f"v_add_f32 v{vCs}, v{vCs}, v{vCs+2}")
        a(f"ds_write_b32 v{pt+5}, v{vCs}")
    def csread():
        a("s_waitcnt lgkmcnt(0)")
        a("s_barrier")
        for j in range(8): a(f"ds_read_b32 v{vCs+j}, v{pt+6} offset:{256 + j*64}")
        for j in range(4):
            r = c.accr(8 + j, 0)
            a(f"ds_read_b128 v[{r}:{r+3}], v{pt+7} offset:{j*64}")
    if not gated: ldstats()
    def gate():
        if gated:
            cstab((wpre - wdone) * c.ND); csread()
            a("s_lshl_b32 s19, s37, 7"); a(f"s_add_u32 s19, s19, {FL(lay - 1, 4)}")
            poll1(a, nm + "g", 19, 16, t2, vB)
            cx.T(nm + ".gate")
            ldstats()
    def hook(nvm):
        nx = nvm - (wpre - wdone) * c.ND
        if not gated: cstab(nvm + 4)
        a(f"s_waitcnt vmcnt({nx if gated else nvm})")
        ls = []
        l2 = row_stats2(a, vSt)
        for t in range(RT):
            r = Rec(); r.l = l2[t]
            r(f"ds_write_b32 v{pt+3}, v{vSt+8*t} offset:{t*128}")
            r(f"ds_write_b32 v{pt+3}, v{vSt+8*t+4} offset:{t*128+64}")
            r(f"ds_read_b128 v[{vN4+8*t}:{vN4+8*t+3}], v{pt+4} offset:{t*128}")
            r(f"ds_read_b128 v[{vN4+8*t+4}:{vN4+8*t+7}], v{pt+4} offset:{t*128+64}")
            ls.append(r.l)
        for x in interleave(ls): a(x)
        if not gated: csread()
        a("s_waitcnt lgkmcnt(0)")
        for j in range(8):
            for t in range(2):
                for h in range(2):
                    a(pk_bc(c.accr(j, t) + 2 * h, vN4 + 8 * t + 2 * h, vCs + j))
        if cx.st or cx.jit: cx.T(nm + ".pro"); a("s_waitcnt lgkmcnt(0)")
    def w2addr(i): return 98304 + i * 8192 if i < 7 else (i - 7) * 8192
    def dma_txt(n):
        o = [f"s_add_u32 m0, s21, {w2addr(n//2)}"]
        o.append("s_add_u32 s20, s20, 8192" if (n % 2 == 0 and n) else "s_nop 0")
        o.append(f"buffer_load_dwordx4 v{pt+5}, s[44:47], s20 offen offset:{(n%2)*1024}{csf} lds")
        return o
    r = Rec()
    for j in range(4):
        for t in (1, 0):
            for e in range(4):
                r(f"v_mul_f32 v{c.accr(8+j,t)+e}, v{c.accr(8+j,0)+e}, v{vSt+8*t}")
    r("s_mov_b32 s52, 0x358637bd"); r("s_mov_b32 s53, 0x358637bd"); r("s_mov_b32 s54, 0x3fb8aa3b")
    for t in range(RT):
        for e in range(4): r(f"v_mul_f32 v{vN4+8*t+e}, s54, v{vN4+8*t+4+e}")
        r(f"v_mul_f32 v{vSt+8*t}, s54, v{vSt+8*t+4}")
    r(f"v_mov_b32 v{vOne}, 1.0"); r(f"v_mov_b32 v{vOne+1}, 1.0")
    for e in range(4): r(f"v_mov_b32 v{tmp+8+e}, 0x3f803f80")
    for e in range(4): r(f"v_mov_b32 v{tmp+12+e}, 0x358637bd")
    r(f"s_mul_i32 s55, s34, {REDW}"); r(f"s_add_u32 s55, s55, {RED}")
    r(f"v_add_u32 v{vRed}, s55, v{vX}")
    r(f"v_lshl_add_u32 v{vRedG}, v{t1}, 4, s55")
    r(f"v_add_u32 v{vB}, {RED}, v{vA}")
    r("s_lshl_b32 s56, s38, 13"); r(f"s_add_u32 s56, s56, {KVo}"); r("s_add_u32 s57, s56, 4096")
    r("s_lshl_b32 s59, s38, 7"); r(f"s_add_u32 s59, s59, {FL(lay, 0)}")
    r("s_lshl_b32 s58, s38, 8"); r(f"s_add_u32 s58, s58, {KVo + KVZ}")
    r("s_lshl_b32 s60, s42, 15"); r("s_lshl_b32 s61, s38, 11"); r("s_add_u32 s60, s60, s61"); r(f"s_add_u32 s60, s60, {PQ}")
    r("s_add_u32 s61, s60, 32768")
    r(f"v_min_u32 v{pt+2}, 1, v{L}"); r(f"v_lshlrev_b32 v{pt+2}, 26, v{pt+2}")
    r(f"v_mov_b32 v{pt+3}, 1"); r(f"v_mov_b32 v{t0}, 0")
    r("s_lshl_b32 s40, s34, 11"); r("s_add_u32 s40, s40, s56")
    r("s_lshl_b32 s41, s34, 10"); r(f"s_add_u32 s41, s41, {KVL}"); r(f"v_add_u32 v{vZw}, s41, v{vX}"); r(f"v_add_u32 v{pt+4}, {KVL}, v{vX}")
    r(f"v_lshlrev_b32 v{t1}, 4, v{t1}")
    r("s_lshl_b32 s18, s37, 7"); r(f"s_add_u32 s18, s18, {FL(lay, 1)}")
    if remap:
        tile_map_16x16(r, 3)
        r("s_lshl_b32 s42, s37, 3"); r("s_lshl_b32 s43, s34, 1"); r("s_add_u32 s42, s42, s43")
    r("s_lshl_b32 s20, s38, 17"); r(f"s_add_u32 s20, s20, {WF2}")
    r("s_lshl_b32 s21, s34, 11")
    r(f"v_add_u32 v{pt+5}, s21, v{vX}")
    r("s_lshl_b32 s22, s37, 7"); r(f"s_add_u32 s22, s22, {FL(lay, 1)}")
    r("s_lshl_b32 s23, s42, 15"); r(f"s_add_u32 s23, s23, {PQ}")
    r(f"v_add_u32 v{pt+6}, 65536, v{vX}"); r(f"v_add_u32 v{pt+7}, 131072, v{vX}")
    spread(c, 5, 1, r.l, per=1)
    c.extra(11, 1, ["s_cmp_eq_u32 s34, 0", "s_cselect_b32 s62, s58, 0x7ff00000", "s_cselect_b32 s63, s59, 0x7ff00000", "s_cselect_b32 s19, s18, 0x7ff00000"])
    if touch:
        for n in range(4):
            c.extra(-10, 3 + 7 * n, f"buffer_store_dwordx4 v[{tmp+8}:{tmp+11}], v{vX}, s[44:47], s{60 + n % 2} offen offset:{(n//2)*1024} sc1", cost=2, vm=("tch", n))
    def phi4k(r_, dst, rs, rsl, tb):
        o = []
        for h in range(2): o.append(f"v_pk_mul_f32 v[{tb+2*h}:{tb+2*h+1}], v[{r_+2*h}:{r_+2*h+1}], v[{rsl+2*h}:{rsl+2*h+1}]")
        for e in range(4): o.append(f"v_exp_f32_e64 v{tb+e}, v{tb+e} clamp")
        for h in range(2): o.append(f"v_pk_fma_f32 v[{r_+2*h}:{r_+2*h+1}], v[{r_+2*h}:{r_+2*h+1}], v[{rs+2*h}:{rs+2*h+1}], v[{vOne}:{vOne+1}]")
        for e in range(4): o.append(f"v_max_f32 v{r_+e}, v{r_+e}, v{tb+e}")
        for h in range(2): o.append(f"v_pk_add_f32 v[{r_+2*h}:{r_+2*h+1}], v[{r_+2*h}:{r_+2*h+1}], s[52:53]")
        for h in range(2): o.append(f"v_cvt_pk_bf16_f32 v{dst+h}, v{r_+2*h}, v{r_+2*h+1}")
        return o
    ev = []
    for j in range(4):
        for t in range(RT):
            ev += phi4k(c.accr(j, t), c.accr(j, 0) + 2 * t, vN4 + 8 * t + 4, vN4 + 8 * t, tmp + 4 * t)
    for j in range(4, 8):
        for t in range(RT):
            r_ = c.accr(j, t)
            for h in range(2): ev.append(f"v_pk_mul_f32 v[{r_+2*h}:{r_+2*h+1}], v[{r_+2*h}:{r_+2*h+1}], v[{vN4+8*t+4+2*h}:{vN4+8*t+5+2*h}]")
            for h in range(2): ev.append(f"v_cvt_pk_bf16_f32 v{c.accr(j,0)+2*t+h}, v{r_+2*h}, v{r_+2*h+1}")
    m = spread(c, -9, 16 + e0, ev[:128], per=per)
    m = max(m, c.M + 3)
    m = spread(c, -9, m, ev[128:], per=per) - c.M
    m += 1
    def X(pos, txt, **k2): c.extra(-8 + pos // c.M, pos % c.M, txt, **k2)
    for hl in range(2):
        for es in range(2):
            for ds in range(2):
                d = vKV + ((hl * 2 + es) * 2 + ds) * 4
                A_ = c.accr(hl * 2 + ds, 0); B_ = c.accr(4 + hl * 2 + es, 0)
                X(m, f"v_mfma_f32_16x16x32_bf16 v[{d}:{d+3}], v[{A_}:{A_+3}], v[{B_}:{B_+3}], 0", cost=-1); m += 1
        for ds in range(2):
            d = vKV + 32 + (hl * 2 + ds) * 4
            A_ = c.accr(hl * 2 + ds, 0)
            X(m, f"v_mfma_f32_16x16x32_bf16 v[{d}:{d+3}], v[{A_}:{A_+3}], v[{tmp+8}:{tmp+11}], 0", cost=-1); m += 1
    m -= 6
    for n in range(8):
        X(m, f"ds_write_b128 v{vRed}, v[{vKV+4*n}:{vKV+4*n+3}] offset:{n*1024}", lds=("rw", n), cost=2); m += 1
    m += 2
    for n in range(4):
        X(m, f"ds_write_b128 v{vRedG}, v[{vKV+32+4*n}:{vKV+32+4*n+3}] offset:{8192+n*64}", lds=("rw", 8 + n), cost=2); m += 1
    m += 4
    X(m, "s_barrier", needlds=[("rw", 11)]); m += 1
    for i in range(8):
        for w in range(2):
            X(m, f"ds_read2st64_b32 v[{vKV+4*i+2*w}:{vKV+4*i+2*w+1}], v{vB} offset0:{i*4+66*w} offset1:{i*4+66*w+33}", lds=("rr", i, w))
        m += 1
    for w in range(2):
        X(m, f"ds_read2st64_b32 v[{vKV+32+2*w}:{vKV+33+2*w}], v{vB} offset0:{32+66*w} offset1:{32+66*w+33}", lds=("rr", 8, w))
    m += 1
    for i in range(9):
        r_ = vKV + 4 * i
        X(m, [f"v_add_f32 v{r_}, v{r_}, v{r_+1}", f"v_add_f32 v{r_+2}, v{r_+2}, v{r_+3}", f"v_add_f32 v{r_}, v{r_}, v{r_+2}"], needlds=[("rr", i, 1)]); m += 1
        so = f"s{56 + i // 4} offen offset:{(i%4)*1024}" if i < 8 else "s62 offen"
        X(m, f"buffer_atomic_add_f32 v{r_}, v{vA}, s[44:47], {so}", vm=("at", i), cost=2); m += 1
    def phi4q(r_, dst, rs, rsl, tb):
        o = []
        for e in range(4): o.append(f"v_mul_f32 v{tb+e}, v{r_+e}, v{rsl}")
        for e in range(4): o.append(f"v_exp_f32_e64 v{tb+e}, v{tb+e} clamp")
        for e in range(4): o.append(f"v_fma_f32 v{r_+e}, v{r_+e}, v{rs}, 1.0")
        for e in range(4): o.append(f"v_max_f32 v{r_+e}, v{r_+e}, v{tb+e}")
        for e in range(4): o.append(f"v_add_f32 v{r_+e}, s52, v{r_+e}")
        for h in range(2): o.append(f"v_cvt_pk_bf16_f32 v{dst+h}, v{r_+2*h}, v{r_+2*h+1}")
        return o
    vQf = lambda hl, t: c.accr(8 + 2 * hl, t)
    qs = []
    for jq in range(4):
        l = []
        for t in (1, 0):
            l += phi4q(c.accr(8 + jq, t), vQf(jq // 2, t) + 2 * (jq % 2), vSt + 8 * t + 4, vSt + 8 * t, tmp + 4 * t)
        qs.append(l)
    mq = m
    for jq in range(3):
        mq = max(mq, 64 * (jq + 1) + 5)
        for x in qs[jq]:
            X(mq, x); mq += 1
    assert mq < 8 * c.M and sig > m
    if wb is not None:
        X(wb, ["s_cmp_lg_u32 s34, 0", f"s_cbranch_scc1 WB{nm}", "buffer_wbl2 sc1", f"WB{nm}:"])
    X(sig, ["s_waitcnt vmcnt(0)", "s_barrier"])
    X(sig + 1, f"buffer_atomic_add v{pt+3}, v{pt+2}, s[44:47], s63 offen sc1", vm=("sig",), cost=2)
    X(pollp, f"buffer_load_dword v{t2}, v{t0}, s[44:47], s59 offen sc1", vm=("poll",), cost=2)
    pos = sig + 3
    for n in range(2 * npre):
        i2 = n // 2
        if i2 >= 7: pos = max(pos, (3 + (i2 - 7) // 2) * c.M + c.mb + 2)
        X(pos, dma_txt(n), vm=("w2", n), cost=3); pos += dsp
    c.emit(hook, gate)
    cx.T(nm + ".qkv")
    a("s_waitcnt vmcnt(0)")
    a(f"v_readfirstlane_b32 s16, v{t2}")
    a("s_cmp_ge_u32 s16, 16")
    a(f"s_cbranch_scc1 PE{nm}1")
    poll(a, nm + "1", 59, 16, t0, t2)
    vG = vKV; vZ = vKV + 8
    a(f"buffer_load_dwordx4 v[{vG}:{vG+3}], v{vX}, s[44:47], s40 offen sc1")
    a(f"buffer_load_dwordx4 v[{vG+4}:{vG+7}], v{vX}, s[44:47], s40 offen offset:1024 sc1")
    for n in range(4):
        a(f"buffer_load_dwordx4 v[{vZ+4*n}:{vZ+4*n+3}], v{t1}, s[44:47], s58 offen offset:{n*64} sc1")
    for x in qs[3]: a(x)
    a("s_waitcnt vmcnt(4)")
    for p in range(4): a(f"v_cvt_pk_bf16_f32 v{vG+p}, v{vG+2*p}, v{vG+2*p+1}")
    a(f"ds_write_b128 v{vZw}, v[{vG}:{vG+3}]")
    a("s_waitcnt vmcnt(0)")
    for hl in range(2):
        for p in range(4): a(f"v_cvt_pk_bf16_f32 v{vZ+8*hl+p}, v{vZ+8*hl+2*p}, v{vZ+8*hl+2*p+1}")
    a("s_waitcnt lgkmcnt(0)")
    a("s_barrier")
    vF = vKV + 24
    for n in range(4): a(f"ds_read_b128 v[{vF+4*n}:{vF+4*n+3}], v{pt+4} offset:{n*1024}")
    vN = 16
    for hl in range(2):
        for t in range(RT):
            d = vN + (hl * 2 + t) * 12 + 8; p = vQf(hl, t)
            a(f"v_mfma_f32_16x16x32_bf16 v[{d}:{d+3}], v[{vZ+8*hl}:{vZ+8*hl+3}], v[{p}:{p+3}], v[{tmp+12}:{tmp+15}]")
    for hl in range(2):
        for es in range(2):
            a(f"s_waitcnt lgkmcnt({3 - (hl*2+es)})")
            for t in range(RT):
                d = vN + (hl * 2 + t) * 12 + 4 * es; p = vQf(hl, t); f = vF + 4 * (hl * 2 + es)
                a(f"v_mfma_f32_16x16x32_bf16 v[{d}:{d+3}], v[{f}:{f+3}], v[{p}:{p+3}], 0")
    for n in range(4): a(f"v_rcp_f32 v{vN+12*n+8}, v{vN+12*n+8}")
    for hl in range(2):
        for t in range(RT):
            n = vN + (hl * 2 + t) * 12; d = 4 * (hl * 2 + t)
            for p in range(4): a(pk_bc(n + 2 * p, n + 2 * p, n + 8))
            for p in range(4): a(f"v_cvt_pk_bf16_f32 v{d+p}, v{n+2*p}, v{n+2*p+1}")
            a(f"buffer_store_dwordx4 v[{d}:{d+3}], v{vX}, s[44:47], s{60+t} offen offset:{hl*1024} sc1")
    vRow, vStat, vS2, vOut, ones = vN4, vN4 + 1, vN4 + 2, vN4 + 3, vN4 + 4
    vXo = vKV; tm2 = vKV + 16
    epi_setup2(a, L, vN4 + 6, vN4 + 7, vRow, vStat, vOut, ones, 0, STB, False)
    a("s_waitcnt vmcnt(0)")
    a("s_barrier")
    a(f"buffer_atomic_add v{pt+3}, v{pt+2}, s[44:47], s19 offen sc1")
    for n in range(2 * npre, 32):
        for x in dma_txt(n): a(x)
    for t in range(RT):
        for b in range(2):
            a(f"buffer_load_dwordx4 v[{vXo+8*t+4*b}:{vXo+8*t+4*b+3}], v{vX}, s[44:47], s{48+t} offen offset:{b*1024}{SC}")
    lb = lambda off: f"v{(vX, pt+6, pt+7)[off // 65536]} offset:{off % 65536}"
    for j in range(8): a(f"ds_read_b128 v[{32+4*j}:{35+4*j}], {lb(w2addr(0) + j * 1024)}")
    poll1(a, nm + "2", 22, 16, t0, t2)
    cx.T(nm + ".o")
    q = Seq(a)
    def ldx(i):
        o = []
        for t in range(RT):
            for s_ in range(2):
                pre = [("s_add_u32 s23, s23, 2048", {})] if (i and t == 0 and s_ == 0) else []
                o.append(pre + [(f"buffer_load_dwordx4 {c.xreg(i,s_,t)}, v{vX+t}, s[44:47], s23 offen offset:{s_*1024} sc1", dict(vm=("x", i, t, s_)))])
        return o
    def rdw(i):
        o = []
        for j in range(4):
            for s_ in range(2):
                r_ = 32 + (i % 2) * 32 + j * 8 + s_ * 4
                o.append([(f"ds_read_b128 v[{r_}:{r_+3}], {lb(w2addr(i) + (j * 2 + s_) * 1024)}", dict(lds=("w", i, j, s_)))])
        return o
    def run(groups):
        for gset in groups:
            for txt, k2 in gset: q(txt, **k2)
    for i in range(xl): run(ldx(i))
    if early:
        for j in range(4):
            for t in range(RT):
                xo = vXo + 8 * t + 4 * (j // 2) + 2 * (j % 2); ac = (j * 2 + t) * 4
                for p_ in range(2):
                    a(f"v_lshlrev_b32 v{ac+2*p_}, 16, v{xo+p_}"); a(f"v_and_b32 v{ac+2*p_+1}, 0xffff0000, v{xo+p_}")
    a("s_waitcnt lgkmcnt(0)")
    for j in range(4):
        for s_ in range(2): q.ld[("w", 0, j, s_)] = -1
    acc2 = lambda j, t: (j * 2 + t) * 4
    for i in range(16):
        M_ = []
        for j in range(4):
            for n_, t in enumerate((0, 1) if j % 2 == 0 else (1, 0)):
                for s_ in ((0, 1) if n_ == 0 else (1, 0)):
                    w_ = 32 + (i % 2) * 32 + j * 8 + s_ * 4; r_ = acc2(j, t)
                    first = (i == 0 and s_ == (0 if n_ == 0 else 1)) and not early
                    M_.append([(f"v_mfma_f32_16x16x32_bf16 v[{r_}:{r_+3}], v[{w_}:{w_+3}], {c.xreg(i,s_,t)}, {'0' if first else f'v[{r_}:{r_+3}]'}",
                                dict(needvm=[("x", i, t, 0), ("x", i, t, 1)], needlds=[("w", i, j, 0), ("w", i, j, 1)]))])
        if i + 1 == npre: a("s_barrier")
        fill = interleave([rdw(i + 1), ldx(i + xl) if i + xl < 16 else []]) if i + 1 < 16 else []
        run(merge(M_, fill))
        if i == 13 and nxt:
            r = Rec(); cpf(r, nxt, L, vN4 + 6, vN4 + 7)
            for x in r.l:
                if x.startswith("global_load"): q(x, vm=("cpf",))
                else: a(x)
    r = Rec()
    resid_epilogue(r, acc2, RT, lambda t, b: vXo + 8 * t + 4 * b, None, tm2, vX, vRow, 44,
                   lambda t: 48 + t, 52, vStat, False, ones=ones, stf=(SC if sigout else ""), pre=early)
    if pre:
        po = pre_ops("u", pre, L)
        for x in po[0]: a(x)
        a("s_barrier")
        weave(a, r.l, po[1:], every=max(1, len(r.l) // len(po)))
    else:
        a("s_nop 7")
        for x in r.l: a(x)
    if sigout:
        a("s_lshr_b32 s19, s37, 1"); a("s_lshl_b32 s19, s19, 7"); a(f"s_add_u32 s19, s19, {FL(lay, 2)}")
        signal(a, 19, L, t0, t1)
    cx.T(nm + ".end")
    return LDS

def phase_up(cx, nm, lay, gated, sigout, nxt, R=4, wpre=1, wdone=0, pre=0, pb=20, psp=6, stf=None, rep=None, touch=None, csf='', **kw):
    a = cx.a
    RT = 4; NT = 14
    STAGE = 28672
    AUX = 4 * STAGE
    HSC = AUX + 1024
    LDS = HSC + (32768 if rep else 0)
    vRb = 236
    if stf is None: stf = SC if sigout else ""
    vX = 224; vD = 228; vWr = 230
    L = 232; t0, t1, t2 = 233, 234, 235
    vS = 236; vC = 237; vCw = 238
    vSum = 240
    vP = 128
    stl = lambda u, i: (u * 4 + i) * 16 + 4
    K = dict(TM=2); K.update(kw)
    if rep and rep[0] >= 0: K['m0_all'] = True
    c = Core(a, nm, RT, NT, 16, R, vWr, vX=vX, vD=vD, init_acc=True, xflag=SC, wpre=wpre, wdone=wdone, **K)
    lane_id(a, L)
    a("s_and_b32 s35, s2, 7"); a("s_lshr_b32 s36, s2, 3")
    a("s_lshr_b32 s37, s35, 2"); a("s_lshl_b32 s37, s37, 2"); a("s_lshr_b32 s38, s36, 3"); a("s_add_u32 s37, s37, s38")
    a("s_and_b32 s38, s35, 3"); a("s_lshl_b32 s38, s38, 3"); a("s_and_b32 s39, s36, 7"); a("s_add_u32 s38, s38, s39")
    a("s_and_b32 s53, s38, 1")
    a("s_lshl_b32 s42, s37, 4"); a("s_lshl_b32 s43, s34, 2"); a("s_add_u32 s42, s42, s43")
    a(f"v_lshrrev_b32 v{t0}, 5, v{L}")
    a("s_lshl_b32 s40, s34, 1"); a("s_add_u32 s40, s40, s53")
    a(f"v_add_u32 v{t0}, s40, v{t0}")
    a(f"v_subrev_u32 v{t2}, 7, v{t0}")
    a(f"v_min_u32 v{t0}, v{t0}, v{t2}")
    a(f"v_lshlrev_b32 v{t0}, 6, v{t0}")
    a(f"v_and_b32 v{t2}, 15, v{L}")
    a(f"v_lshl_add_u32 v{t0}, v{t2}, 2, v{t0}")
    a(f"v_bfe_u32 v{t1}, v{L}, 4, 1")
    a(f"v_mul_u32_u24 v{t1}, 14336, v{t1}")
    a(f"v_add_u32 v{vC}, v{t0}, v{t1}")
    a(f"s_mul_i32 s49, s38, 448"); a(f"s_add_u32 s49, s49, {CSP}")
    a(f"v_lshrrev_b32 v{t1}, 4, v{L}")
    a(f"s_lshl_b32 s48, s42, 11"); a(f"s_add_u32 s48, s48, {STB}"); a("s_add_u32 s41, s48, 4096")
    c.setup_addr(L, 34, 32768)
    a(f"s_lshl_b32 s{c.sXoff}, s42, 15")
    a(f"s_mul_i32 s{c.sWoff}, s38, {16*STAGE}"); a(f"s_add_u32 s{c.sWoff}, s{c.sWoff}, {WF3 + max(wdone-1,0)*STAGE}")
    cx.ready()
    for i in range(16):
        a(f"buffer_load_dword v{vP+i}, v{vC}, s[44:47], s49 offen{csf}")
        if i < 15: a(f"s_add_u32 s49, s49, {7168*4}")
    def ldstats():
        for u in range(2):
            for i in range(4):
                r = stl(u, i)
                a(f"buffer_load_dwordx4 v[{r}:{r+3}], v{vX}, s[44:47], s{48 if u == 0 else 41} offen offset:{i*1024}{SC}")
    def cstab(nafter):
        a("s_lshl_b32 s40, s34, 8"); a(f"s_add_u32 s40, s40, {AUX}")
        a(f"v_lshl_add_u32 v{vCw}, v{L}, 2, s40")
        a(f"v_lshlrev_b32 v{vC}, 4, v{t1}"); a(f"v_add_u32 v{vC}, {AUX}, v{vC}")
        c.setup_rd()
        a(f"s_mul_i32 s50, s42, {112*1024}"); a(f"s_add_u32 s50, s50, {HF}")
        a(f"s_mul_i32 s55, s38, 7")
        a("s_add_u32 s51, s55, s53"); a("s_lshr_b32 s51, s51, 1"); a("s_lshl_b32 s51, s51, 10"); a("s_add_u32 s51, s51, s50")
        a("s_lshr_b32 s52, s55, 1"); a("s_lshl_b32 s52, s52, 10"); a("s_add_u32 s52, s52, s50")
        a("s_cmp_eq_u32 s53, 0"); a("s_cselect_b32 s55, 3072, 8"); a("s_add_u32 s52, s52, s55")
        for t in range(1, RT):
            a(f"s_add_u32 s{54+2*t}, s51, {t*112*1024}"); a(f"s_add_u32 s{55+2*t}, s52, {t*112*1024}")
        a(f"s_waitcnt vmcnt({min(nafter, 63)})")
        for st_ in (8, 4, 2, 1):
            for i in range(st_): a(f"v_add_f32 v{vP+i}, v{vP+i}, v{vP+i+st_}")
        a(f"ds_write_b32 v{vCw}, v{vP}")
        a("s_waitcnt lgkmcnt(0)")
        a("s_barrier")
        for j in range(NT):
            r = c.accr(j, 0)
            a(f"ds_read_b128 v[{r}:{r+3}], v{vC} offset:{j*64}")
    if not gated: ldstats()
    def gate():
        if gated:
            cstab((wpre - wdone) * c.ND)
            a("s_lshl_b32 s19, s37, 7"); a(f"s_add_u32 s19, s19, {FL(lay, 2)}")
            poll1(a, nm + "g", 19, 32, t0, t2)
            cx.T(nm + ".gate")
            ldstats()
    def hook(nvm):
        nx = nvm - (wpre - wdone) * c.ND
        if not gated: cstab(nvm + 8)
        a(f"s_waitcnt vmcnt({nx if gated else nvm})")
        ls = []
        for t in range(RT):
            u, k = t // 2, 2 * (t % 2)
            r = Rec(); b = vSum + 4 * t
            r(f"v_add_f32 v{b}, v{stl(u,0)+k}, v{stl(u,1)+k}"); r(f"v_add_f32 v{b+1}, v{stl(u,2)+k}, v{stl(u,3)+k}"); r(f"v_add_f32 v{b}, v{b}, v{b+1}")
            xlane_sum4(r, b, b + 1)
            r(f"v_mul_f32 v{b}, 0xba800000, v{b}")
            bf16_round(r, b)
            ls.append(r.l)
        for x in interleave(ls):
            if not x.startswith("s_nop"): a(x)
        a("s_waitcnt lgkmcnt(0)")
        for j in range(NT):
            for t in (3, 2, 1, 0):
                for h in range(2):
                    a(pk_bc(c.accr(j, t) + 2 * h, c.accr(j, 0) + 2 * h, vSum + 4 * t))
        if cx.st or cx.jit: cx.T(nm + ".pro"); a("s_waitcnt lgkmcnt(0)")
    if rep:
        r = Rec()
        plane_dma_lane(r, L, 2048, vSum + 1, t0, t1, t2)
        plane_read_bases(r, L, vRb, t0, t1, t2)
        r("s_lshl_b32 s21, s34, 13"); r(f"s_add_u32 s21, s21, {HSC}")
        for aa in range(4): r(f"v_add_u32 v{vRb+aa}, s21, v{vRb+aa}")
        r("s_lshl_b32 s22, s2, 2"); r("s_add_u32 s22, s22, s34")
        r("s_lshr_b32 s23, s22, 4"); r("s_and_b32 s22, s22, 15")
        r("s_mov_b32 s4, s28"); r("s_mov_b32 s5, s29"); r(f"s_mov_b32 s6, {3584*2048}"); r("s_mov_b32 s7, 0x20000")
        r("s_lshl_b32 s20, s23, 17"); r("s_lshl_b32 s8, s22, 7"); r("s_add_u32 s20, s20, s8")
        r(f"s_mul_i32 s8, s22, {56*8192}"); r("s_lshl_b32 s9, s23, 13"); r("s_add_u32 s8, s8, s9"); r(f"s_add_u32 s8, s8, {WF4}")
        r("s_and_b32 s13, s2, 3"); r("s_lshl_b32 s13, s13, 7"); r(f"s_add_u32 s13, s13, {FL(0, 5)}")
        r(f"v_min_u32 v{vSum+2}, 1, v{L}"); r(f"v_lshlrev_b32 v{vSum+2}, 26, v{vSum+2}"); r(f"v_mov_b32 v{vSum+3}, 1")
        m = spread(c, 1, 2, r.l, per=1)
        c.extra(1, m, ["s_cmp_ge_u32 s23, 56", "s_cselect_b32 s8, 0x7ff00000, s8", "s_add_u32 s9, s8, 4096"])
        c.extra(1, m + 1, ["s_cmp_eq_u32 s34, 0", "s_cselect_b32 s13, s13, 0x7ff00000"])
        k0_, m0_, k1_, m1_ = rep
        aR = c.agpr_end
        m = m0_
        for d in range(8):
            c.extra(k0_ + m // c.M, m % c.M, [f"s_add_u32 m0, s21, {d*1024}", (f"s_add_u32 s20, s20, {8*2048}" if d else "s_nop 0"),
                             f"buffer_load_dwordx4 v{vSum+1}, s[4:7], s20 offen nt lds"], cost=3, vm=("rd", d))
            m += 2
        m = m1_
        for j in range(4):
            for s_ in range(2):
                for qq in range(2):
                    r_ = aR + j * 8 + s_ * 4 + qq * 2
                    c.extra(k1_, m, f"ds_read_b64_tr_b16 a[{r_}:{r_+1}], v{vRb+j} offset:{(32*s_+16*qq)*128}", lds=("rr", j, s_, qq), needvm=[("rd", 7)]); m += 1
        m += 2
        for j in range(4):
            for s_ in range(2):
                r_ = aR + j * 8 + s_ * 4
                c.extra(k1_, m, f"buffer_store_dwordx4 a[{r_}:{r_+3}], v{vX}, s[44:47], s{8 + j//2} offen offset:{((j%2)*2+s_)*1024} sc1", cost=2, vm=("rs", j, s_), needlds=[("rr", j, s_, 0), ("rr", j, s_, 1)]); m += 3
        c.extra_at(4, ["s_waitcnt vmcnt(0)", "s_barrier"])
        c.extra_at(5, f"buffer_atomic_add v{vSum+3}, v{vSum+2}, s[44:47], s13 offen sc1", cost=2, vm=("rsig",))
    sP = lambda t: 51 if t == 0 else 54 + 2 * t
    sS = lambda t: 52 if t == 0 else 55 + 2 * t
    def piece(p, t):
        r = Rec()
        js = (2 * p, 2 * p + 1) if p < 3 else (6,)
        dst = c.accr(2 * js[0], t)
        for jj in js:
            rg = c.accr(2 * jj, t); ru = c.accr(2 * jj + 1, t)
            for e in range(4): r(f"v_mul_f32 v{ru+e}, v{rg+e}, v{ru+e}")
        for n, jj in enumerate(js):
            ru = c.accr(2 * jj + 1, t)
            for h in range(2): r(f"v_cvt_pk_bf16_f32 v{dst+2*n+h}, v{ru+2*h}, v{ru+2*h+1}")
        if p < 3: s_ = f"buffer_store_dwordx4 v[{dst}:{dst+3}], v{vX}, s[44:47], s{sP(t)} offen offset:{p*1024}{stf}"
        else: s_ = f"buffer_store_dwordx2 v[{dst}:{dst+1}], v{vX}, s[44:47], s{sS(t)} offen{stf}"
        return r.l, s_
    if touch is not None:
        m = touch[1]
        for p in range(4):
            for t in range(RT):
                s_ = piece(p, t)[1]
                import re
                s_ = re.sub(r"v\[\d+:\d+\]", f"v[{vX}:{vX+3}]" if p < 3 else f"v[{vX}:{vX+1}]", s_, count=1)
                c.extra(touch[0] + m // c.M, m % c.M, s_, cost=2, vm=("tch", p, t)); m += touch[2]
    if nxt:
        r = Rec(); cpf(r, nxt, L, t0, t1)
        m = spread(c, -3, 60, r.l[:6], per=1)
        c.extra(-3, m, r.l[6:], vm=("cpf",))
    if pre:
        assert pre <= 7 and c.TM == 2
        po = pre_ops("d", pre, L)
        spread(c, -2, 2, po[0], per=1)
        c.extra_at(pb, "s_barrier")
        for n, g_ in enumerate(po[1:]): c.extra_at(pb + 2 + psp * n, g_, cost=3, vm=("pre", n))
    after = []
    tot = c.TM * c.M
    for p in range(3):
        order = c.fin_order(4 * p + 3)
        m = c.fin_slot(4 * p + 3, order[-1]) + 3
        room = min(tot - m, 32 * c.TM)
        for t in order:
            ins, s_ = piece(p, t)
            pp = 1 if room >= 56 else 2
            grp = [ins[i:i+pp] for i in range(0, len(ins), pp)]
            if m + len(grp) + 1 <= tot:
                for g_ in grp:
                    c.extra_at(m, g_); m += 1
                c.extra_at(m, s_, cost=2, vm=("st", p, t)); m += 1
            else:
                after += ins + [s_]
    c.emit(hook, gate)
    for x in after: a(x)
    if len(after) < 8: a("s_nop 7")
    for t in c.fin_order(13):
        ins, s_ = piece(3, t)
        for x in ins: a(x)
        a(s_)
    cx.T(nm + ".main")
    if sigout:
        a("s_lshl_b32 s19, s37, 7"); a(f"s_add_u32 s19, s19, {FL(lay, 3)}")
        signal(a, 19, L, t0, t1)
    cx.T(nm + ".end")
    return LDS

def phase_down(cx, nm, lay, gated, sigout, nxt, final, R=2, UN=8, wpre=1, wdone=0, pre=0, wwait=False, touch=False, early=False, **kw):
    a = cx.a
    RT = 2; NT = 4; KS = 56
    if wwait: kw = dict(kw, wflag=SC)
    vX = 32; vD = 34; ones = 35; vWr = 36; L = 40; t0, t1, t2 = 41, 42, 43
    vRow, vStat, vS, vOut = 44, 45, 46, 47
    vSt = 48; vXo = 64; tmp = 80
    K = dict(gh=1, cap=3, rdmargin=2, npro=4, xlead=3, XUN=4); K.update(kw)
    c = Core(a, nm, RT, NT, KS, R, vWr, vX=vX, vD=vD, UN=UN, xflag=SC, wpre=wpre, wdone=wdone, **K)
    lane_id(a, L)
    tile_map_16x16(a, 3)
    rbB = KS * 2048
    c.setup_addr(L, 34, rbB)
    a("s_lshl_b32 s42, s37, 3"); a("s_lshl_b32 s43, s34, 1"); a("s_add_u32 s42, s42, s43")
    a(f"s_mul_i32 s{c.sXoff}, s42, {rbB}"); a(f"s_add_u32 s{c.sXoff}, s{c.sXoff}, {HF}")
    a(f"s_mul_i32 s{c.sWoff}, s38, {KS*8192}"); a(f"s_add_u32 s{c.sWoff}, s{c.sWoff}, {WF4 + max(wdone-1,0)*8192}")
    cx.ready()
    if wwait:
        a("s_lshr_b32 s19, s38, 2"); a("s_lshl_b32 s19, s19, 7"); a(f"s_add_u32 s19, s19, {FL(0, 5)}")
        poll(a, nm + "w", 19, 64, t0, t1)
    def hook0():
        c.setup_rd()
        if final: srd(a, 56, "s30", "s31", 2048 * 2048)
        epi_setup2(a, L, t0, t1, vRow, vStat, vOut, ones, STB, STA, final)
    def gate():
        if gated:
            hook0()
            a("s_lshr_b32 s19, s37, 1"); a("s_lshl_b32 s19, s19, 7"); a(f"s_add_u32 s19, s19, {FL(lay, 3)}")
            poll1(a, nm + "g", 19, 32, t0, t1)
            if cx.st or cx.jit: cx.T(nm + ".gate"); a("s_waitcnt lgkmcnt(0)")
    def hook(nvm):
        if not gated: hook0()
    if touch:
        for n in range(4):
            c.extra(4 + n, 5, f"buffer_store_dwordx4 v[{vRow}:{vRow+3}], v{vOut}, s[56:59], s{50 + n % 2} offen offset:{(n//2)*64} sc1", cost=2, vm=("tch", n))
    kb = 1 if early else -3
    n = 0
    for i in range(4):
        c.extra(kb + n // 2, 3 + 8 * (n % 2), f"buffer_load_dwordx4 v[{vSt+4*i}:{vSt+4*i+3}], v{vX}, s[44:47], s53 offen offset:{i*1024}{SC}", cost=2, vm=("stt", i)); n += 1
    n = 0
    for t in range(RT):
        for b in range(2):
            c.extra(kb + n // 2, 6 + 8 * (n % 2), f"buffer_load_dwordx4 v[{vXo+8*t+4*b}:{vXo+8*t+4*b+3}], v{vX}, s[44:47], s{48+t} offen offset:{b*1024}{SC}", cost=2, vm=("xo", t, b)); n += 1
    if early:
        r = Rec()
        ls = row_stats2(r, vSt, want_mean=False, want_inv=True)
        for t in range(RT): ls[t].append(f"v_mul_f32 v{vSt+8*t+4}, v{vSt+8*t+4}, v{vSt+8*t+4}")
        for x in interleave(ls): r(x)
        spread(c, 4, 8, r.l, per=3, needvm=[("stt", 3), ("xo", 1, 1)])
        assert 8 + (len(r.l) + 2) // 3 <= 2 * c.M + 6
        for j in range(NT):
            for t in range(RT):
                xo = vXo + 8 * t + 4 * (j // 2) + 2 * (j % 2); ac = c.accr(j, t); tb = tmp + 4 * (t % 2)
                l = [f"v_lshlrev_b32 v{tb}, 16, v{xo}", f"v_and_b32 v{tb+1}, 0xffff0000, v{xo}",
                     f"v_lshlrev_b32 v{tb+2}, 16, v{xo+1}", f"v_and_b32 v{tb+3}, 0xffff0000, v{xo+1}"]
                l2 = [f"v_fmac_f32 v{ac+e}, v{tb+e}, v{vSt+8*t+2}" for e in range(4)]
                m = c.slot_of(j, t) + 7
                c.extra(6 + m // c.M, m % c.M, l)
                c.extra(6 + (m + 1) // c.M, (m + 1) % c.M, l2)
    if nxt:
        r = Rec(); cpf(r, nxt, L, t0, t1)
        c.extra(-5, 2, r.l, vm=("cpf",))
    c.emit(hook, gate)
    cx.T(nm + ".main")
    r = Rec()
    if early: r("s_nop 7")
    else:
        a("s_waitcnt vmcnt(0)")
        ls = row_stats2(r, vSt, want_mean=False)
        for t in range(RT): ls[t].append(f"v_mul_f32 v{vSt+8*t+4}, v{vSt+8*t+4}, v{vSt+8*t+4}")
        for x in interleave(ls): r(x)
    resid_epilogue(r, c.accr, RT, lambda t, b: vXo + 8 * t + 4 * b, lambda t: vSt + 8 * t + 4, tmp, vX, vRow, 44,
                   lambda t: 48 + t, 52, vStat, final, srd_out=56, s_out=lambda t: 50 + t, vOut=vOut, ones=ones, stf=(SC if sigout else ""), pre=early)
    if pre:
        po = pre_ops("a", pre, L)
        for x in po[0]: a(x)
        a("s_barrier")
        weave(a, r.l, po[1:], every=max(1, len(r.l) // len(po)))
    else:
        for x in r.l: a(x)
    if sigout:
        a("s_lshl_b32 s19, s37, 7"); a(f"s_add_u32 s19, s19, {FL(lay, 4)}")
        signal(a, 19, L, t0, t1)
    cx.T(nm + ".end")
    return UN * c.stage_bytes

def phase_prep(cx, nm, mode=0, wb=False, pw=0, psl=4, ps0=0, go=False):
    a = cx.a
    L = 1; vD0 = 3; vD1 = 4; vRb = 8; vX = 7; vOne = 12; vL4 = 2
    lane_id(a, L)
    a("s_cmp_lt_u32 s2, 192")
    a("s_cselect_b32 s25, 6144, 0"); a("s_cselect_b32 s26, 0, 2048"); a("s_add_u32 s25, s25, s26")
    plane_dma_lane(a, L, "s25", vD0, 5, 6, 9)
    plane_dma_lane(a, L, 7168, vD1, 5, 6, 9)
    a("s_mul_i32 s36, s2, 1366"); a("s_lshr_b32 s36, s36, 16")
    a("s_mul_i32 s22, s36, 48"); a("s_sub_u32 s22, s2, s22")
    a("s_sub_u32 s26, s2, 192"); a("s_lshr_b32 s26, s26, 4"); a("s_and_b32 s27, s2, 15")
    a("s_cmp_lt_u32 s2, 192")
    a("s_cselect_b32 s36, s36, s26"); a("s_cselect_b32 s22, s22, s27")
    a("s_lshl_b32 s36, s36, 2"); a("s_add_u32 s36, s36, s34")
    a("s_lshl_b32 s23, s22, 7"); a("s_lshl_b32 s24, s25, 6"); a("s_mul_i32 s24, s24, s36"); a("s_add_u32 s23, s23, s24")
    a("s_lshl_b32 s24, s25, 3")
    a("s_mul_i32 s35, s34, 24576")
    cx.ready()
    a("s_cmp_lt_u32 s2, 192")
    a("s_cselect_b32 s48, s6, s8"); a("s_cselect_b32 s49, s7, s9"); a("s_lshl_b32 s50, s25, 10"); a("s_mov_b32 s51, 0x20000")
    q = Seq(a)
    for d in range(8):
        a(f"s_add_u32 m0, s35, {d*1024}")
        if d: a("s_add_u32 s23, s23, s24")
        else: a("s_nop 0")
        q(f"buffer_load_dwordx4 v{vD0}, s[48:51], s23 offen nt lds", vm=("b", 0, d))
    if getattr(cx, "fine", 0): cx.T("p.ld0")
    a("s_lshl_b32 s37, s2, 2"); a("s_add_u32 s37, s37, s34"); a("s_lshr_b32 s38, s37, 3"); a("s_and_b32 s39, s37, 7")
    a(f"v_and_b32 v5, 15, v{L}"); a(f"v_lshrrev_b32 v6, 4, v{L}")
    a("v_lshlrev_b32 v9, 11, v5"); a("v_and_b32 v10, 1, v6"); a("v_lshl_add_u32 v9, v10, 5, v9"); a("v_lshrrev_b32 v10, 1, v6"); a("v_lshl_add_u32 v9, v10, 4, v9")
    a("s_lshl_b32 s40, s38, 15"); a("s_lshl_b32 s41, s39, 8"); a("s_add_u32 s41, s41, s40")
    srd(a, 52, "s4", "s5", 2048 * 2048)
    for b in range(4):
        q(f"buffer_load_dwordx4 v[{64+4*b}:{67+4*b}], v9, s[52:55], s41 offen offset:{b*64} nt", vm=("x", b))
    a("v_and_b32 v10, 1, v6"); a("v_lshlrev_b32 v11, 4, v5"); a("v_lshl_add_u32 v11, v10, 8, v11")
    a("v_cmp_eq_u32 s[62:63], 0, v10")
    a("s_lshr_b32 s42, s2, 4")
    a("s_mov_b32 s58, 0"); a("s_mov_b32 s59, 0x20000")
    def gsetup(e, db):
        a("s_and_b32 s43, s2, 15"); a("s_mul_i32 s43, s43, 7"); a("s_add_u32 s43, s43, s34")
        if e: a("s_add_u32 s43, s43, 4")
        a("s_cmp_ge_u32 s43, 56")
        a("s_cselect_b32 s56, s14, s12"); a("s_cselect_b32 s57, s15, s13")
        a("s_cselect_b32 s26, 56, 0"); a("s_cselect_b32 s27, 2048, 0")
        a("s_sub_u32 s26, s43, s26")
        a("s_lshl_b32 s23, s26, 7"); a(f"s_mul_i32 s24, s42, {64*7168}"); a("s_add_u32 s23, s23, s24")
        a("s_mul_i32 s24, s42, 28672"); a("s_add_u32 s27, s27, s24"); a(f"s_add_u32 s27, s27, {WF3}")
        a(f"s_mov_b32 s58, {1024*7168}")
        if e:
            a("s_cmp_eq_u32 s34, 3"); a("s_cselect_b32 s58, 0, s58"); a("s_cselect_b32 s27, 0x7ff00000, s27")
        for d in range(8):
            a(f"s_add_u32 m0, s35, {(1+e)*8192 + d*1024}")
            if d: a(f"s_add_u32 s23, s23, {8*7168}")
            else: a("s_nop 0")
            q(f"buffer_load_dwordx4 v{vD1}, s[56:59], s23 offen nt lds", vm=("b", 1 + e, d))
        for j in range(4):
            a(f"s_lshl_b32 s16, s26, 2"); a(f"s_add_u32 s16, s16, {j}")
            a("s_mul_i32 s17, s16, 9363"); a("s_lshr_b32 s17, s17, 16")
            a("s_mul_i32 s18, s17, 7"); a("s_sub_u32 s18, s16, s18")
            a("s_and_b32 s19, s17, 1"); a("s_mul_i32 s19, s19, 6"); a("s_add_u32 s18, s18, s19")
            a("s_sub_u32 s19, s18, 7"); a("s_min_u32 s18, s18, s19")
            a("s_lshl_b32 s18, s18, 12")
            a(f"s_mul_i32 s17, s17, {16*28672}")
            a(f"s_add_u32 s{db+j}, s17, s18"); a(f"s_add_u32 s{db+j}, s{db+j}, s27")
        a(f"s_mul_i32 s{db+4}, s42, {7168*4}"); a("s_lshl_b32 s16, s43, 8"); a(f"s_add_u32 s{db+4}, s{db+4}, s16"); a(f"s_add_u32 s{db+4}, s{db+4}, {CSP}")
        if e:
            a("s_cmp_eq_u32 s34, 3"); a(f"s_cselect_b32 s{db+4}, 0x7ff00000, s{db+4}")
    a("s_and_b32 s16, s22, 15"); a(f"s_mul_i32 s17, s16, {24*16384}"); a("s_lshr_b32 s18, s22, 4")
    a("s_lshl_b32 s19, s36, 14"); a("s_sub_u32 s26, s18, 1"); a("s_lshl_b32 s26, s26, 13"); a("s_add_u32 s19, s19, s26")
    a("s_lshl_b32 s26, s36, 11"); a(f"s_add_u32 s26, s26, {16*16384}")
    a("s_cmp_eq_u32 s18, 0"); a("s_cselect_b32 s19, s26, s19"); a("s_cselect_b32 s27, 16, 1")
    a("s_add_u32 s17, s17, s19"); a(f"s_add_u32 s17, s17, {WF1}")
    a("s_lshl_b32 s19, s16, 17"); a("s_lshl_b32 s26, s36, 13"); a("s_add_u32 s19, s19, s26"); a(f"s_add_u32 s19, s19, {WF2}")
    a("s_cmp_lt_u32 s2, 192"); a("s_cselect_b32 s84, s17, s19"); a("s_cselect_b32 s27, s27, 1"); a("s_lshl_b32 s27, s27, 11")
    for j in range(1, 4): a(f"s_add_u32 s{84+j}, s{83+j}, s27")
    r = Rec(); cpf(r, "PH_a0", L, 24, 25, s0=16)
    for x in r.l:
        if x.startswith("global_load"): q(x, vm="cpf")
        else: a(x)
    gsetup(0, 89)
    if getattr(cx, "fine", 0): cx.T("p.ld1")
    plane_read_bases(a, L, vRb + 8, 5, 6, 9)
    for aa in range(4): a(f"v_add_u32 v{16+aa}, s35, v{16+aa}")
    a(f"v_lshlrev_b32 v{vX}, 4, v{L}"); a(f"v_lshlrev_b32 v{vL4}, 2, v{L}")
    for e in range(4): a(f"v_mov_b32 v{vOne+e}, 0x3f803f80")
    a(f"v_cmp_gt_u32 s[10:11], 16, v{L}"); a(f"v_cmp_gt_u32 s[60:61], 32, v{L}"); a(f"v_cmp_gt_u32 vcc, 48, v{L}")
    def block(b, db, rb):
        q.wait(needvm=[("b", b, 7)])
        if getattr(cx, "fine", 0): cx.T(f"p.b{b}"); a("s_waitcnt lgkmcnt(0)")
        for j in range(4):
            for s_ in range(2):
                for qq in range(2):
                    r = rb + j * 8 + s_ * 4 + qq * 2
                    q(f"ds_read_b64_tr_b16 v[{r}:{r+1}], v{16+j} offset:{b*8192 + (32*s_+16*qq)*128}", lds=("r", b, j, s_, qq))
        for j in range(4):
            for s_ in range(2):
                r = rb + j * 8 + s_ * 4; d = rb + 32 + 4 * j
                q(f"buffer_store_dwordx4 v[{r}:{r+3}], v{vX}, s[44:47], s{db+j} offen offset:{s_*1024}{'' if (wb and b > 0) else ' sc1'}", vm=("s", b, j, s_), needlds=[("r", b, j, s_, 1)])
                a(f"v_mfma_f32_16x16x32_bf16 v[{d}:{d+3}], v[{vOne}:{vOne+3}], v[{r}:{r+3}], {'0' if s_ == 0 else f'v[{d}:{d+3}]'}")
        a("s_nop 7")
        d = rb + 32
        a(f"v_cndmask_b32 v{d+8}, v{d+12}, v{d+8}, vcc")
        a(f"v_cndmask_b32 v{d+4}, v{d+8}, v{d+4}, s[60:61]")
        a(f"v_cndmask_b32 v{d}, v{d+4}, v{d}, s[10:11]")
        return d
    for e in range(4): a(f"v_mov_b32 v{20+e}, 0")
    a(f"s_mul_i32 s16, s37, {ZSZ//1024}"); a(f"s_add_u32 s16, s16, {KV}")
    a(f"s_mov_b32 exec_lo, {(1 << (ZSZ//16384)) - 1}"); a("s_mov_b32 exec_hi, 0")
    q(f"buffer_store_dwordx4 v[20:23], v{vX}, s[44:47], s16 offen sc1", vm="z")
    if go:
        a("s_lshl_b32 s99, s2, 7"); a(f"s_add_u32 s99, s99, {GO}")
        a("s_mov_b64 exec, 1")
        q(f"buffer_store_dword v20, v{vX}, s[44:47], s99 offen sc1", vm="zg")
    a("s_mov_b64 exec, -1")
    d = block(0, 84, 96)
    a("s_lshl_b32 s16, s34, 8"); a(f"s_add_u32 s16, s16, {4*24576}")
    a(f"v_add_u32 v24, s16, v{vL4}")
    q(f"ds_write_b32 v24, v{d}", lds="cs")
    for e in range(4): a(f"v_mov_b32 v{80+e}, 0")
    a("s_lshl_b32 s41, s39, 12"); a("s_add_u32 s41, s41, s40")
    q.wait(needvm=[("x", 3)])
    for b in range(4):
        r = 64 + 4 * b
        a(f"v_permlane16_swap_b32 v{r}, v{r+2}")
        a(f"v_permlane16_swap_b32 v{r+1}, v{r+3}")
        q(f"buffer_store_dwordx4 v[{r}:{r+3}], v{vX}, s[44:47], s41 offen offset:{b*1024} sc1", vm=("xs", b))
        for p_ in range(4):
            a(f"v_dot2_f32_bf16 v{80+2*(b//2)}, v{r+p_}, v{vOne}, v{80+2*(b//2)}")
            a(f"v_dot2_f32_bf16 v{81+2*(b//2)}, v{r+p_}, v{r+p_}, v{81+2*(b//2)}")
    a("s_nop 2")
    ls = []
    for e in range(4):
        r = Rec(); xlane_sum4(r, 80 + e, 84 + e); ls.append(r.l)
    for x in interleave(ls):
        if not x.startswith("s_nop"): a(x)
    a("v_cndmask_b32 v80, v82, v80, s[62:63]"); a("v_cndmask_b32 v81, v83, v81, s[62:63]")
    a("s_lshr_b32 s16, s38, 1"); a("s_lshl_b32 s16, s16, 12"); a("s_lshl_b32 s17, s39, 9"); a("s_add_u32 s16, s16, s17")
    a("s_and_b32 s17, s38, 1"); a("s_lshl_b32 s17, s17, 3"); a("s_add_u32 s16, s16, s17"); a(f"s_add_u32 s16, s16, {STA}")
    q("buffer_store_dwordx2 v[80:81], v11, s[44:47], s16 offen sc1", vm="sts")
    q.wait(alllds=True)
    a("s_barrier")
    a(f"v_add_u32 v24, {4*24576}, v{vL4}")
    for i in range(4): q(f"ds_read_b32 v{26+i}, v24 offset:{i*256}", lds=("cr", i))
    a(f"s_lshl_b32 s16, s2, 8"); a(f"s_add_u32 s16, s16, {CSQ}")
    a("s_cmp_lt_u32 s2, 192"); a("s_cselect_b32 s16, s16, 0x7ff00000")
    q.wait(alllds=True)
    a("v_add_f32 v26, v26, v27"); a("v_add_f32 v28, v28, v29"); a("v_add_f32 v26, v26, v28")
    q(f"buffer_store_dword v26, v{vL4}, s[44:47], s16 offen sc1", vm="css")
    if mode == 1: gsetup(1, 94)
    d = block(1, 89, 144)
    q(f"buffer_store_dword v{d}, v{vL4}, s[44:47], s93 offen sc1", vm="g1")
    if getattr(cx, "fine", 0): cx.T("p.st1")
    srd(a, 52, "s20", "s21", 256)
    if go:
        a("v_mov_b32 v24, 0"); a("v_mov_b32 v25, 1")
        a("s_waitcnt vmcnt(0)")
        a("s_barrier")
        cx.T(nm + ".sig")
        a("s_cmp_eq_u32 s34, 3")
        a(f"s_cbranch_scc1 PW{nm}")
        q = Seq(a)
        gsetup(1, 94)
        d = block(2, 94, 96)
        q(f"buffer_store_dword v{d}, v{vL4}, s[44:47], s98 offen sc1", vm="g2")
        a(f"s_branch PE{nm}")
        a.label(f"PW{nm}")
        a("s_mov_b64 exec, 1")
        a("buffer_atomic_add v25, v24, s[52:55], 0 offen sc0 sc1")
        a("s_waitcnt vmcnt(0)")
        a("s_mov_b64 exec, -1")
        a("v_readfirstlane_b32 s16, v25")
        a("s_cmp_lg_u32 s16, 255")
        a(f"s_cbranch_scc1 PN{nm}")
        a(f"v_lshlrev_b32 v26, 7, v{L}"); a("v_mov_b32 v27, 1")
        for i in range(4):
            a(f"s_mov_b32 s16, {GO + i*8192}")
            a("buffer_store_dword v27, v26, s[44:47], s16 offen sc1")
        a(f"s_branch PE{nm}")
        a.label(f"PN{nm}")
        a("s_mov_b32 s17, 0")
        a.label(f"P{nm}")
        a("buffer_load_dword v25, v24, s[44:47], s99 offen sc1")
        a("s_waitcnt vmcnt(0)")
        a("v_readfirstlane_b32 s16, v25")
        a("s_cmp_eq_u32 s16, 1")
        a(f"s_cbranch_scc1 PE{nm}")
        a(f"s_sleep {psl}")
        a("s_add_u32 s17, s17, 1"); a("s_cmp_lt_u32 s17, 0x40000")
        a(f"s_cbranch_scc1 P{nm}")
        a.label(f"PE{nm}")
        a("s_barrier")
        cx.T(nm + ".end")
        return 4 * 24576 + 1024
    a(f"v_min_u32 v24, 1, v{L}"); a("v_lshlrev_b32 v24, 26, v24"); a("v_mov_b32 v25, 1")
    a("s_and_b32 s16, s2, 3"); a("s_lshl_b32 s16, s16, 6")
    a("s_cmp_eq_u32 s34, 0"); a("s_cselect_b32 s16, s16, 0x7ff00000")
    a("s_waitcnt vmcnt(0)")
    a("s_barrier")
    a("buffer_atomic_add v25, v24, s[52:55], s16 offen sc1")
    cx.T(nm + ".sig")
    if pw == 3:
        a("s_cmp_eq_u32 s34, 3")
        a(f"s_cbranch_scc1 PW{nm}")
    if mode == 0:
        q = Seq(a)
        gsetup(1, 94)
    d = block(2, 94, 96)
    q(f"buffer_store_dword v{d}, v{vL4}, s[44:47], s98 offen sc1", vm="g2")
    if pw == 3:
        a(f"s_branch PE{nm}")
        a.label(f"PW{nm}")
    else:
        a("s_cmp_lg_u32 s34, 0")
        a(f"s_cbranch_scc1 PE{nm}")
    a(f"v_and_b32 v24, 3, v{L}"); a("v_lshlrev_b32 v24, 6, v24")
    a("s_mov_b32 s17, 0")
    a.label(f"P{nm}")
    if pw == 3: a(f"s_sleep {psl}")
    a("buffer_load_dword v25, v24, s[52:55], 0 offen sc1")
    a("s_waitcnt vmcnt(0)")
    a("v_cmp_gt_u32 vcc, 64, v25")
    a(f"s_cbranch_vccz PE{nm}")
    if pw != 3: a("s_sleep 4")
    a("s_add_u32 s17, s17, 1"); a("s_cmp_lt_u32 s17, 0x40000")
    a(f"s_cbranch_scc1 P{nm}")
    a.label(f"PE{nm}")
    a("s_barrier")
    cx.T(nm + ".end")
    return 4 * 24576 + 1024

HDR = open("interleave_layers__linear_attn_block__glu_gated_bilinear__prompt.s.ref").read().split("; Override launch")[0]
PH = ["a0", "u0", "d0", "a1", "u1", "d1"]
def build(fn, cuts=(), st=False, A_={}, U_={}, D_={}, Ag={}, Ug={}, Dg={}, k0kw={}, PRE=dict(a=0, u=0, d=0), rep=None, TCH='', one=False, pmode=0, jit=0, wb=None, fine=0, P_={}):
    cuts = set(cuts) | {"a0"}
    groups = []
    for p in PH:
        if p in cuts: groups.append([])
        groups[-1].append(p)
    ks = []; ls = []
    if not one:
      k, lds, n = gen_k0("k0_kernel", nxt=("PH_a0",), ngate=112, v2=True, stflag="sc1", down=(rep is None), st2=True, **k0kw)
      ks.append(k); ls.append(("k0_kernel", (n,1,1), (256,1,1), lds))
    names = {}
    for gi, g in enumerate(groups):
        kn = f"m{gi}_kernel"
        a = A(); cx = Ctx(a, st); cx.jit = jit; cx.fine = fine
        a("s_cmp_ge_u32 s2, 256")
        a(f"s_cbranch_scc0 S_{kn}")
        a("s_endpgm")
        a.label(f"S_{kn}")
        cx.T("start")
        a("s_load_dwordx2 s[32:33], s[0:1], 72")
        a("s_load_dwordx4 s[28:31], s[0:1], 48")
        if one and gi == 0:
            a("s_load_dwordx4 s[4:7], s[0:1], 0"); a("s_load_dwordx2 s[8:9], s[0:1], 16")
            a("s_load_dwordx4 s[12:15], s[0:1], 32"); a("s_load_dwordx2 s[20:21], s[0:1], 64")
        a("v_lshrrev_b32 v1, 6, v0")
        a("s_nop 0")
        a("v_readfirstlane_b32 s34, v1")
        state = dict(done=False)
        def ready():
            if not state["done"]:
                a("s_waitcnt lgkmcnt(0)")
                srd(a, 44, "s32", "s33", WS_USED)
                state["done"] = True
        cx.ready = ready
        LDS = 0
        if one and gi == 0: LDS = phase_prep(cx, "p0", pmode, wb is not None, **P_)
        for p in g:
            i = PH.index(p); lay = int(p[1])
            gated = p not in cuts
            nx = PH[i + 1] if i + 1 < len(PH) else None
            sigout = nx is not None and nx not in cuts
            nxl = f"PH_{nx}" if nx else None
            ex = {}
            if gated: ex["wdone"] = PRE[p[0]]
            if sigout: ex["pre"] = PRE[nx[0]]
            if rep and p == "u0": ex["rep"] = rep
            if rep and p == "d0": ex["wwait"] = True
            if p == "u0" and "h" in TCH: ex.update(touch=(3, 4, 60), H=12, T=4)
            if p == "a0" and "o" in TCH: ex["touch"] = True
            if p == "d1" and "y" in TCH: ex["touch"] = True
            if one and p[0] in "au": ex["wflag"] = SC; ex["csf"] = SC
            if one and p == "d1": ex["wflag"] = SC
            if wb is not None and p == "a0": ex["wb"] = wb
            a.label(f"PH_{p}")
            if p[0] == "a": l = phase_attn(cx, p, lay, gated, sigout, nxl, **{**A_, **(Ag if gated else {}), **ex})
            elif p[0] == "u": l = phase_up(cx, p, lay, gated, sigout, nxl, **{**U_, **(Ug if gated else {}), **ex})
            else: l = phase_down(cx, p, lay, gated, sigout, nxl, lay == 1, **{**D_, **(Dg if gated else {}), **ex})
            a.label(f"END_PH_{p}")
            LDS = max(LDS, l)
        if st:
            a("s_waitcnt vmcnt(0)"); cx.T("fin")
            a("s_waitcnt lgkmcnt(0)")
            a("s_lshl_b32 s60, s2, 2"); a("s_add_u32 s60, s60, s34"); a("s_lshl_b32 s60, s60, 7"); a(f"s_add_u32 s60, s60, {STAMP_OFF + gi*0x80000}")
            a("v_mov_b32 v1, 0")
            for i in range(cx.n):
                a(f"v_mov_b32 v0, s{64+2*i}")
                a(f"buffer_store_dword v0, v1, s[44:47], s60 offen offset:{4*i}")
                a("s_nop 1")
            names[kn] = cx.names
        a("s_endpgm")
        ks.append(kernel_wrap(kn, a.text(), vgpr=256, agpr=256, sgpr=102))
        ls.append((kn, (256,1,1), (256,1,1), LDS))
    open(fn, "w").write(HDR + file_wrap(ls, ks))
    if st:
        import json; json.dump(names, open(fn + ".json", "w"))

if __name__ == "__main__":
    G0 = dict(Ag=dict(wpre=5), Ug=dict(wpre=3), Dg=dict(wpre=7), rep=(2, 90, -4, 4), one=True,
              A_=dict(remap=True, per=8, sig=175, pollp=220, early=True), D_=dict(early=True))
    build("mo.s", **G0)
    build("ma.s", P_=dict(go=True, psl=4), **G0)
    build("ma_st.s", st=True, P_=dict(go=True, psl=4), **G0)
```
